```python
import torch

def _softmax(x, axis=-1):
    return torch.softmax(x, dim=axis)
def _gelu(x):
    return torch.nn.functional.gelu(x, approximate="tanh")
def _silu(x):
    return torch.nn.functional.silu(x)
def _sigmoid(x):
    return torch.sigmoid(x)
def _layernorm(x, axis=-1, eps=1e-5):
    m = x.mean(dim=axis, keepdim=True)
    v = x.var(dim=axis, keepdim=True, unbiased=False)
    return (x - m) / torch.sqrt(v + eps)
def _scatter_add(tgt, idx, src, axis=0):
    return tgt.clone().index_add_(axis, idx, src)
def _segment_sum(src, seg, n):
    out = torch.zeros((n,) + src.shape[1:], dtype=src.dtype)
    return out.index_add_(0, seg, src)
def _pad(x, pw):
    flat = tuple(v for pair in reversed(pw) for v in pair)
    return torch.nn.functional.pad(x, flat)

kernel_name = 'sequential_preLN__linear_attn_block__dense_activation_relu__prompt'

def setup_inputs():

    _w = (lambda a: (lambda t: t.to(torch.bfloat16) if t.is_floating_point() else t)(torch.as_tensor(a)))
    def _A_setup():
        B, S, D = 1, 2048, 576
        return {
            "x": _w((lambda *s: torch.randn(*s, dtype=torch.bfloat16) * 0.05)(B, S, D)),
            "wqkv": _w((lambda *s: torch.randn(*s, dtype=torch.bfloat16) * 0.05)(D, 3 * D)),
            "wo": _w((lambda *s: torch.randn(*s, dtype=torch.bfloat16) * 0.05)(D, D)),
        }
    _A_in = _A_setup()

    def _B_setup():
        B, S, D, Dff = 1, 2048, 576, 4608
        return {
            "x": _w((lambda *s: torch.randn(*s, dtype=torch.bfloat16) * 0.05)(B, S, D)),
            "w1": _w((lambda *s: torch.randn(*s, dtype=torch.bfloat16) * 0.05)(D, Dff)),
            "w2": _w((lambda *s: torch.randn(*s, dtype=torch.bfloat16) * 0.05)(Dff, D)),
        }
    _B_in = _B_setup()

    return {
        "A_x": _A_in["x"],
        "A_wqkv": _A_in["wqkv"],
        "A_wo": _A_in["wo"],
        "B_x": _B_in["x"],
        "B_w1": _B_in["w1"],
        "B_w2": _B_in["w2"],
    }

def reference(A_x, A_wqkv, A_wo, B_x, B_w1, B_w2):
    def _A_ref(x, wqkv, wo):
        B, S, D = x.shape
        H = 32; Dh = D // H
        qkv = (lambda x, *d: x.permute(*d))((x @ wqkv).reshape(B, S, 3, H, Dh), 2, 0, 3, 1, 4)
        q, k, v = qkv[0], qkv[1], qkv[2]
        phi = lambda t: torch.where(t > 0, t + 1, torch.exp(t)) + 1e-6
        pq, pk = phi(q), phi(k)
        kv = torch.einsum("bhsd,bhse->bhde", pk, v)
        z = torch.einsum("bhsd->bhd", pk)
        num = torch.einsum("bhqd,bhde->bhqe", pq, kv)
        den = torch.einsum("bhqd,bhd->bhq", pq, z)[..., None] + 1e-6
        o = num / den
        return (lambda x, *d: x.permute(*d))(o, 0, 2, 1, 3).reshape(B, S, D) @ wo

    def _B_ref(x, w1, w2):
        h = torch.einsum("bsd,df->bsf", x, w1)
        zero = torch.zeros_like(h)
        h = torch.maximum(h, zero)
        return torch.einsum("bsf,fd->bsd", h, w2)

    x = A_x
    h = x + _A_ref(_layernorm(x, axis=-1), A_wqkv, A_wo)
    h2 = h + _B_ref(_layernorm(h, axis=-1), B_w1, B_w2)
    return h2
```

```python
import sys
from kgen import *

NAME = "sequential_preLN__linear_attn_block__dense_activation_relu__prompt"
FK, FW, FO, FH, FP = 0, 4096, 5120, 9216, 13312
ZERO_BYTES = 53248
KVP, OB, HB, WOT, WT, PB, PROF = 0x10000, 0x200000, 0x480000, 0x700000, 0x800000, 0x1300000, 0x3000000
WS_SIZE = 0x4000000
AUX = 147456
ST, CS, KVX = AUX + 12288, AUX + 13312, AUX + 13312
SPIN = 20000
WS, XS, QS, W1S, W2S, T2S, DS, OS = 4, 8, 12, 16, 20, 24, 28, 32
sWO = 36
sX, sI, sWV, sR, sP, sDL = 38, 39, 40, 41, 42, 43
sT0, sT1, sT2, sT3, sT4, sT5 = 44, 45, 46, 47, 48, 49
sXM1, sDK, sCNT, sV2 = 50, 51, 52, 53
sRL = 56
sDM = 72
sPE, sPO = 74, 75
sMK = 76
sC0, sC1, sC2, sC3 = 78, 79, 80, 81
sTS = 82
sBR, sBC = 84, 85
sA0, sA1, sA2, sA3 = 86, 87, 88, 89
ONE2 = 0x3F803F80
def f2u(x):
    import struct
    return struct.unpack("<I", struct.pack("<f", x))[0]

class G:
    def __init__(self, stop=None, prof=False):
        self.k = Kern(); self.stop = stop; self.prof = prof; self.nts = 0; self.tsn = []
    def ts(self, name):
        if not self.prof: return
        k = self.k
        k(f"s_memtime s[{sTS}:{sTS+1}]"); k("s_waitcnt lgkmcnt(0)"); k.lq = []
        k(f"v_writelane_b32 v255, s{sTS}, {self.nts}")
        self.tsn.append(name); self.nts += 1
    def mfma(self, d, a, b, c=None, k16=False):
        op = "v_mfma_f32_16x16x16_bf16" if k16 else "v_mfma_f32_16x16x32_bf16"
        cc = "0" if c is None else c
        self.k(f"{op} {d}, {a}, {b}, {cc}")
    def setexec(self, m):
        k = self.k
        if m == -1: k("s_mov_b64 exec, -1")
        else:
            k(f"s_mov_b32 exec_lo, {hex(m & 0xffffffff)}"); k(f"s_mov_b32 exec_hi, {hex(m >> 32)}")
    def poll(self, vaddr, soff, vtmp, n=1, srd=WS):
        k = self.k; L = k.label("poll"); D = k.label("pdone")
        k(f"s_mov_b32 s{sCNT}, 0"); k(f"{L}:")
        sfx = {1: "dword", 4: "dwordx4"}[n]
        k(f"buffer_load_{sfx} {vr(vtmp, n)}, v{vaddr}, {sr(srd,4)}, {soff} offen sc1")
        k("s_waitcnt vmcnt(0)"); k.vq = []
        if n == 4:
            k(f"v_and_b32 v{vtmp}, v{vtmp}, v{vtmp+1}"); k(f"v_and_b32 v{vtmp+2}, v{vtmp+2}, v{vtmp+3}")
            k(f"v_and_b32 v{vtmp}, v{vtmp}, v{vtmp+2}")
        k(f"v_cmp_ne_u32 vcc, 1, v{vtmp}")
        k(f"s_cbranch_vccz {D}")
        k(f"s_add_u32 s{sCNT}, s{sCNT}, 1"); k(f"s_cmp_lt_u32 s{sCNT}, {SPIN}"); k(f"s_cbranch_scc1 {L}")
        k(f"{D}:")
    def flag(self, soff, vone, vzero, srd=WS):
        k = self.k
        k("s_mov_b64 exec, 1")
        k.vm(f"buffer_store_dword v{vone}, v{vzero}, {sr(srd,4)}, {soff} offen sc1")
        k("s_mov_b64 exec, -1")

    def prologue(self):
        k = self.k
        k(f"""
        s_cmp_ge_u32 s2, 256
        s_cbranch_scc1 L_end
        s_load_dwordx2 s[{XS}:{XS+1}], s[0:1], 0
        s_load_dwordx2 s[{QS}:{QS+1}], s[0:1], 8
        s_load_dwordx2 s[{WS}:{WS+1}], s[0:1], 64
        s_load_dwordx2 s[{sWO}:{sWO+1}], s[0:1], 16
        s_load_dwordx2 s[{W1S}:{W1S+1}], s[0:1], 32
        s_load_dwordx2 s[{W2S}:{W2S+1}], s[0:1], 40
        s_load_dwordx2 s[{OS}:{OS+1}], s[0:1], 48
        s_load_dwordx2 s[{DS}:{DS+1}], s[0:1], 56
        v_lshrrev_b32 v1, 6, v0
        v_lshlrev_b32 v15, 4, v0
        v_and_b32 v0, 63, v0
        v_readfirstlane_b32 s{sWV}, v1
        v_lshlrev_b32 v1, 4, v0
        v_and_b32 v2, 15, v0
        v_lshrrev_b32 v3, 4, v0
        s_and_b32 s{sX}, s2, 7
        s_lshr_b32 s{sI}, s2, 3
        s_and_b32 s{sT0}, s{sX}, 1
        s_lshl_b32 s{sT0}, s{sT0}, 3
        s_and_b32 s{sT1}, s{sI}, 7
        s_add_u32 s{sR}, s{sT0}, s{sT1}
        s_lshr_b32 s{sT0}, s{sX}, 1
        s_lshl_b32 s{sT0}, s{sT0}, 2
        s_lshr_b32 s{sT1}, s{sI}, 3
        s_add_u32 s{sP}, s{sT0}, s{sT1}
        s_and_b32 s{sDL}, s{sP}, 1
        s_lshl_b32 s{sDL}, s{sDL}, 3
        """)
        for srd, size in ((WS, WS_SIZE), (XS, 2359296), (QS, 1990656), (W1S, 5308416), (W2S, 5308416), (DS, 256), (OS, 2359296)):
            k(f"s_mov_b32 s{srd+2}, {size}"); k(f"s_mov_b32 s{srd+3}, 0x20000")
        k(f"""
        s_lshl_b32 s{sT0}, s{sR}, 7
        s_lshl_b32 s{sT1}, s{sWV}, 5
        s_add_u32 s{sT0}, s{sT0}, s{sT1}
        v_add_u32 v12, s{sT0}, v2
        s_movk_i32 s{sT1}, 1152
        v_mul_u32_u24 v12, s{sT1}, v12
        v_lshl_add_u32 v12, v3, 4, v12
        s_movk_i32 s{sXM1}, 18432
        """)
        k(f"""
        s_and_b32 s{sT0}, s{sWV}, 1
        s_lshl_b32 s{sT0}, s{sT0}, 3
        v_lshl_add_u32 v16, v3, 1, s{sT0}
        v_sub_u32 v16, v2, v16
        v_and_b32 v16, 15, v16
        v_cmp_ne_u32 s[{sDM}:{sDM+1}], 15, v16
        v_mul_u32_u24 v17, 52, v16
        v_lshrrev_b32 v17, 8, v17
        s_movk_i32 s{sT1}, 1072
        v_mul_u32_u24 v17, s{sT1}, v17
        v_lshl_add_u32 v17, v16, 4, v17
        s_movk_i32 s{sT1}, 3456
        v_mul_u32_u24 v13, s{sT1}, v3
        s_mul_i32 s{sT0}, s{sWV}, 27648
        s_mul_i32 s{sT1}, s{sP}, 72
        s_add_u32 s{sT0}, s{sT0}, s{sT1}
        s_sub_u32 s{sT0}, s{sT0}, s{sDL}
        v_add3_u32 v13, v13, v17, s{sT0}
        s_lshl_b32 s{sDK}, s{sWV}, 11
        s_waitcnt lgkmcnt(0)
        """)
        if self.prof: k("v_mov_b32 v255, 0")
        self.ts("start")
        L = k.label("nz")
        k(f"s_cmp_lg_u32 s2, 0"); k(f"s_cbranch_scc1 {L}")
        for r in range(4): k(f"v_mov_b32 v{20+r}, 0")
        for n in range(ZERO_BYTES // 4096):
            k(f"s_movk_i32 s{sT0}, {n*4096}" if n * 4096 < 32768 else f"s_mov_b32 s{sT0}, {n*4096}")
            k(f"buffer_store_dwordx4 v[20:23], v15, {sr(WS,4)}, s{sT0} offen sc1")
        k(f"{L}:")

    def stage(self, s):
        k = self.k
        for kk in (2*s, 2*s+1):
            for mt in range(2):
                so = "0" if mt == 0 else f"s{sXM1}"
                k.vm(f"buffer_load_dwordx4 {ar((kk*2+mt)*4,4)}, v12, {sr(XS,4)}, {so} offen offset:{kk*64}", ("st", s))
        k(f"s_mov_b64 exec, s[{sDM}:{sDM+1}]")
        for kk in (2*s, 2*s+1):
            k(f"s_add_u32 m0, s{sDK}, {kk*8192}")
            k(f"s_mov_b32 s{sT0}, {kk*110592}"); k(f"s_mov_b32 s{sT1}, {kk*110592+13824-1024}")
            k.vm(f"buffer_load_dwordx4 v13, {sr(QS,4)}, s{sT0} offen lds", ("st", s))
            k.vm(f"buffer_load_dwordx4 v13, {sr(QS,4)}, s{sT1} offen offset:1024 lds", ("st", s))
        k("s_mov_b64 exec, -1")

    def setup_a(self):
        k = self.k
        for r in range(4): k(f"v_mov_b32 v{124+r}, {hex(ONE2)}")
        k(f"""
        v_lshrrev_b32 v16, 4, v15
        v_and_b32 v17, 3, v16
        v_lshrrev_b32 v18, 1, v16
        v_and_b32 v18, 4, v18
        v_or_b32 v17, v17, v18
        v_lshlrev_b32 v17, 1, v17
        v_add_u32 v17, 15, v17
        v_and_b32 v17, 15, v17
        v_lshlrev_b32 v17, 4, v17
        v_lshl_add_u32 v17, v16, 8, v17
        """)
        k.ds("ds_write_b128 v17, v[124:127]")
        k("v_add_u32 v17, 0x10000, v17")
        k.ds("ds_write_b128 v17, v[124:127]")
        L = k.label("o3")
        k(f"s_cmp_lg_u32 s{sWV}, 0"); k(f"s_cbranch_scc1 {L}")
        k("v_add_u32 v17, 0x10000, v17"); k("ds_write_b128 v17, v[124:127]"); k(f"{L}:")
        k(f"""
        v_lshrrev_b32 v16, 2, v2
        v_and_b32 v17, 3, v0
        v_and_b32 v18, 1, v3
        v_lshl_add_u32 v18, v18, 2, v16
        v_lshlrev_b32 v18, 5, v18
        v_add_u32 v18, s{sDL}, v18
        v_lshl_add_u32 v19, v3, 3, v16
        v_lshlrev_b32 v19, 8, v19
        v_lshl_add_u32 v20, v17, 3, v18
        s_movk_i32 s{sT0}, 255
        """)
        for reg, off in ((4, 80), (5, 120), (6, 160), (7, 200), (9, 0), (10, 40)):
            k(f"v_add_u32 v21, {off}, v20"); k(f"v_and_or_b32 v{reg}, v21, s{sT0}, v19")
        k(f"v_add_u32 v21, 32, v18"); k(f"v_and_or_b32 v11, v21, s{sT0}, v19")
        k(f"""
        v_mov_b32 v21, 112
        v_mov_b32 v22, 192
        v_cmp_eq_u32 vcc, 3, v17
        v_cndmask_b32 v21, v21, v22, vcc
        s_sub_u32 s{sT1}, 248, s{sDL}
        v_mov_b32 v22, s{sT1}
        v_cmp_eq_u32 vcc, 0, v17
        v_cndmask_b32 v21, v21, v22, vcc
        v_add_u32 v21, v21, v18
        v_and_or_b32 v8, v21, s{sT0}, v19
        """)
        for reg, bits, one in ((248, 0x111, 1), (249, 0x3000, 0), (250, 0x222, 1), (251, 0xC000, 0),
                               (252, 0x30, 0), (253, 0xC00, 0), (254, 0x300, 0), (131, 0xC0, 0)):
            k(f"s_mov_b32 s{sT1}, {hex(bits)}"); k(f"v_bfe_i32 v{reg}, s{sT1}, v2, 1")
            if one: k(f"v_and_b32 v{reg}, {hex(ONE2)}, v{reg}")
        k(f"s_mov_b32 s{sPE}, 0x05040100"); k(f"s_mov_b32 s{sPO}, 0x07060302")
        self.relay_params()

    def lane_off(self, t, c1, c2):
        k = self.k
        k(f"""
        v_and_b32 v16, 1, v3
        v_lshrrev_b32 v17, 1, v3
        v_mul_lo_u32 v16, v16, s{c1}
        v_mul_lo_u32 v17, v17, s{c2}
        v_lshlrev_b32 v18, 3, v2
        v_add3_u32 v{128+t}, v16, v17, v18
        """)
    def p_w1(self, t, n):
        k = self.k; b = sRL + 5*t; A, B, C, D = sT0, sT1, sT2, sT3
        k(f"""
        s_mul_i32 s{A}, s{n}, 205
        s_lshr_b32 s{A}, s{A}, 10
        s_mul_i32 s{B}, s{A}, 5
        s_sub_u32 s{B}, s{n}, s{B}
        s_cmp_eq_u32 s{B}, 4
        s_cselect_b32 s{B}, 8, s{B}
        s_sub_u32 s{C}, s{n}, 90
        s_and_b32 s{D}, s{C}, 3
        s_add_u32 s{D}, s{D}, 4
        s_lshr_b32 s{C}, s{C}, 2
        s_cmp_lt_u32 s{n}, 90
        s_cselect_b32 s{A}, s{A}, s{C}
        s_cselect_b32 s{B}, s{B}, s{D}
        s_lshr_b32 s{C}, s{A}, 1
        s_lshl_b32 s{C}, s{C}, 6
        s_and_b32 s{D}, s{A}, 1
        s_lshl_b32 s{D}, s{D}, 1
        s_add_u32 s{C}, s{C}, s{D}
        s_mul_i32 s{C}, s{C}, 9216
        s_lshl_b32 s{B}, s{B}, 7
        s_add_u32 s{C}, s{C}, s{B}
        s_mul_i32 s{D}, s{sX}, 1152
        s_add_u32 s{b}, s{C}, s{D}
        s_mov_b32 s{b+1}, {4*9216}
        s_mov_b32 s{b+2}, {16*9216 - 12*9216}
        s_mul_i32 s{C}, s{sX}, {4*324*1024}
        s_lshl_b32 s{D}, s{n}, 10
        s_add_u32 s{C}, s{C}, s{D}
        s_add_u32 s{b+3}, s{C}, {WT}
        s_mov_b32 s{b+4}, {324*1024}
        s_mov_b32 s{A}, {32*9216}
        s_mov_b32 s{B}, 9216
        """)
    def p_w2(self, t, n):
        k = self.k; b = sRL + 5*t; A, B, C, D, E = sT0, sT1, sT2, sT3, sT4
        k(f"""
        s_cmp_ge_u32 s{n}, 54
        s_cselect_b32 s{A}, 54, 0
        s_cselect_b32 s{B}, 3, 0
        s_sub_u32 s{A}, s{n}, s{A}
        s_mul_i32 s{C}, s{A}, 171
        s_lshr_b32 s{C}, s{C}, 9
        s_mul_i32 s{D}, s{C}, 3
        s_sub_u32 s{A}, s{A}, s{D}
        s_add_u32 s{B}, s{B}, s{A}
        s_sub_u32 s{A}, s{n}, 108
        s_and_b32 s{D}, s{A}, 1
        s_add_u32 s{D}, s{D}, 6
        s_lshr_b32 s{A}, s{A}, 1
        s_cmp_ge_u32 s{n}, 108
        s_cselect_b32 s{C}, s{A}, s{C}
        s_cselect_b32 s{B}, s{D}, s{B}
        s_sub_u32 s{A}, s{n}, 144
        s_cmp_ge_u32 s{n}, 144
        s_cselect_b32 s{C}, s{A}, s{C}
        s_cselect_b32 s{B}, 8, s{B}
        s_add_u32 s{A}, s{sX}, s{B}
        s_and_b32 s{A}, s{A}, 7
        s_cmp_eq_u32 s{B}, 0
        s_cselect_b32 s{A}, 8, s{A}
        s_lshl_b32 s{A}, s{A}, 7
        s_add_u32 s{B}, s{C}, 8
        s_sub_u32 s{D}, s{C}, 2
        s_cmp_lt_u32 s{C}, 10
        s_cselect_b32 s{B}, s{B}, s{D}
        s_cmp_lt_u32 s{C}, 8
        s_cselect_b32 s{C}, s{C}, s{B}
        s_lshr_b32 s{B}, s{C}, 2
        s_lshl_b32 s{B}, s{B}, 7
        s_and_b32 s{D}, s{C}, 3
        s_add_u32 s{B}, s{B}, s{D}
        s_lshl_b32 s{D}, s{C}, 1
        s_add_u32 s{D}, s{D}, 480
        s_mov_b32 s{E}, {1152 - 12*1152 + (1 << 32)}
        s_cmp_lt_u32 s{C}, 16
        s_cselect_b32 s{B}, s{B}, s{D}
        s_cselect_b32 s{b+2}, {64*1152 - 12*1152}, s{E}
        s_mul_i32 s{D}, s{sX}, 576
        s_add_u32 s{B}, s{B}, s{D}
        s_mul_i32 s{B}, s{B}, 1152
        s_add_u32 s{b}, s{B}, s{A}
        s_mov_b32 s{b+1}, {4*1152}
        s_mul_i32 s{C}, s{sX}, {4*324*1024}
        s_lshl_b32 s{D}, s{n}, 10
        s_add_u32 s{C}, s{C}, s{D}
        s_add_u32 s{b+3}, s{C}, {WT + 162*1024}
        s_mov_b32 s{b+4}, {324*1024}
        s_mov_b32 s{A}, {16*1152}
        s_mov_b32 s{B}, {32*1152}
        """)
    def p_wo(self, t, n):
        k = self.k; b = sRL + 5*t; A, B, C, D, E = sT0, sT1, sT2, sT3, sT4
        k(f"""
        s_mul_i32 s{A}, s{n}, 57
        s_lshr_b32 s{A}, s{A}, 10
        s_mul_i32 s{B}, s{A}, 18
        s_sub_u32 s{B}, s{n}, s{B}
        s_mul_i32 s{C}, s{A}, {4*18*1024}
        s_lshl_b32 s{D}, s{B}, 10
        s_add_u32 s{C}, s{C}, s{D}
        s_add_u32 s{b+3}, s{C}, {WOT}
        s_mov_b32 s{b+4}, {18*1024}
        s_mul_i32 s{C}, s{B}, 36
        s_mul_i32 s{D}, s{B}, 288
        s_sub_u32 s{D}, s{D}, {288*16 - 16}
        s_mov_b32 s{E}, {33*1152}
        s_cmp_lt_u32 s{B}, 16
        s_cselect_b32 s{C}, s{C}, s{D}
        s_cselect_b32 s{b+2}, {17*1152}, s{E}
        s_mov_b32 s{E}, {72*1152}
        s_cselect_b32 s{E}, {4*1152}, s{E}
        s_mul_i32 s{C}, s{C}, 1152
        s_lshl_b32 s{A}, s{A}, 7
        s_add_u32 s{b}, s{C}, s{A}
        s_mov_b32 s{b+1}, 1152
        s_mov_b32 s{A}, s{E}
        s_lshl_b32 s{B}, s{E}, 1
        """)
    def relay_params(self):
        k = self.k; n = sT5
        k(f"s_lshl_b32 s{n}, s{sI}, 2"); k(f"s_add_u32 s{n}, s{n}, s{sWV}")
        self.p_w1(0, n); self.lane_off(0, sT0, sT1)
        self.p_w2(1, n); self.lane_off(1, sT0, sT1)
        L2, L3, LD = k.label("t2b"), k.label("t2c"), k.label("t2d")
        k(f"""
        s_cmp_lt_u32 s{n}, 68
        s_cselect_b64 s[{T2S}:{T2S+1}], s[{W2S}:{W2S+1}], s[{sWO}:{sWO+1}]
        s_mov_b32 s{T2S+2}, 663552
        s_cselect_b32 s{T2S+2}, 5308416, s{T2S+2}
        s_cmp_lt_u32 s{n}, 34
        s_cselect_b64 s[{T2S}:{T2S+1}], s[{W1S}:{W1S+1}], s[{T2S}:{T2S+1}]
        s_mov_b32 s{T2S+3}, 0x20000
        s_mov_b32 s{sV2}, 1
        s_cbranch_scc0 {L2}
        s_add_u32 s{n}, s{n}, 128
        """)
        self.p_w1(2, n); k(f"s_branch {LD}"); k(f"{L2}:")
        k(f"s_cmp_lt_u32 s{n}, 68"); k(f"s_cbranch_scc0 {L3}"); k(f"s_add_u32 s{n}, s{n}, 94")
        self.p_w2(2, n); k(f"s_branch {LD}"); k(f"{L3}:")
        k(f"""
        s_sub_u32 s{n}, s{n}, 68
        s_lshl_b32 s{n}, s{n}, 3
        s_add_u32 s{n}, s{n}, s{sX}
        s_cmp_lt_u32 s{n}, 162
        s_cselect_b32 s{sV2}, 1, 0
        s_cselect_b32 s{n}, s{n}, 0
        """)
        self.p_wo(2, n); k(f"{LD}:")
        self.lane_off(2, sT0, sT1)
    def skip2(self, t):
        if t < 2: return None
        L = self.k.label("sk2"); self.k(f"s_cmp_eq_u32 s{sV2}, 0"); self.k(f"s_cbranch_scc1 {L}"); return L
    def relay_loads(self, t):
        k = self.k; b = sRL + 5*t; srd = (W1S, W2S, T2S)[t]; L = self.skip2(t)
        k(f"s_mov_b32 s{sT2}, s{b}")
        for s in range(8):
            k.vm(f"buffer_load_dwordx2 {vr(200+16*t+2*s,2)}, v{128+t}, {sr(srd,4)}, s{sT2} offen", ("rl", t), count=(t < 2))
            if s < 7: k(f"s_add_u32 s{sT2}, s{sT2}, s{b+2 if s == 3 else b+1}")
        if L: k(f"{L}:")
    def relay_stores(self, t, tmp):
        k = self.k; b = sRL + 5*t; L = self.skip2(t)
        k(f"s_mov_b32 s{sT2}, s{b+3}")
        for e in range(4):
            o = tmp + 4*e
            for d in range(4):
                lo = 200+16*t+2*(2*d)+(e >> 1); hi = lo + 2
                k(f"v_perm_b32 v{o+d}, v{hi}, v{lo}, s{sPO if e & 1 else sPE}")
            k.vm(f"buffer_store_dwordx4 {vr(o,4)}, v1, {sr(WS,4)}, s{sT2} offen sc1", ("rs", t), count=(t < 2))
            if e < 3: k(f"s_add_u32 s{sT2}, s{sT2}, s{b+4}")
        if L: k(f"{L}:")
    def relay_warm(self, t, tmp):
        k = self.k; b = sRL + 5*t; L = self.skip2(t)
        k(f"s_mov_b32 s{sT2}, s{b+3}")
        for e in range(4):
            k.vm(f"buffer_load_dwordx4 {vr(tmp,4)}, v1, {sr(WS,4)}, s{sT2} offen sc1", ("rw", t), count=(t < 2))
            if e < 3: k(f"s_add_u32 s{sT2}, s{sT2}, s{b+4}")
        if L: k(f"{L}:")

    def tr_reads(self, kk, addrs, buf):
        k = self.k; out = []
        for T, a in enumerate(addrs):
            for h in range(2):
                off = (kk & 7) * 8192 + 1024 * h
                out.append(lambda T=T, a=a, h=h, off=off: k.ds(
                    f"ds_read_b64_tr_b16 {vr(buf+4*T+2*h,2)}, v{a} offset:{off}", ("b", kk)))
        return out
    def bump(self, addrs):
        for a in addrs: self.k(f"v_add_u32 v{a}, 0x10000, v{a}")

    def phase_a(self):
        k = self.k
        for s in range(7): self.stage(s)
        self.setup_a()
        KA = [4, 5, 6, 7, 8]
        k.wait(vm=("st", 0), ds="all"); k("s_barrier")
        L = k.label("ng")
        k("s_cmp_lg_u32 s2, 0"); k(f"s_cbranch_scc1 {L}")
        k("v_mov_b32 v16, 1"); k("v_mov_b32 v17, 0"); k("s_mov_b64 exec, 1")
        k(f"buffer_store_dword v16, v17, {sr(DS,4)}, 0 offen sc1"); k("s_mov_b64 exec, -1"); k(f"{L}:")
        self.ts("A.first")
        for f in self.tr_reads(0, KA, 64): f()
        for kk in range(18):
            buf = 64 + 20 * (kk & 1)
            fill = []
            if kk + 1 < 18:
                if (kk + 1) % 2 == 0:
                    fill.append(lambda s=(kk+1)//2: (k.wait(vm=("st", s)), k("s_barrier")))
                if (kk + 1) % 8 == 0: fill.append(lambda: self.bump(KA))
                fill += self.tr_reads(kk + 1, KA, 64 + 20 * ((kk + 1) & 1))
            if kk == 1: fill.append(lambda: self.stage(7))
            if kk == 3: fill.append(lambda: self.stage(8))
            if kk in (5, 7, 9): fill.append(lambda t=(kk-5)//2: self.relay_loads(t))
            if kk == 11:
                fill.append(lambda: (k("v_mov_b32 v14, 0"), k.vm(f"buffer_load_dword v14, v14, {sr(DS,4)}, 0 offen sc1", "gate")))
            k.wait(ds=[("b", kk)])
            ms = []
            for T in range(5):
                for mt in range(2):
                    d = vr(16 + 8*T + 4*mt, 4)
                    ms.append((d, ar((kk*2+mt)*4, 4), vr(buf + 4*T, 4), d if kk else None))
            for mt in range(2):
                d = vr(56 + 4*mt, 4); xa = ar((kk*2+mt)*4, 4)
                ms.append((d, xa, xa, d if kk else None))
            for m in ms:
                self.mfma(*m)
                if fill: fill.pop(0)()
            L = k.label("cs")
            k(f"s_cmp_lg_u32 s{sWV}, {kk & 3}"); k(f"s_cbranch_scc1 {L}")
            for T in range(5):
                d = vr(104 + 4*T, 4); self.mfma(d, "v[124:127]", vr(buf + 4*T, 4), d if kk >= 4 else None)
            k(f"{L}:")
            while fill: fill.pop(0)()
        self.ts("A.kloop")
        k(f"""
        s_lshl_b32 s{sT0}, s{sWV}, 8
        s_add_u32 s{sT0}, s{sT0}, {ST}
        v_lshl_add_u32 v132, v3, 4, s{sT0}
        v_lshl_add_u32 v133, v2, 2, s{sT0}
        s_lshl_b32 s{sT0}, s{sWV}, 2
        s_add_u32 s{sT0}, s{sT0}, {CS}
        v_lshl_add_u32 v134, v2, 4, s{sT0}
        v_lshlrev_b32 v135, 4, v2
        v_add_u32 v135, {CS}, v135
        """)
        self.setexec(0x0001000100010001)
        for mt in range(2): k.ds(f"ds_write_b128 v132, {vr(48+4*mt,4)} offset:{128*mt}")
        for r in range(4):
            self.setexec(0x1000010000100001 << r)
            for mt in range(2): k.ds(f"ds_write_b32 v133, v{56+4*mt+r} offset:{64+128*mt}")
        self.setexec(0xffff)
        for T in range(5): k.ds(f"ds_write_b32 v134, v{104+4*T} offset:{256*T}")
        self.setexec(-1)
        Lg, Ld = k.label("gate"), k.label("gated")
        k.wait(vm="gate")
        k(f"v_cmp_ne_u32 vcc, 1, v14"); k(f"s_cbranch_vccz {Ld}")
        k("v_mov_b32 v15, 0"); sv = list(k.vq); self.poll(15, "0", 14, srd=DS); k.vq = sv
        k(f"{Ld}:")
        k.wait(ds="all"); k("s_barrier")
        for mt in range(2):
            k.ds(f"ds_read_b128 {vr(136+8*mt,4)}, v132 offset:{128*mt}", ("s", mt))
            k.ds(f"ds_read_b128 {vr(140+8*mt,4)}, v132 offset:{128*mt+64}", ("s", mt))
        for T in range(5): k.ds(f"ds_read_b128 {vr(104+4*T,4)}, v135 offset:{256*T}", ("c", T))
        k(f"s_mov_b32 s{sC0}, {hex(f2u(-1/576))}"); k(f"s_mov_b32 s{sC1}, {hex(f2u(1/576))}")
        k(f"s_mov_b32 s{sC2}, {hex(f2u(1.4426950408889634))}"); k(f"s_mov_b32 s{sC3}, {hex(f2u(1e-6))}")
        k(f"v_mov_b32 v15, {hex(f2u(1e-5))}")
        NM = lambda mt, r: 136 + 8*mt + r
        RS = lambda mt, r: 140 + 8*mt + r
        RLg = lambda mt, r: 152 + 4*mt + r
        for mt in range(2):
            k.wait(ds=[("s", mt)])
            self.stats([(NM(mt, r), RS(mt, r), RLg(mt, r)) for r in range(4)])
        for T in range(5):
            k.wait(ds=[("c", T)]); c = 104 + 4*T
            k(f"v_add_f32 v{c}, v{c}, v{c+1}"); k(f"v_add_f32 v{c+2}, v{c+2}, v{c+3}"); k(f"v_add_f32 v{c}, v{c}, v{c+2}")
        k(f"s_mov_b32 s{sMK}, 0xf000f000"); k(f"s_mov_b32 s{sMK+1}, 0xf000f000")
        PK = lambda T: 160 + 4*T
        for T in (0, 2, 1, 3, 4):
            for mt in range(2):
                el = [(16 + 8*T + 4*mt + r, NM(mt, r), 104 + 4*T, RS(mt, r), RLg(mt, r)) for r in range(4)]
                self.affine(el, phi=T in (0, 1, 4), keep=(T == 4), tmp=64)
                for h in range(2):
                    a = 16 + 8*T + 4*mt + 2*h
                    k(f"v_cvt_pk_bf16_f32 v{PK(T)+2*mt+h}, v{a}, v{a+1}")
            if T == 2: self.mfma("v[16:19]", vr(PK(0), 4), vr(PK(2), 4))
            if T == 3: self.mfma("v[20:23]", vr(PK(1), 4), vr(PK(3), 4))
        X = PK(4); BA, BB, AC, AD, AEA, AEB = 72, 76, 80, 84, 88, 92
        for d in range(4): k(f"v_and_or_b32 v{BA+d}, v{X+d}, v249, v248")
        for d in range(4): k(f"v_and_b32 v{AC+d}, v{X+d}, v252")
        self.mfma("v[24:27]", vr(PK(0), 4), vr(BA, 4))
        for d in range(4): k(f"v_and_or_b32 v{BB+d}, v{X+d}, v251, v250")
        self.mfma("v[28:31]", vr(AC, 4), vr(PK(2), 4))
        for d in range(4): k(f"v_and_b32 v{AD+d}, v{X+d}, v253")
        self.mfma("v[24:27]", vr(PK(1), 4), vr(BB, 4), "v[24:27]")
        for d in range(4): k(f"v_and_b32 v{AEA+d}, v{X+d}, v254")
        self.mfma("v[28:31]", vr(AD, 4), vr(PK(3), 4), "v[28:31]")
        for d in range(4): k(f"v_and_b32 v{AEB+d}, v{X+d}, v131")
        self.mfma("v[28:31]", vr(AEA, 4), vr(BA, 4), "v[28:31]")
        self.mfma("v[28:31]", vr(AEB, 4), vr(BB, 4), "v[28:31]")
        self.ts("A.epi")
        k(f"v_add_u32 v134, {AUX}, v1")
        LD = k.label("kvd"); labs = [k.label("kv") for _ in range(4)]
        for w in range(4):
            k(f"{labs[w]}:")
            if w < 3: k(f"s_cmp_lg_u32 s{sWV}, {w}"); k(f"s_cbranch_scc1 {labs[w+1]}")
            for T in range(4):
                if T != w: k(f"ds_write_b128 v134, {vr(16+4*T,4)} offset:{T*3072 + ((w-T-1) & 3)*1024}")
            for r in range(4): k(f"v_mov_b32 v{32+r}, v{16+4*w+r}")
            if w < 3: k(f"s_branch {LD}")
        k(f"{LD}:")
        k(f"s_mul_i32 s{sT0}, s{sWV}, 3072"); k(f"v_add_u32 v134, s{sT0}, v134")
        k("s_waitcnt lgkmcnt(0)"); k.lq = []; k("s_barrier")
        for q in range(3): k.ds(f"ds_read_b128 {vr(16+4*q,4)}, v134 offset:{q*1024}", ("r", q))
        k(f"""
        s_lshl_b32 s{sT0}, s{sP}, 4
        s_add_u32 s{sT0}, s{sT0}, s{sR}
        s_lshl_b32 s{sT0}, s{sT0}, 2
        s_add_u32 s{sT0}, s{sT0}, s{sWV}
        s_lshl_b32 s{sT0}, s{sT0}, 10
        s_add_u32 s{sT0}, s{sT0}, {KVP}
        """)
        for q in range(3):
            k.wait(ds=[("r", q)])
            for r in range(4): k(f"v_add_f32 v{32+r}, v{32+r}, v{16+4*q+r}")
        k.vm(f"buffer_store_dwordx4 v[32:35], v1, {sr(WS,4)}, s{sT0} offen sc1", "kvp")
        self.ts("A.kvst")

    def stats(self, L):
        k = self.k
        for a, b, c in L: k(f"v_mul_f32 v{a}, s{sC0}, v{a}")
        for a, b, c in L: k(f"v_fma_f32 v{b}, v{b}, s{sC1}, v15")
        for a, b, c in L: k(f"v_fma_f32 v{b}, -v{a}, v{a}, v{b}")
        for a, b, c in L: k(f"v_max_f32 v{b}, v{b}, v15")
        for a, b, c in L: k(f"v_rsq_f32 v{b}, v{b}")
        for a, b, c in L:
            if c is not None: k(f"v_mul_f32 v{c}, s{sC2}, v{b}")
    def affine(self, el, phi, keep, tmp):
        k = self.k
        for a, nm, cs, rs, rl in el: k(f"v_fma_f32 v{a}, v{nm}, v{cs}, v{a}")
        if not phi:
            for a, nm, cs, rs, rl in el: k(f"v_mul_f32 v{a}, v{a}, v{rs}")
            return
        for n, (a, nm, cs, rs, rl) in enumerate(el): k(f"v_mul_f32 v{tmp+n}, v{a}, v{rl}")
        if keep:
            for n, (a, nm, cs, rs, rl) in enumerate(el): k(f"v_mul_f32 v{tmp+4+n}, v{a}, v{rs}")
        for n, (a, nm, cs, rs, rl) in enumerate(el): k(f"v_exp_f32 v{tmp+n}, v{tmp+n} clamp")
        for a, nm, cs, rs, rl in el: k(f"v_fma_f32 v{a}, v{a}, v{rs}, s{sC3}")
        for a, nm, cs, rs, rl in el: k(f"v_max_f32 v{a}, s{sC3}, v{a}")
        for n, (a, nm, cs, rs, rl) in enumerate(el): k(f"v_add_f32 v{a}, v{a}, v{tmp+n}")
        if keep:
            for n, (a, nm, cs, rs, rl) in enumerate(el):
                k(f"v_cndmask_b32 v{a}, v{a}, v{tmp+4+n}, s[{sMK}:{sMK+1}]")

    def finish(self):
        k = self.k
        if self.prof:
            self.ts("end")
            k(f"""
            s_lshl_b32 s{sT0}, s2, 2
            s_add_u32 s{sT0}, s{sT0}, s{sWV}
            s_lshl_b32 s{sT0}, s{sT0}, 8
            s_add_u32 s{sT0}, s{sT0}, {PROF}
            v_lshlrev_b32 v4, 2, v0
            buffer_store_dword v255, v4, {sr(WS,4)}, s{sT0} offen
            """)
        k("s_waitcnt vmcnt(0)"); k("L_end:"); k("s_endpgm")


def build(stop=None, prof=False):
    from gen2 import hop1, phase_b, phase_f
    g = G(stop, prof)
    g.prologue(); g.phase_a()
    for name, fn in (("q", hop1), ("b", phase_b), ("f", phase_f)):
        if stop == "pre" + name: break
        fn(g)
    g.finish()
    hdr = "".join(open("cdna_kernels/" + NAME + ".s.ref").readlines()[:12]) if True else ""
    txt = g.k.text(hdr, NAME + "_kernel", 256, 256, 102, (256, 1, 1), (256, 1, 1), 163840)
    return txt, g

if __name__ == "__main__":
    out = sys.argv[1]; stop = sys.argv[2] if len(sys.argv) > 2 and sys.argv[2] != "-" else None
    prof = len(sys.argv) > 3
    txt, g = build(stop, prof)
    open(out, "w").write(txt)
    import json; json.dump(g.tsn, open(out + ".ts.json", "w"))
    print("lines", txt.count("\n"), "bytes", len(txt), "nop states", g.k.nops)
```

```python
from kgen import *
import gen as _g
from gen import *

NP1, NP2A = 24, 16
RING = 60
XR = 144

def ring_load(g, seq):
    k = g.k
    if seq % 4 == 0:
        k(f"s_add_u32 s{sA0}, s{sA1}, {seq*1024}")
    k.vm(f"buffer_load_dwordx4 {ar(4*(seq % RING),4)}, v1, {sr(WS,4)}, s{sA0} offen offset:{(seq % 4)*1024} sc1", ("w", seq))

def hop1(g):
    k = g.k
    QA = [9, 10, 11]
    for f in g.tr_reads(0, QA, 64): f()
    for t in range(3):
        k.wait(vm=("rl", t)); g.relay_stores(t, 184)
    k(f"""
    s_lshr_b32 s{sT0}, s{sI}, 3
    s_lshl_b32 s{sBR}, s{sX}, 2
    s_add_u32 s{sBR}, s{sBR}, s{sT0}
    s_and_b32 s{sBC}, s{sI}, 7
    s_lshl_b32 s{sT0}, s{sBR}, 6
    v_add_u32 v134, s{sT0}, v2
    s_movk_i32 s{sT1}, 1152
    v_mul_u32_u24 v134, s{sT1}, v134
    v_lshl_add_u32 v134, v3, 4, v134
    s_lshl_b32 s{sT0}, s{sBC}, 7
    v_mov_b32 v14, 1
    v_mov_b32 v6, 0
    """)
    for mt in range(4):
        for h in range(2):
            k.vm(f"buffer_load_dwordx4 {ar(XR+8*mt+4*h,4)}, v134, {sr(XS,4)}, s{sT0} offen offset:{64*h}", "xr")
        if mt < 3: k(f"s_add_u32 s{sT0}, s{sT0}, 18432")
    k(f"s_lshr_b32 s{sT0}, s{sBC}, 1"); k(f"s_mul_i32 s{sT0}, s{sT0}, 18432")
    for h in range(2):
        k.vm(f"buffer_load_dwordx4 {ar(XR+32+4*h,4)}, v134, {sr(XS,4)}, s{sT0} offen offset:{1024+64*h}", "xr")
    k(f"""
    s_lshl_b32 s{sT3}, s{sP}, 8
    s_lshl_b32 s{sT0}, s{sWV}, 6
    s_add_u32 s{sT3}, s{sT3}, s{sT0}
    s_lshl_b32 s{sT0}, s{sR}, 2
    s_add_u32 s{sT4}, s{sT3}, s{sT0}
    """)
    g.ts("Q.start")
    for kk in range(18):
        buf = 64 + 12 * (kk & 1); fill = []
        if kk + 1 < 18:
            if (kk + 1) % 8 == 0: fill.append(lambda: g.bump(QA))
            fill += g.tr_reads(kk + 1, QA, 64 + 12 * ((kk + 1) & 1))
        else:
            for mt in range(2):
                fill.append(lambda mt=mt: k.ds(f"ds_read_b32 v{136+mt}, v133 offset:{128*mt}", "qs"))
                fill.append(lambda mt=mt: k.ds(f"ds_read_b32 v{138+mt}, v133 offset:{128*mt+64}", "qs"))
        if kk == 3: fill.append(lambda: (k.wait(vm="kvp"), g.flag(f"s{sT4}", 14, 6)))
        k.wait(ds=[("b", kk)])
        ms = []
        for T in range(3):
            for mt in range(2):
                d = vr(16 + 8*T + 4*mt, 4)
                ms.append((d, vr(buf + 4*T, 4), ar((kk*2+mt)*4, 4), d if kk else None))
            d = vr(40 + 4*T, 4); ms.append((d, vr(buf + 4*T, 4), "v[124:127]", d if kk else None))
        for m in ms:
            g.mfma(*m)
            if fill: fill.pop(0)()
        while fill: fill.pop(0)()
    k.wait(ds=["qs"])
    g.stats([(136 + mt, 138 + mt, 140 + mt) for mt in range(2)])
    for T in range(3):
        for mt in range(2):
            el = [(16 + 8*T + 4*mt + r, 136 + mt, 40 + 4*T + r, 138 + mt, 140 + mt) for r in range(4)]
            g.affine(el, phi=True, keep=False, tmp=64)
            dst = 144 + 4*mt + 2*T if T < 2 else 152 + 2*mt
            for h in range(2):
                a = 16 + 8*T + 4*mt + 2*h
                k(f"v_cvt_pk_bf16_f32 v{dst+h}, v{a}, v{a+1}")
    for reg, bits in ((248, 0x3111), (249, 0xC222)):
        k(f"s_mov_b32 s{sT1}, {hex(bits)}"); k(f"v_bfe_i32 v{reg}, s{sT1}, v2, 1")
    k("v_bfe_i32 v250, 2, v3, 1"); k("v_bfe_i32 v251, 4, v3, 1")
    k(f"""
    v_lshlrev_b32 v134, 2, v2
    s_lshl_b32 s{sT0}, s{sP}, 16
    s_lshl_b32 s{sT1}, s{sWV}, 10
    s_add_u32 s{sT0}, s{sT0}, s{sT1}
    s_add_u32 s{sT0}, s{sT0}, {KVP}
    s_lshl_b32 s{sT1}, s{sWV}, 9
    s_add_u32 s{sT1}, s{sT1}, {KVX}
    v_lshl_add_u32 v132, v0, 3, s{sT1}
    v_lshlrev_b32 v133, 3, v0
    v_add_u32 v133, {KVX}, v133
    v_mov_b32 v61, 0
    v_mov_b32 v62, 0
    """)
    g.ts("Q.end")
    g.poll(134, f"s{sT3}", 136)
    g.ts("FK.seen")
    for q in range(16):
        k.vm(f"buffer_load_dwordx4 {vr(160+4*q,4)}, v1, {sr(WS,4)}, s{sT0} offen sc1", ("kv", q))
        if q < 15: k(f"s_add_u32 s{sT0}, s{sT0}, 4096")
    for t in range(3): g.relay_warm(t, 224)
    for q in range(1, 16):
        k.wait(vm=("kv", q)); d = 160 + 4*(q & 1 if q > 1 else 0)
        if q == 1: continue
        for h in range(2): k(f"v_pk_add_f32 {vr(d+2*h,2)}, {vr(d+2*h,2)}, {vr(160+4*q+2*h,2)}")
    for h in range(2): k(f"v_pk_add_f32 {vr(160+2*h,2)}, {vr(160+2*h,2)}, {vr(164+2*h,2)}")
    k("v_cvt_pk_bf16_f32 v160, v160, v161"); k("v_cvt_pk_bf16_f32 v161, v162, v163")
    k.ds("ds_write_b64 v132, v[160:161]")
    k.wait(ds="all"); k("s_barrier")
    for T in range(4): k.ds(f"ds_read_b64 {vr(160+2*T,2)}, v133 offset:{512*T}", ("x", T))
    L = k.label("fw")
    k(f"s_cmp_lg_u32 s{sWV}, 0"); k(f"s_cbranch_scc1 {L}")
    k(f"s_lshl_b32 s{sT0}, s2, 2"); k(f"s_add_u32 s{sT0}, s{sT0}, {FW}")
    k("s_mov_b64 exec, 1"); k(f"buffer_store_dword v14, v6, {sr(WS,4)}, s{sT0} offen sc1"); k("s_mov_b64 exec, -1")
    k(f"{L}:")
    k(f"""
    s_lshl_b32 s{sT0}, s{sR}, 1
    s_lshr_b32 s{sT1}, s{sWV}, 1
    s_add_u32 s{sT0}, s{sT0}, s{sT1}
    s_lshl_b32 s{sT4}, s{sT0}, 7
    s_mul_i32 s{sT0}, s{sT0}, 73728
    s_and_b32 s{sT1}, s{sWV}, 1
    s_lshl_b32 s{sT2}, s{sT1}, 11
    s_add_u32 s{sT0}, s{sT0}, s{sT2}
    s_add_u32 s{sT0}, s{sT0}, {OB}
    s_lshl_b32 s{sT1}, s{sT1}, 2
    s_add_u32 s{sT4}, s{sT4}, s{sT1}
    s_lshl_b32 s{sT1}, s{sP}, 3
    s_add_u32 s{sT4}, s{sT4}, s{sT1}
    s_add_u32 s{sT4}, s{sT4}, {FO}
    s_lshr_b32 s{sT1}, s{sP}, 3
    s_add_u32 s{sT1}, s{sT1}, 16
    s_lshl_b32 s{sT1}, s{sT1}, 12
    s_and_b32 s{sT2}, s{sP}, 6
    s_lshl_b32 s{sT2}, s{sT2}, 7
    s_add_u32 s{sT1}, s{sT1}, s{sT2}
    s_add_u32 s{sT1}, s{sT1}, s{sDL}
    s_add_u32 s{sT1}, s{sT1}, s{sT0}
    s_lshl_b32 s{sT2}, s{sP}, 12
    s_add_u32 s{sT0}, s{sT0}, s{sT2}
    v_lshlrev_b32 v134, 4, v2
    """)
    T0, T1, O1, O2 = 160, 162, 164, 166
    AF, A0L, A1L, AFL = 56, 60, 62, 64
    E = lambda q, mt: 16 + 12*mt + 4*q
    k.wait(ds=[("x", 1)])
    for mt in range(2):
        g.mfma(vr(E(0, mt), 4), vr(T0, 2), vr(144 + 4*mt, 2), k16=True)
        g.mfma(vr(E(1, mt), 4), vr(T1, 2), vr(146 + 4*mt, 2), k16=True)
    k.wait(ds=[("x", 3)])
    k(f"""
    v_and_b32 v{AF}, v{O1}, v248
    v_and_b32 v{AF+1}, v{O1+1}, v248
    v_and_b32 v{AF+2}, v{O1}, v249
    v_and_b32 v{AF+3}, v{O1+1}, v249
    v_and_b32 v{AFL}, v{O2}, v251
    v_and_b32 v{AFL+1}, v{O2+1}, v250
    v_and_b32 v{A0L}, v{O2}, v250
    v_and_b32 v{A1L+1}, v{O2+1}, v251
    """)
    for mt in range(2): g.mfma(vr(E(2, mt), 4), vr(AF, 4), vr(144 + 4*mt, 4))
    for mt in range(2): g.mfma(vr(E(2, mt), 4), vr(AFL, 2), vr(152 + 2*mt, 2), vr(E(2, mt), 4), k16=True)
    for mt in range(2):
        g.mfma(vr(E(0, mt), 4), vr(A0L, 2), vr(152 + 2*mt, 2), vr(E(0, mt), 4), k16=True)
        g.mfma(vr(E(1, mt), 4), vr(A1L, 2), vr(152 + 2*mt, 2), vr(E(1, mt), 4), k16=True)
    for mt in range(2):
        F = E(2, mt); c = 68 + 4*mt
        for q in range(2):
            k(f"v_add_f32 v{c+2*q}, s{sC3}, v{F+q}"); k(f"v_add_f32 v{c+2*q+1}, s{sC3}, v{F+q}")
    for mt in range(2):
        c = 68 + 4*mt
        for q in range(2): k(f"v_permlane16_swap_b32 v{c+2*q}, v{c+2*q+1}")
    for mt in range(2):
        c = 68 + 4*mt
        for q in range(2): k(f"v_rcp_f32 v{c+2*q}, v{c+2*q}")
    for mt in range(2):
        c = 68 + 4*mt; o = 80 + 8*mt
        for q in range(2):
            for r in range(4): k(f"v_mul_f32 v{E(q,mt)+r}, v{E(q,mt)+r}, v{c+2*q}")
            for h in range(2): k(f"v_cvt_pk_bf16_f32 v{o+2*q+h}, v{E(q,mt)+2*h}, v{E(q,mt)+2*h+1}")
        k.vm(f"buffer_store_dwordx4 {vr(o,4)}, v1, {sr(WS,4)}, s{sT0} offen offset:{1024*mt} sc1", "o")
    for mt in range(2):
        c = 68 + 4*mt; o = 84 + 8*mt; F = E(2, mt)
        for r in range(4): k(f"v_mul_f32 v{F+r}, v{F+r}, v{c+2*(r>>1)}")
        for h in range(2): k(f"v_cvt_pk_bf16_f32 v{o+h}, v{F+2*h}, v{F+2*h+1}")
    g.setexec(0xffff << 48)
    for mt in range(2):
        k.vm(f"buffer_store_dwordx2 {vr(84+8*mt,2)}, v134, {sr(WS,4)}, s{sT1} offen offset:{1024*mt} sc1", "o")
    g.setexec(-1)
    g.ts("O.st")

def sel(g, dst, se, h, tmp):
    k = g.k
    k(f"v_lshl_add_u32 v{tmp}, v2, 2, s{se}")
    k(f"v_lshlrev_b32 v{tmp+1}, 3, v3")
    k(f"v_sub_u32 v{tmp}, v{tmp}, v{tmp+1}")
    if h: k(f"v_subrev_u32 v{tmp}, 32, v{tmp}")
    k(f"v_and_b32 v{tmp+1}, 1, v{tmp}")
    k(f"v_lshlrev_b32 v{tmp+1}, 4, v{tmp+1}")
    k(f"v_mov_b32 v{tmp+2}, 0x3f80")
    k(f"v_lshlrev_b32 v{tmp+1}, v{tmp+1}, v{tmp+2}")
    k(f"v_lshrrev_b32 v{tmp}, 1, v{tmp}")
    for d in range(4):
        k(f"v_cmp_eq_u32 vcc, {d}, v{tmp}"); k(f"v_cndmask_b32 v{dst+d}, 0, v{tmp+1}, vcc")

def phase_b(g):
    k = g.k
    k(f"s_and_b32 s{sT0}, s{sBC}, 1"); k(f"s_lshl_b32 s{sT0}, s{sT0}, 1"); k(f"s_add_u32 s{sT5}, s{sT0}, s{sWV}")
    for h in range(2):
        sel(g, 40 + 4*h, sWV, h, 100); sel(g, 48 + 4*h, sT5, h, 100)
    k.wait(vm="xr")
    for h in range(2):
        for mt in range(4):
            d = vr(16 + 4*mt, 4); g.mfma(d, vr(40 + 4*h, 4), ar(XR + 8*mt + 4*h, 4), d if h else None)
        g.mfma("v[32:35]", vr(48 + 4*h, 4), ar(XR + 32 + 4*h, 4), "v[32:35]" if h else None)
    k.wait(vm="o"); g.flag(f"s{sT4}", 14, 6)
    g.ts("FO.set")
    k(f"s_movk_i32 s{sT0}, {FW}")
    g.poll(1, f"s{sT0}", 56, n=4)
    g.ts("FW.seen")
    k(f"""
    s_lshl_b32 s{sT0}, s{sBC}, 2
    s_add_u32 s{sT0}, s{sT0}, s{sWV}
    s_mul_i32 s{sT0}, s{sT0}, 18432
    s_add_u32 s{sT0}, s{sT0}, {WOT}
    s_add_u32 s{sT1}, s{sT5}, 32
    s_mul_i32 s{sT1}, s{sT1}, 18432
    s_add_u32 s{sT1}, s{sT1}, {WOT}
    s_lshl_b32 s{sA1}, s{sX}, 2
    s_add_u32 s{sA1}, s{sA1}, s{sWV}
    s_mul_i32 s{sA1}, s{sA1}, {324*1024}
    s_add_u32 s{sA1}, s{sA1}, {WT}
    """)
    for kk in range(18):
        k.vm(f"buffer_load_dwordx4 {vr(64+4*kk,4)}, v1, {sr(WS,4)}, s{sT0} offen offset:{(kk & 3)*1024} sc1", "wo")
        if kk & 3 == 3: k(f"s_add_u32 s{sT0}, s{sT0}, 4096")
    L = k.label("nx")
    k(f"s_cmp_ge_u32 s{sWV}, 2"); k(f"s_cbranch_scc1 {L}")
    for kk in range(18):
        k.vm(f"buffer_load_dwordx4 {vr(136+4*kk,4)}, v1, {sr(WS,4)}, s{sT1} offen offset:{(kk & 3)*1024} sc1", "wo", count=False)
        if kk & 3 == 3: k(f"s_add_u32 s{sT1}, s{sT1}, 4096")
    k(f"{L}:")
    k(f"""
    v_and_b32 v56, 31, v0
    v_lshlrev_b32 v56, 2, v56
    s_lshl_b32 s{sT0}, s{sBR}, 7
    s_add_u32 s{sT0}, s{sT0}, {FO}
    s_mul_i32 s{sT1}, s{sBR}, 73728
    s_add_u32 s{sT1}, s{sT1}, {OB}
    s_lshr_b32 s{sT2}, s{sBC}, 1
    s_lshl_b32 s{sT2}, s{sT2}, 10
    v_add_u32 v57, s{sT2}, v1
    v_add_u32 v58, 0x10000, v1
    v_add_u32 v59, 0x10000, v57
    """)
    g.poll(56, f"s{sT0}", 60)
    g.ts("FO.seen")
    for s in range(5):
        if s < 4:
            k(f"s_lshl_b32 s{sT2}, s{sWV}, 12"); k(f"s_add_u32 s{sT2}, s{sT2}, {s*16384}")
        else:
            k(f"s_lshl_b32 s{sT2}, s{sWV}, 11"); k(f"s_add_u32 s{sT2}, s{sT2}, 65536")
        k(f"s_mov_b32 m0, s{sT2}"); k(f"s_add_u32 s{sT2}, s{sT2}, s{sT1}")
        for q in range(4 if s < 4 else 2):
            k.vm(f"buffer_load_dwordx4 v1, {sr(WS,4)}, s{sT2} offen offset:{q*1024} sc1 lds", ("os", s))
    for seq in range(NP1): ring_load(g, seq)
    def reads(kk):
        buf = 208 + 20 * (kk & 1); out = []
        for q in range(5):
            a = (1, 57)[q == 4] if kk < 16 else (58, 59)[q == 4]
            off = (kk & 15) * 4096 + (q & 3) * 1024
            out.append(lambda q=q, a=a, off=off: k.ds(f"ds_read_b128 {vr(buf+4*q,4)}, v{a} offset:{off}", ("ob", kk)))
        return out
    k.wait(vm=("os", 0)); k("s_barrier")
    g.ts("O.first")
    for f in reads(0): f()
    for kk in range(18):
        buf = 208 + 20 * (kk & 1); fill = []
        if kk + 1 < 18:
            if (kk + 1) % 4 == 0: fill.append(lambda s=(kk+1)//4: (k.wait(vm=("os", s)), k("s_barrier")))
            fill += reads(kk + 1)
        k.wait(ds=[("ob", kk)])
        for q in range(5):
            d = vr(16 + 4*q, 4)
            g.mfma(d, vr((64 if q < 4 else 136) + 4*kk, 4), vr(buf + 4*q, 4), d)
            if fill: fill.pop(0)()
        while fill: fill.pop(0)()
    k(f"""
    s_mul_i32 s{sT0}, s{sBR}, 73728
    s_add_u32 s{sT0}, s{sT0}, {HB}
    s_and_b32 s{sT2}, s{sBC}, 1
    s_add_u32 s{sT2}, s{sT2}, 16
    s_lshl_b32 s{sT2}, s{sT2}, 2
    s_lshr_b32 s{sT3}, s{sBC}, 1
    s_add_u32 s{sT2}, s{sT2}, s{sT3}
    s_lshl_b32 s{sT2}, s{sT2}, 10
    s_lshl_b32 s{sT3}, s{sWV}, 9
    s_add_u32 s{sT2}, s{sT2}, s{sT3}
    s_add_u32 s{sT1}, s{sT2}, s{sT0}
    s_lshl_b32 s{sT2}, s{sBC}, 1
    s_lshr_b32 s{sT3}, s{sWV}, 1
    s_add_u32 s{sT2}, s{sT2}, s{sT3}
    s_lshl_b32 s{sT2}, s{sT2}, 12
    s_and_b32 s{sT3}, s{sWV}, 1
    s_lshl_b32 s{sT3}, s{sT3}, 9
    s_add_u32 s{sT2}, s{sT2}, s{sT3}
    s_add_u32 s{sT0}, s{sT0}, s{sT2}
    v_lshrrev_b32 v56, 1, v3
    v_lshlrev_b32 v56, 8, v56
    v_lshl_add_u32 v56, v2, 4, v56
    v_and_b32 v57, 1, v3
    v_lshl_add_u32 v4, v57, 10, v56
    v_lshl_add_u32 v5, v57, 3, v56
    s_lshl_b32 s{sT4}, s{sBR}, 3
    s_add_u32 s{sT4}, s{sT4}, s{sBC}
    s_lshl_b32 s{sT4}, s{sT4}, 2
    s_add_u32 s{sT4}, s{sT4}, s{sWV}
    s_lshl_b32 s{sT4}, s{sT4}, 2
    s_add_u32 s{sT4}, s{sT4}, {FH}
    """)
    for pb in range(2):
        o = 40 + 4*pb
        for q in range(4):
            a = 16 + 8*pb + 2*q; k(f"v_cvt_pk_bf16_f32 v{o+q}, v{a}, v{a+1}")
        k(f"v_permlane16_swap_b32 v{o}, v{o+2}"); k(f"v_permlane16_swap_b32 v{o+1}, v{o+3}")
        k.vm(f"buffer_store_dwordx4 {vr(o,4)}, v4, {sr(WS,4)}, s{sT0} offen offset:{2048*pb} sc1", "h")
    k("v_cvt_pk_bf16_f32 v48, v32, v33"); k("v_cvt_pk_bf16_f32 v49, v34, v35")
    L = k.label("nx")
    k(f"s_cmp_ge_u32 s{sWV}, 2"); k(f"s_cbranch_scc1 {L}")
    k.vm(f"buffer_store_dwordx2 v[48:49], v5, {sr(WS,4)}, s{sT1} offen sc1", "h", count=False)
    k(f"{L}:")
    g.ts("H.st")
    for seq in range(NP1, NP1 + NP2A): ring_load(g, seq)
    k.wait(vm="h"); g.flag(f"s{sT4}", 14, 6)
    g.ts("FH.set")

from gen3 import phase_f
```

```python
from kgen import *
from gen import *
import gen2

HP = 73728
ID = 208
vG1B, vG2A, vG2B, vHP, vHP8, vP0, vP1, vOWN, vRS = 210, 211, 212, 213, 214, 215, 216, 217, 218
ORDER = list(range(8)) + [16, 17] + list(range(8, 16))
NSEQ = 324

def b_reads(g, src, kp, buf):
    k = g.k
    a = ((1, vG1B), (vG2A, vG2B))[src][kp >= 16]
    return [lambda mt=mt: k.ds(f"ds_read_b128 {vr(buf+4*mt,4)}, v{a} offset:{(kp & 15)*4096 + mt*1024}", ("fb", src, kp, buf))
            for mt in range(4)]

class Stream:
    def __init__(self): self.seq = 0; self.step = 0

def gpass(g, st, src, nblk, acc, nxt, fill, hooks={}):
    k = g.k
    order = list(range(18)) if src == 0 else ORDER
    for pos, kp in enumerate(order):
        buf = 160 + 16 * (st.step & 1); nb = 160 + 16 * ((st.step + 1) & 1)
        pre = [hooks[pos]] if pos in hooks else []
        if pos + 1 < 18: pre += b_reads(g, src, order[pos + 1], nb)
        elif nxt is not None: pre += b_reads(g, nxt, 0, nb)
        k.wait(ds=[("fb", src, kp, buf)])
        for b in range(nblk):
            k.wait(vm=("w", st.seq))
            for mt in range(4):
                d = vr(acc + 16*b + 4*mt, 4)
                g.mfma(d, ar(4 * (st.seq % gen2.RING), 4), vr(buf + 4*mt, 4), d if pos else None)
                n = 0
                if pre: pre.pop(0)(); n += 1
                if mt == 3 and st.seq + gen2.RING < NSEQ: gen2.ring_load(g, st.seq + gen2.RING); n += 1
                while fill and n < (1 if mt == 3 else 2): fill.pop(0)(); n += 1
            st.seq += 1
        while pre: pre.pop(0)()
        st.step += 1

def relu_ops(g, acc, pis, blk8):
    k = g.k; ops = []; n = 0
    for q, pi in enumerate(pis):
        for mt in range(4):
            t = 192 + 4 * (n & 3); n += 1
            for d in range(4):
                a = acc + 16 * (2*q + (d >> 1)) + 4*mt + 2*(d & 1)
                ops.append(lambda t=t, d=d, a=a: k(f"v_cvt_pk_bf16_f32 v{t+d}, v{a}, v{a+1}"))
            for d in range(4): ops.append(lambda t=t, d=d: k(f"v_pk_max_i16 v{t+d}, v{t+d}, 0"))
            ops.append(lambda t=t, pi=pi, mt=mt: k.ds(f"ds_write_b128 v{vHP}, {vr(t,4)} offset:{pi*16384 + mt*1024}", "hp"))
    if blk8 is not None:
        for mt in range(4):
            t = 192 + 4 * (n & 3); n += 1
            for d in range(2):
                a = acc + 16*blk8 + 4*mt + 2*d
                ops.append(lambda t=t, d=d, a=a: k(f"v_cvt_pk_bf16_f32 v{t+d}, v{a}, v{a+1}"))
            for d in range(2): ops.append(lambda t=t, d=d: k(f"v_pk_max_i16 v{t+d}, v{t+d}, 0"))
            ops.append(lambda t=t, mt=mt: k.ds(f"ds_write_b64 v{vHP8}, {vr(t,2)} offset:{mt*1024}", "hp"))
    return ops

def blk_index(g, dst, rel):
    k = g.k
    if rel == 0: k(f"s_add_u32 s{dst}, s{sA2}, 8")
    else:
        k(f"s_add_u32 s{dst}, s{sX}, {rel}"); k(f"s_and_b32 s{dst}, s{dst}, 7"); k(f"s_add_u32 s{dst}, s{dst}, s{sA2}")

def part_ops(g, acc, rels, tag):
    k = g.k; ops = []; n = 0
    for b, rel in enumerate(rels):
        ops.append(lambda rel=rel: (blk_index(g, sT0, rel), k(f"s_lshl_b32 s{sT0}, s{sT0}, 16"), k(f"s_add_u32 s{sT0}, s{sT0}, s{sA3}")))
        for pb in range(2):
            t = 192 + 4 * (n & 3); n += 1
            for q in range(4):
                a = acc + 16*b + 8*pb + 2*q
                ops.append(lambda t=t, q=q, a=a: k(f"v_cvt_pk_bf16_f32 v{t+q}, v{a}, v{a+1}"))
            for q in range(2): ops.append(lambda t=t, q=q: k(f"v_permlane16_swap_b32 v{t+q}, v{t+q+2}"))
            ops.append(lambda t=t, pb=pb: k.vm(f"buffer_store_dwordx4 {vr(t,4)}, v{vP0+pb}, {sr(WS,4)}, s{sT0} offen sc1", tag))
    return ops

def part_flags(g, rels, tag):
    k = g.k
    k.wait(vm=tag); k("s_mov_b64 exec, 1")
    for rel in rels:
        blk_index(g, sT1, rel); k(f"s_lshl_b32 s{sT1}, s{sT1}, 7"); k(f"s_add_u32 s{sT1}, s{sT1}, s{sT5}")
        k.vm(f"buffer_store_dword v14, v6, {sr(WS,4)}, s{sT1} offen sc1")
    k("s_mov_b64 exec, -1")

def h_pieces(g, sblk):
    k = g.k
    k(f"s_lshl_b32 s{sT0}, s{sblk}, 13"); k(f"s_add_u32 s{sT0}, s{sT0}, s{sT4}"); k(f"s_add_u32 s{sT1}, s{sT0}, 4096")
    for e in range(4):
        k.vm(f"buffer_load_dwordx2 {vr(128+2*e,2)}, v5, {sr(WS,4)}, s{sT0 if e < 2 else sT1} offen offset:{(e & 1)*512} sc1", "hp")

def reduce_block(g, sblk, qs, own):
    k = g.k
    h_pieces(g, sblk)
    k.wait(vm="hp")
    for e in range(4): g.mfma(vr(32 + 4*e, 4), vr(ID, 2), vr(128 + 2*e, 2), k16=True)
    k(f"""
    s_add_u32 s{sT2}, s{sA2}, s{sblk}
    s_lshl_b32 s{sT0}, s{sT2}, 7
    s_add_u32 s{sT0}, s{sT0}, {FP}
    s_lshl_b32 s{sT2}, s{sT2}, 16
    s_lshl_b32 s{sT1}, s{sWV}, 11
    s_add_u32 s{sT2}, s{sT2}, s{sT1}
    s_add_u32 s{sT2}, s{sT2}, {PB}
    v_and_b32 v136, 31, v0
    """)
    if own:
        k(f"""
        v_lshrrev_b32 v137, 2, v136
        v_add_u32 v138, 4, v136
        v_and_b32 v138, 31, v138
        v_cmp_eq_u32 vcc, s{sX}, v137
        v_cndmask_b32 v136, v136, v138, vcc
        """)
        k.wait(ds=["own"])
        for n in range(16): k(f"v_fma_f32 v{32+n}, v{48+n}, v{vRS}, v{32+n}")
    k("v_lshlrev_b32 v136, 2, v136")
    g.ts("T.poll")
    g.poll(136, f"s{sT0}", 137)
    g.ts("T.seen")
    for n, q in enumerate(qs):
        k(f"s_add_u32 s{sT0}, s{sX}, {q}"); k(f"s_and_b32 s{sT0}, s{sT0}, 7"); k(f"s_lshl_b32 s{sT0}, s{sT0}, 13")
        k(f"s_add_u32 s{sT0}, s{sT0}, s{sT2}")
        for c in range(2):
            k.vm(f"buffer_load_dwordx4 {vr(64+8*n+4*c,4)}, v1, {sr(WS,4)}, s{sT0} offen offset:{1024*c} sc1", ("pl", n, c))
    k(f"s_lshl_b32 s{sT0}, s{sblk}, 7")
    for n, q in enumerate(qs):
        for c in range(2):
            k.wait(vm=("pl", n, c))
            for h in range(2):
                d = vr(16 + 8*c + 4*h, 4); g.mfma(d, vr(ID, 2), vr(64 + 8*n + 4*c + 2*h, 2), d if n else None, k16=True)
    for c in range(2):
        for r in range(4): k(f"v_permlane16_swap_b32 v{16+8*c+r}, v{20+8*c+r}")
    for e in range(4):
        for r in range(4): k(f"v_fma_f32 v{16+4*e+r}, v{16+4*e+r}, v{vRS}, v{32+4*e+r}")
    for r in range(4):
        for c in range(2): k(f"v_cvt_pk_bf16_f32 v{140+2*r+c}, v{16+8*c+r}, v{20+8*c+r}")
        if r & 1: k.vm(f"buffer_store_dwordx4 {vr(140+2*(r-1),4)}, v7, {sr(OS,4)}, s{sT0} offen offset:{8*(r-1)}")

def phase_f(g):
    k = g.k
    k(f"""
    s_lshl_b32 s{sT0}, s{sI}, 7
    s_add_u32 s{sT0}, s{sT0}, {FH}
    s_mul_i32 s{sT4}, s{sI}, 73728
    s_lshl_b32 s{sT1}, s{sWV}, 10
    s_add_u32 s{sT4}, s{sT4}, s{sT1}
    s_add_u32 s{sT4}, s{sT4}, {HB}
    v_and_b32 v56, 31, v0
    v_lshlrev_b32 v56, 2, v56
    v_lshlrev_b32 v57, 2, v3
    v_sub_u32 v57, v2, v57
    v_and_b32 v58, 1, v57
    v_lshlrev_b32 v58, 4, v58
    v_mov_b32 v59, 0x3f80
    v_lshlrev_b32 v58, v58, v59
    v_lshrrev_b32 v57, 1, v57
    v_cmp_eq_u32 vcc, 0, v57
    v_cndmask_b32 v{ID}, 0, v58, vcc
    v_cmp_eq_u32 vcc, 1, v57
    v_cndmask_b32 v{ID+1}, 0, v58, vcc
    v_add_u32 v{vG1B}, 0x10000, v1
    v_add_u32 v{vG2A}, {HP}, v1
    v_add_u32 v{vG2B}, {HP + 65536}, v1
    s_lshl_b32 s{sT2}, s{sWV}, 12
    v_add_u32 v{vHP}, s{sT2}, v{vG2A}
    s_lshr_b32 s{sT2}, s{sWV}, 1
    s_lshl_b32 s{sT3}, s{sT2}, 12
    s_and_b32 s{sA3}, s{sWV}, 1
    s_lshl_b32 s{sT5}, s{sA3}, 3
    s_add_u32 s{sT3}, s{sT3}, s{sT5}
    v_add_u32 v{vHP8}, s{sT3}, v{vG2B}
    s_lshl_b32 s{sT2}, s{sT2}, 10
    s_lshl_b32 s{sA3}, s{sA3}, 8
    s_add_u32 s{sA3}, s{sA3}, s{sT2}
    s_lshl_b32 s{sT2}, s{sX}, 13
    s_add_u32 s{sA3}, s{sA3}, s{sT2}
    s_add_u32 s{sA3}, s{sA3}, {PB}
    s_mul_i32 s{sA2}, s{sI}, 9
    s_lshl_b32 s{sT5}, s{sX}, 2
    s_add_u32 s{sT5}, s{sT5}, s{sWV}
    s_lshl_b32 s{sT5}, s{sT5}, 2
    s_add_u32 s{sT5}, s{sT5}, {FP}
    v_and_b32 v57, 1, v3
    v_lshrrev_b32 v58, 1, v3
    v_lshlrev_b32 v58, 9, v58
    v_lshl_add_u32 v58, v57, 11, v58
    v_lshl_add_u32 v{vP0}, v2, 4, v58
    v_add_u32 v{vP1}, 0x1000, v{vP0}
    v_add_u32 v8, s{sT1}, v1
    v_add_u32 v9, 0x10000, v8
    v_add_u32 v{vOWN}, {AUX}, v8
    s_lshl_b32 s{sT2}, s{sI}, 6
    s_lshl_b32 s{sT3}, s{sWV}, 4
    s_add_u32 s{sT2}, s{sT2}, s{sT3}
    v_add_u32 v7, s{sT2}, v2
    s_movk_i32 s{sT2}, 1152
    v_mul_u32_u24 v7, s{sT2}, v7
    v_lshl_add_u32 v7, v3, 5, v7
    """)
    for r in range(4): k(f"v_mov_b32 v{92+r}, {hex(ONE2)}")
    k("s_barrier")
    g.poll(56, f"s{sT0}", 60)
    g.ts("FH.seen")
    k(f"s_mov_b32 s{sT0}, s{sT4}")
    for kk in range(18):
        k.vm(f"buffer_load_dwordx4 {vr(16+4*kk,4)}, v1, {sr(WS,4)}, s{sT0} offen sc1", ("h", kk))
        if kk < 17: k(f"s_add_u32 s{sT0}, s{sT0}, 4096")
    for seq in range(gen2.NP1 + gen2.NP2A, gen2.RING): gen2.ring_load(g, seq)
    for kk in range(18):
        k.wait(vm=("h", kk)); g.mfma("v[88:91]", "v[92:95]", vr(16 + 4*kk, 4), "v[88:91]" if kk else None)
    g.ts("H.in")
    for r in range(4): k(f"v_mul_f32 v{88+r}, s{sC0}, v{88+r}")
    def cvt(kk):
        t = 96 + 8 * (kk % 3); o = 128 + 4 * (kk & 3)
        for d in range(4): k(f"v_cvt_pk_bf16_f32 v{o+d}, v{t+2*d}, v{t+2*d+1}")
        k.ds(f"ds_write_b128 v{8 if kk < 16 else 9}, {vr(o,4)} offset:{(kk & 15)*4096}")
    for kk in range(18):
        t = 96 + 8 * (kk % 3)
        for h in range(2): g.mfma(vr(t + 4*h, 4), vr(ID, 2), vr(16 + 4*kk + 2*h, 2), "v[88:91]", k16=True)
        if kk >= 1: cvt(kk - 1)
    cvt(17)
    k.wait(ds="all"); k("s_barrier")
    g.ts("F.start")
    st = Stream()
    for f in b_reads(g, 0, 0, 160): f()
    bar = lambda: (k.wait(ds=["hp"]), k("s_barrier"))
    gpass(g, st, 0, 5, 16, 0, [])
    g.ts("G1a")
    fill = relu_ops(g, 16, (0, 1), 4)
    gpass(g, st, 0, 4, 96, 1, fill, {17: bar}); assert not fill
    g.ts("G1b")
    fill = relu_ops(g, 96, (2, 3), None)
    def chk9():
        assert not fill
        bar()
    gpass(g, st, 1, 3, 16, 1, fill, {9: chk9})
    g.ts("P1")
    fill = part_ops(g, 16, (0, 1, 2), "p1")
    gpass(g, st, 1, 3, 96, 1, fill, {14: lambda: part_flags(g, (0, 1, 2), "p1")}); assert not fill
    g.ts("P2")
    fill = part_ops(g, 96, (3, 4, 5), "p2")
    gpass(g, st, 1, 2, 16, 1, fill, {16: lambda: part_flags(g, (3, 4, 5), "p2")}); assert not fill
    g.ts("P3")
    fill = part_ops(g, 16, (6, 7), "p3")
    gpass(g, st, 1, 1, 96, None, fill)
    while fill: fill.pop(0)()
    g.ts("P4")
    part_flags(g, (6, 7), "p3")
    for mt in range(4): k.ds(f"ds_write_b128 v{vOWN}, {vr(96+4*mt,4)} offset:{mt*4096}")
    for kk in range(18):
        k.ds(f"ds_read_b128 {vr(16+4*kk,4)}, v{8 if kk < 16 else 9} offset:{(kk & 15)*4096}", ("c", kk))
        if kk == 9: k.wait(ds=[("c", 0)]); k("s_barrier")
    for kk in range(18):
        k.wait(ds=[("c", kk)])
        for d in range(4):
            k(f"v_dot2_f32_bf16 v{88+d}, v{16+4*kk+d}, v{16+4*kk+d}, {'0' if kk == 0 else 'v%d' % (88+d)}")
    k(f"s_mul_i32 s{sT0}, s{sWV}, 3072"); k(f"v_add_u32 v{vOWN}, s{sT0}, v{vOWN}")
    for e in range(4): k.ds(f"ds_read_b128 {vr(48+4*e,4)}, v{vOWN} offset:{e*1024}", "own")
    k(f"""
    v_add_f32 v88, v88, v89
    v_add_f32 v90, v90, v91
    v_add_f32 v88, v88, v90
    v_mov_b32 v89, v88
    v_permlane16_swap_b32 v88, v89
    v_add_f32 v88, v88, v89
    v_mov_b32 v89, v88
    v_permlane32_swap_b32 v88, v89
    v_add_f32 v88, v88, v89
    v_fma_f32 v88, v88, s{sC1}, v15
    v_rsq_f32 v{vRS}, v88
    """)
    L = k.label("n8")
    k(f"s_lshl_b32 s{sT0}, s{sWV}, 1"); k(f"s_cmp_lg_u32 s{sT0}, s{sX}"); k(f"s_cbranch_scc1 {L}")
    sv, sl = list(k.vq), list(k.lq)
    k(f"s_mov_b32 s{sT3}, 8")
    p = g.prof; g.prof = False
    reduce_block(g, sT3, range(8), False)
    g.prof = p
    k.vq, k.lq = sv, sl
    k(f"{L}:")
    reduce_block(g, sX, (7, 6, 5, 4, 3, 2, 1), True)
```

```python
import re

def vr(b, n=1): return f"v{b}" if n == 1 else f"v[{b}:{b+n-1}]"
def ar(b, n=1): return f"a{b}" if n == 1 else f"a[{b}:{b+n-1}]"
def sr(b, n=1): return f"s{b}" if n == 1 else f"s[{b}:{b+n-1}]"

_REG = re.compile(r"^(-|\|)?([vas])(\d+)\|?$|^(-|\|)?([vas])\[(\d+):(\d+)\]\|?$")
def regs(tok):
    tok = tok.strip()
    if tok == "vcc": return {("s", 106), ("s", 107)}
    if tok == "exec": return {("x", 0)}
    if tok == "m0": return {("m", 0)}
    m = _REG.match(tok)
    if not m: return set()
    if m.group(2): return {(m.group(2), int(m.group(3)))}
    return {(m.group(5), i) for i in range(int(m.group(6)), int(m.group(7)) + 1)}

TRANS = ("v_exp_", "v_log_", "v_rcp_", "v_rsq_", "v_sqrt_", "v_sin_", "v_cos_")
def parse(line):
    s = line.strip()
    op, _, rest = s.partition(" ")
    toks = [t for t in re.split(r",\s*|\s+", rest.strip()) if t]
    d = dict(op=op, w=set(), r=set(), A=set(), C=set(), kind="other", sdata=set())
    R = [regs(t) for t in toks]
    if op.startswith("v_mfma"):
        d.update(kind="mfma", w=R[0], A=R[1] | R[2], C=R[3], r=R[1] | R[2] | R[3])
    elif op.startswith("v_cmp"):
        d.update(kind="valu", w=R[0], r=set().union(*R[1:]))
    elif op.startswith(("v_add_co", "v_addc_co")):
        d.update(kind="valu", w=R[0] | R[1], r=set().union(*R[2:]))
    elif op.startswith("v_permlane"):
        d.update(kind="valu", w=R[0] | R[1], r=R[0] | R[1], perm=True)
    elif op.startswith("v_"):
        rd = set().union(*R[1:]) if len(R) > 1 else set()
        if op.startswith("v_cndmask") and len([t for t in toks if not ":" in t or "[" in t]) == 3: rd |= regs("vcc")
        if op.startswith(("v_fmac", "v_mac", "v_dot2c")) or "dpp" in op or "row_" in rest or "quad_perm" in rest: rd |= R[0]
        d.update(kind="valu", w=R[0], r=rd)
        d["dpp"] = "dpp" in op or "row_" in rest or "quad_perm" in rest
        d["trans"] = op.startswith(TRANS)
        d["dot"] = op.startswith("v_dot")
        if d["dot"]: d["C"] = R[3]; d["A"] = R[1] | R[2]
        d["rl"] = op.startswith(("v_readfirstlane", "v_readlane"))
    elif op.startswith("buffer_") or op.startswith("global_"):
        lds = " lds" in (" " + rest)
        if "load" in op and not lds:
            d.update(kind="vmem", w=R[0], r=set().union(*R[1:]))
        else:
            d.update(kind="vmem", r=set().union(*R))
            if "store" in op and ("x4" in op or "x3" in op): d["sdata"] = R[0]
        d["lds"] = lds
    elif op.startswith("ds_"):
        if "read" in op: d.update(kind="ds", w=R[0], r=set().union(*R[1:]))
        else: d.update(kind="ds", r=set().union(*R))
    elif op.startswith("s_"):
        d["kind"] = "salu"
        if op.startswith(("s_cmp", "s_cbranch", "s_branch", "s_waitcnt", "s_barrier", "s_nop", "s_endpgm", "s_sleep", "s_setprio")):
            d["r"] = set().union(*R) if R else set()
        else:
            d["w"] = R[0] if R else set(); d["r"] = set().union(*R[1:]) if len(R) > 1 else set()
    return d

def need(p, c):
    n = 0
    pk, ck = p["kind"], c["kind"]
    vgw = {x for x in p["w"] if x[0] in "va"}
    sgw = {x for x in p["w"] if x[0] == "s"}
    if pk == "mfma":
        if ck == "mfma":
            if vgw & c["A"]: n = max(n, 8)
            if vgw & c["C"] and c["C"] != p["w"]: n = max(n, 6)
            if vgw & c["w"] and not (c["w"] == p["w"] and c["C"] == p["w"]): n = max(n, 6)
        elif ck in ("valu", "vmem", "ds"):
            if vgw & (c["r"] | c["w"]): n = max(n, 8)
            if ck == "valu" and p["C"] & c["w"]: n = max(n, 3)
    if pk == "valu":
        if p.get("dot"):
            if vgw & (c["r"] | c["w"]):
                if c["op"] == p["op"]:
                    if vgw & c["A"]: n = max(n, 3)
                else: n = max(n, 3)
        if ck == "mfma" and vgw & c["r"]: n = max(n, 2)
        if ck == "valu":
            if (c.get("dpp") or c.get("perm")) and vgw & c["r"]: n = max(n, 2)
            if c.get("rl") and vgw & c["r"]: n = max(n, 1)
            if p.get("trans") and vgw & c["r"]: n = max(n, 1)
            if sgw & c["r"]: n = max(n, 2)
        if ck == "vmem" and sgw & c["r"]: n = max(n, 5)
    if pk == "vmem" and p["sdata"] & c["w"] and ck != "salu":
        n = max(n, 2 if ck in ("valu", "mfma") else 1)
    if pk == "salu" and ("m", 0) in p["w"] and ck == "vmem" and c.get("lds"): n = max(n, 1)
    return n

def pad(lines, window=10):
    out = []; hist = []; snaps = {}; added = 0
    for l in lines:
        s = l.strip()
        if not s or s.startswith((";", ".")):
            out.append(l); continue
        if s.endswith(":"):
            lab = s[:-1]
            if lab in snaps:
                for (p, dist) in snaps.pop(lab): hist.append([p, dist])
            out.append(l); continue
        c = parse(s)
        req = 0
        for p, dist in hist: req = max(req, need(p, c) - dist)
        if req > 0:
            out.append(f"    s_nop {req-1}"); added += req
            for h in hist: h[1] += req
        step = 1
        if c["op"] == "s_nop": step = int(s.split()[1]) + 1
        for h in hist: h[1] += step
        hist = [h for h in hist if h[1] < window]
        if c["op"] != "s_nop": hist.append([c, 0])
        if c["op"].startswith(("s_cbranch", "s_branch")):
            tgt = s.split()[1]
            snaps.setdefault(tgt, []).extend([(p, dist) for p, dist in hist])
        out.append(l)
    return out, added

class Kern:
    def __init__(self):
        self.lines = []; self._lab = 0
        self.vq = []; self.lq = []
    def __call__(self, s):
        for l in s.strip("\n").split("\n"):
            l = l.strip()
            if l: self.lines.append(l if l.endswith(":") else "    " + l)
    def label(self, base="L"):
        self._lab += 1
        return f"{base}_{self._lab}"
    def vm(self, s, tag=None, count=True):
        self(s)
        if count or tag is not None: self.vq.append((tag, count))
    def ds(self, s, tag=None):
        self(s); self.lq.append(tag)
    def _n_after(self, q, tags, opt):
        idx = [i for i, e in enumerate(q) if (e[0] if opt else e) in tags]
        return idx[-1] if idx else None
    def wait(self, vm=None, ds=None):
        parts = []
        if vm is not None:
            if vm == "all": parts.append("vmcnt(0)"); self.vq = []
            else:
                tags = vm if isinstance(vm, (list, tuple, set)) and not (isinstance(vm, tuple) and len(vm) and not isinstance(vm[0], tuple) ) else [vm]
                i = self._n_after(self.vq, tags, True)
                if i is not None:
                    n = sum(1 for e in self.vq[i+1:] if e[1])
                    parts.append(f"vmcnt({min(n, 63)})"); self.vq = self.vq[i+1:]
        if ds is not None:
            if ds == "all": parts.append("lgkmcnt(0)"); self.lq = []
            else:
                tags = ds if isinstance(ds, (list, set)) else [ds]
                i = self._n_after(self.lq, tags, False)
                if i is not None:
                    n = len(self.lq) - i - 1
                    parts.append(f"lgkmcnt({min(n, 15)})"); self.lq = self.lq[i+1:]
        if parts: self("s_waitcnt " + " ".join(parts))
    def text(self, header, name, vgpr, agpr, sgpr, grid, block, lds):
        body, added = pad(self.lines)
        acc = (vgpr + 3) // 4 * 4
        out = [header.rstrip("\n"), "; @launch grid=(%d,%d,%d) block=(%d,%d,%d) lds=%d" % (grid + block + (lds,)),
               '.amdgcn_target "amdgcn-amd-amdhsa--gfx950"', ".text", f".globl {name}", ".p2align 8",
               f".type {name},@function", f"{name}:"] + body
        out += ['.section .rodata,"a"', ".p2align 6", f".amdhsa_kernel {name}",
                f"  .amdhsa_next_free_vgpr {acc + agpr}", f"  .amdhsa_next_free_sgpr {sgpr}",
                f"  .amdhsa_accum_offset {acc}", "  .amdhsa_group_segment_fixed_size 0",
                "  .amdhsa_kernarg_size 72", "  .amdhsa_user_sgpr_count 2",
                "  .amdhsa_user_sgpr_kernarg_segment_ptr 1", "  .amdhsa_system_sgpr_workgroup_id_x 1",
                ".end_amdhsa_kernel"]
        self.nops = added
        return "\n".join(out) + "\n"
```

```python
import sys, json
import gen
out = sys.argv[1]; stop = sys.argv[2] if len(sys.argv) > 2 and sys.argv[2] != "-" else None
prof = len(sys.argv) > 3
txt, g = gen.build(stop, prof)
open(out, "w").write(txt)
json.dump(g.tsn, open(out + ".ts.json", "w"))
print("lines", txt.count("\n"), "bytes", len(txt), "nop states", g.k.nops)
import chk; chk.check(out)
```

```python
import sys
from kgen import *

NAME = "sequential_preLN__linear_attn_block__dense_activation_relu__prompt"
FK, FW, FO, FH, FP = 0, 4096, 5120, 9216, 13312
ZERO_BYTES = 53248
KVP, OB, HB, WOT, WT, PB, PROF = 0x10000, 0x200000, 0x480000, 0x700000, 0x800000, 0x1300000, 0x3000000
WS_SIZE = 0x4000000
AUX = 147456
ST, CS, KVX = AUX + 12288, AUX + 13312, AUX + 13312
SPIN = 20000
WS, XS, QS, W1S, W2S, T2S, DS, OS = 4, 8, 12, 16, 20, 24, 28, 32
sWO = 36
sX, sI, sWV, sR, sP, sDL = 38, 39, 40, 41, 42, 43
sT0, sT1, sT2, sT3, sT4, sT5 = 44, 45, 46, 47, 48, 49
sXM1, sDK, sCNT, sV2 = 50, 51, 52, 53
sRL = 56
sDM = 72
sPE, sPO = 74, 75
sMK = 76
sC0, sC1, sC2, sC3 = 78, 79, 80, 81
sTS = 82
sBR, sBC = 84, 85
sA0, sA1, sA2, sA3 = 86, 87, 88, 89
ONE2 = 0x3F803F80
def f2u(x):
    import struct
    return struct.unpack("<I", struct.pack("<f", x))[0]

class G:
    def __init__(self, stop=None, prof=False):
        self.k = Kern(); self.stop = stop; self.prof = prof; self.nts = 0; self.tsn = []; self.only = None; self.dbgwg = None
    def ts(self, name):
        if not self.prof: return
        if self.only is not None and name not in self.only: return
        k = self.k
        k(f"s_memtime s[{sTS}:{sTS+1}]"); k("s_waitcnt lgkmcnt(0)"); k.lq = []
        k(f"v_writelane_b32 v255, s{sTS}, {self.nts}")
        self.tsn.append(name); self.nts += 1
    def mfma(self, d, a, b, c=None, k16=False):
        op = "v_mfma_f32_16x16x16_bf16" if k16 else "v_mfma_f32_16x16x32_bf16"
        cc = "0" if c is None else c
        self.k(f"{op} {d}, {a}, {b}, {cc}")
    def setexec(self, m):
        k = self.k
        if m == -1: k("s_mov_b64 exec, -1")
        else:
            k(f"s_mov_b32 exec_lo, {hex(m & 0xffffffff)}"); k(f"s_mov_b32 exec_hi, {hex(m >> 32)}")
    def poll(self, vaddr, soff, vtmp, n=1, srd=WS):
        k = self.k; L = k.label("poll"); D = k.label("pdone")
        k(f"s_mov_b32 s{sCNT}, 0"); k(f"{L}:")
        sfx = {1: "dword", 4: "dwordx4"}[n]
        k(f"buffer_load_{sfx} {vr(vtmp, n)}, v{vaddr}, {sr(srd,4)}, {soff} offen sc1")
        k("s_waitcnt vmcnt(0)"); k.vq = []
        if n == 4:
            k(f"v_and_b32 v{vtmp}, v{vtmp}, v{vtmp+1}"); k(f"v_and_b32 v{vtmp+2}, v{vtmp+2}, v{vtmp+3}")
            k(f"v_and_b32 v{vtmp}, v{vtmp}, v{vtmp+2}")
        k(f"v_cmp_ne_u32 vcc, 1, v{vtmp}")
        k(f"s_cbranch_vccz {D}")
        k(f"s_add_u32 s{sCNT}, s{sCNT}, 1"); k(f"s_cmp_lt_u32 s{sCNT}, {SPIN}"); k(f"s_cbranch_scc1 {L}")
        k(f"{D}:")
    def flag(self, soff, vone, vzero, srd=WS):
        k = self.k
        k("s_mov_b64 exec, 1")
        k.vm(f"buffer_store_dword v{vone}, v{vzero}, {sr(srd,4)}, {soff} offen sc1")
        k("s_mov_b64 exec, -1")

    def prologue(self):
        k = self.k
        k(f"""
        s_cmp_ge_u32 s2, 256
        s_cbranch_scc1 L_end
        s_load_dwordx2 s[{XS}:{XS+1}], s[0:1], 0
        s_load_dwordx2 s[{QS}:{QS+1}], s[0:1], 8
        s_load_dwordx2 s[{WS}:{WS+1}], s[0:1], 64
        s_load_dwordx2 s[{sWO}:{sWO+1}], s[0:1], 16
        s_load_dwordx2 s[{W1S}:{W1S+1}], s[0:1], 32
        s_load_dwordx2 s[{W2S}:{W2S+1}], s[0:1], 40
        s_load_dwordx2 s[{OS}:{OS+1}], s[0:1], 48
        s_load_dwordx2 s[{DS}:{DS+1}], s[0:1], 56
        v_lshrrev_b32 v1, 6, v0
        v_lshlrev_b32 v15, 4, v0
        v_and_b32 v0, 63, v0
        v_readfirstlane_b32 s{sWV}, v1
        v_lshlrev_b32 v1, 4, v0
        v_and_b32 v2, 15, v0
        v_lshrrev_b32 v3, 4, v0
        s_and_b32 s{sX}, s2, 7
        s_lshr_b32 s{sI}, s2, 3
        s_and_b32 s{sT0}, s{sX}, 1
        s_lshl_b32 s{sT0}, s{sT0}, 3
        s_and_b32 s{sT1}, s{sI}, 7
        s_add_u32 s{sR}, s{sT0}, s{sT1}
        s_lshr_b32 s{sT0}, s{sX}, 1
        s_lshl_b32 s{sT0}, s{sT0}, 2
        s_lshr_b32 s{sT1}, s{sI}, 3
        s_add_u32 s{sP}, s{sT0}, s{sT1}
        s_and_b32 s{sDL}, s{sP}, 1
        s_lshl_b32 s{sDL}, s{sDL}, 3
        """)
        for srd, size in ((WS, WS_SIZE), (XS, 2359296), (QS, 1990656), (W1S, 5308416), (W2S, 5308416), (DS, 256), (OS, 2359296)):
            k(f"s_mov_b32 s{srd+2}, {size}"); k(f"s_mov_b32 s{srd+3}, 0x20000")
        k(f"""
        s_lshl_b32 s{sT0}, s{sR}, 7
        s_lshl_b32 s{sT1}, s{sWV}, 5
        s_add_u32 s{sT0}, s{sT0}, s{sT1}
        v_add_u32 v12, s{sT0}, v2
        s_movk_i32 s{sT1}, 1152
        v_mul_u32_u24 v12, s{sT1}, v12
        v_lshl_add_u32 v12, v3, 4, v12
        s_movk_i32 s{sXM1}, 18432
        """)
        k(f"""
        s_and_b32 s{sT0}, s{sWV}, 1
        s_lshl_b32 s{sT0}, s{sT0}, 3
        v_lshl_add_u32 v16, v3, 1, s{sT0}
        v_sub_u32 v16, v2, v16
        v_and_b32 v16, 15, v16
        v_cmp_ne_u32 s[{sDM}:{sDM+1}], 15, v16
        v_mul_u32_u24 v17, 52, v16
        v_lshrrev_b32 v17, 8, v17
        s_movk_i32 s{sT1}, 1072
        v_mul_u32_u24 v17, s{sT1}, v17
        v_lshl_add_u32 v17, v16, 4, v17
        s_movk_i32 s{sT1}, 3456
        v_mul_u32_u24 v13, s{sT1}, v3
        s_mul_i32 s{sT0}, s{sWV}, 27648
        s_mul_i32 s{sT1}, s{sP}, 72
        s_add_u32 s{sT0}, s{sT0}, s{sT1}
        s_sub_u32 s{sT0}, s{sT0}, s{sDL}
        v_add3_u32 v13, v13, v17, s{sT0}
        s_lshl_b32 s{sDK}, s{sWV}, 11
        s_waitcnt lgkmcnt(0)
        """)
        if self.prof: k("v_mov_b32 v255, 0")
        self.ts("start")
        L = k.label("nz")
        k(f"s_cmp_lg_u32 s2, 0"); k(f"s_cbranch_scc1 {L}")
        for r in range(4): k(f"v_mov_b32 v{20+r}, 0")
        for n in range(ZERO_BYTES // 4096):
            k(f"s_movk_i32 s{sT0}, {n*4096}" if n * 4096 < 32768 else f"s_mov_b32 s{sT0}, {n*4096}")
            k(f"buffer_store_dwordx4 v[20:23], v15, {sr(WS,4)}, s{sT0} offen sc1")
        k(f"{L}:")

    def stage(self, s):
        k = self.k
        for kk in (2*s, 2*s+1):
            for mt in range(2):
                so = "0" if mt == 0 else f"s{sXM1}"
                k.vm(f"buffer_load_dwordx4 {ar((kk*2+mt)*4,4)}, v12, {sr(XS,4)}, {so} offen offset:{kk*64}", ("st", s))
        k(f"s_mov_b64 exec, s[{sDM}:{sDM+1}]")
        for kk in (2*s, 2*s+1):
            k(f"s_add_u32 m0, s{sDK}, {kk*8192}")
            k(f"s_mov_b32 s{sT0}, {kk*110592}"); k(f"s_mov_b32 s{sT1}, {kk*110592+13824-1024}")
            k.vm(f"buffer_load_dwordx4 v13, {sr(QS,4)}, s{sT0} offen lds", ("st", s))
            k.vm(f"buffer_load_dwordx4 v13, {sr(QS,4)}, s{sT1} offen offset:1024 lds", ("st", s))
        k("s_mov_b64 exec, -1")

    def setup_a(self):
        k = self.k
        for r in range(4): k(f"v_mov_b32 v{124+r}, {hex(ONE2)}")
        k(f"""
        v_lshrrev_b32 v16, 4, v15
        v_and_b32 v17, 3, v16
        v_lshrrev_b32 v18, 1, v16
        v_and_b32 v18, 4, v18
        v_or_b32 v17, v17, v18
        v_lshlrev_b32 v17, 1, v17
        v_add_u32 v17, 15, v17
        v_and_b32 v17, 15, v17
        v_lshlrev_b32 v17, 4, v17
        v_lshl_add_u32 v17, v16, 8, v17
        """)
        k.ds("ds_write_b128 v17, v[124:127]")
        k("v_add_u32 v17, 0x10000, v17")
        k.ds("ds_write_b128 v17, v[124:127]")
        L = k.label("o3")
        k(f"s_cmp_lg_u32 s{sWV}, 0"); k(f"s_cbranch_scc1 {L}")
        k("v_add_u32 v17, 0x10000, v17"); k("ds_write_b128 v17, v[124:127]"); k(f"{L}:")
        k(f"""
        v_lshrrev_b32 v16, 2, v2
        v_and_b32 v17, 3, v0
        v_and_b32 v18, 1, v3
        v_lshl_add_u32 v18, v18, 2, v16
        v_lshlrev_b32 v18, 5, v18
        v_add_u32 v18, s{sDL}, v18
        v_lshl_add_u32 v19, v3, 3, v16
        v_lshlrev_b32 v19, 8, v19
        v_lshl_add_u32 v20, v17, 3, v18
        s_movk_i32 s{sT0}, 255
        """)
        for reg, off in ((4, 80), (5, 120), (6, 160), (7, 200), (9, 0), (10, 40)):
            k(f"v_add_u32 v21, {off}, v20"); k(f"v_and_or_b32 v{reg}, v21, s{sT0}, v19")
        k(f"v_add_u32 v21, 32, v18"); k(f"v_and_or_b32 v11, v21, s{sT0}, v19")
        k(f"""
        v_mov_b32 v21, 112
        v_mov_b32 v22, 192
        v_cmp_eq_u32 vcc, 3, v17
        v_cndmask_b32 v21, v21, v22, vcc
        s_sub_u32 s{sT1}, 248, s{sDL}
        v_mov_b32 v22, s{sT1}
        v_cmp_eq_u32 vcc, 0, v17
        v_cndmask_b32 v21, v21, v22, vcc
        v_add_u32 v21, v21, v18
        v_and_or_b32 v8, v21, s{sT0}, v19
        """)
        for reg, bits, one in ((248, 0x111, 1), (249, 0x3000, 0), (250, 0x222, 1), (251, 0xC000, 0),
                               (252, 0x30, 0), (253, 0xC00, 0), (254, 0x300, 0), (131, 0xC0, 0)):
            k(f"s_mov_b32 s{sT1}, {hex(bits)}"); k(f"v_bfe_i32 v{reg}, s{sT1}, v2, 1")
            if one: k(f"v_and_b32 v{reg}, {hex(ONE2)}, v{reg}")
        k(f"s_mov_b32 s{sPE}, 0x05040100"); k(f"s_mov_b32 s{sPO}, 0x07060302")
        self.relay_params()

    def lane_off(self, t, c1, c2):
        k = self.k
        k(f"""
        v_and_b32 v16, 1, v3
        v_lshrrev_b32 v17, 1, v3
        v_mul_lo_u32 v16, v16, s{c1}
        v_mul_lo_u32 v17, v17, s{c2}
        v_lshlrev_b32 v18, 3, v2
        v_add3_u32 v{128+t}, v16, v17, v18
        """)
    def p_w1(self, t, n):
        k = self.k; b = sRL + 5*t; A, B, C, D = sT0, sT1, sT2, sT3
        k(f"""
        s_mul_i32 s{A}, s{n}, 205
        s_lshr_b32 s{A}, s{A}, 10
        s_mul_i32 s{B}, s{A}, 5
        s_sub_u32 s{B}, s{n}, s{B}
        s_cmp_eq_u32 s{B}, 4
        s_cselect_b32 s{B}, 8, s{B}
        s_sub_u32 s{C}, s{n}, 90
        s_and_b32 s{D}, s{C}, 3
        s_add_u32 s{D}, s{D}, 4
        s_lshr_b32 s{C}, s{C}, 2
        s_cmp_lt_u32 s{n}, 90
        s_cselect_b32 s{A}, s{A}, s{C}
        s_cselect_b32 s{B}, s{B}, s{D}
        s_lshr_b32 s{C}, s{A}, 1
        s_lshl_b32 s{C}, s{C}, 6
        s_and_b32 s{D}, s{A}, 1
        s_lshl_b32 s{D}, s{D}, 1
        s_add_u32 s{C}, s{C}, s{D}
        s_mul_i32 s{C}, s{C}, 9216
        s_lshl_b32 s{B}, s{B}, 7
        s_add_u32 s{C}, s{C}, s{B}
        s_mul_i32 s{D}, s{sX}, 1152
        s_add_u32 s{b}, s{C}, s{D}
        s_mov_b32 s{b+1}, {4*9216}
        s_mov_b32 s{b+2}, {16*9216 - 12*9216}
        s_mul_i32 s{C}, s{sX}, {4*324*1024}
        s_lshl_b32 s{D}, s{n}, 10
        s_add_u32 s{C}, s{C}, s{D}
        s_add_u32 s{b+3}, s{C}, {WT}
        s_mov_b32 s{b+4}, {324*1024}
        s_mov_b32 s{A}, {32*9216}
        s_mov_b32 s{B}, 9216
        """)
    def p_w2(self, t, n):
        k = self.k; b = sRL + 5*t; A, B, C, D, E = sT0, sT1, sT2, sT3, sT4
        k(f"""
        s_cmp_ge_u32 s{n}, 54
        s_cselect_b32 s{A}, 54, 0
        s_cselect_b32 s{B}, 3, 0
        s_sub_u32 s{A}, s{n}, s{A}
        s_mul_i32 s{C}, s{A}, 171
        s_lshr_b32 s{C}, s{C}, 9
        s_mul_i32 s{D}, s{C}, 3
        s_sub_u32 s{A}, s{A}, s{D}
        s_add_u32 s{B}, s{B}, s{A}
        s_sub_u32 s{A}, s{n}, 108
        s_and_b32 s{D}, s{A}, 1
        s_add_u32 s{D}, s{D}, 6
        s_lshr_b32 s{A}, s{A}, 1
        s_cmp_ge_u32 s{n}, 108
        s_cselect_b32 s{C}, s{A}, s{C}
        s_cselect_b32 s{B}, s{D}, s{B}
        s_sub_u32 s{A}, s{n}, 144
        s_cmp_ge_u32 s{n}, 144
        s_cselect_b32 s{C}, s{A}, s{C}
        s_cselect_b32 s{B}, 8, s{B}
        s_add_u32 s{A}, s{sX}, s{B}
        s_and_b32 s{A}, s{A}, 7
        s_cmp_eq_u32 s{B}, 0
        s_cselect_b32 s{A}, 8, s{A}
        s_lshl_b32 s{A}, s{A}, 7
        s_add_u32 s{B}, s{C}, 8
        s_sub_u32 s{D}, s{C}, 2
        s_cmp_lt_u32 s{C}, 10
        s_cselect_b32 s{B}, s{B}, s{D}
        s_cmp_lt_u32 s{C}, 8
        s_cselect_b32 s{C}, s{C}, s{B}
        s_lshr_b32 s{B}, s{C}, 2
        s_lshl_b32 s{B}, s{B}, 7
        s_and_b32 s{D}, s{C}, 3
        s_add_u32 s{B}, s{B}, s{D}
        s_lshl_b32 s{D}, s{C}, 1
        s_add_u32 s{D}, s{D}, 480
        s_mov_b32 s{E}, {1152 - 12*1152 + (1 << 32)}
        s_cmp_lt_u32 s{C}, 16
        s_cselect_b32 s{B}, s{B}, s{D}
        s_cselect_b32 s{b+2}, {64*1152 - 12*1152}, s{E}
        s_mul_i32 s{D}, s{sX}, 576
        s_add_u32 s{B}, s{B}, s{D}
        s_mul_i32 s{B}, s{B}, 1152
        s_add_u32 s{b}, s{B}, s{A}
        s_mov_b32 s{b+1}, {4*1152}
        s_mul_i32 s{C}, s{sX}, {4*324*1024}
        s_lshl_b32 s{D}, s{n}, 10
        s_add_u32 s{C}, s{C}, s{D}
        s_add_u32 s{b+3}, s{C}, {WT + 162*1024}
        s_mov_b32 s{b+4}, {324*1024}
        s_mov_b32 s{A}, {16*1152}
        s_mov_b32 s{B}, {32*1152}
        """)
    def p_wo(self, t, n):
        k = self.k; b = sRL + 5*t; A, B, C, D, E = sT0, sT1, sT2, sT3, sT4
        k(f"""
        s_mul_i32 s{A}, s{n}, 57
        s_lshr_b32 s{A}, s{A}, 10
        s_mul_i32 s{B}, s{A}, 18
        s_sub_u32 s{B}, s{n}, s{B}
        s_mul_i32 s{C}, s{A}, {4*18*1024}
        s_lshl_b32 s{D}, s{B}, 10
        s_add_u32 s{C}, s{C}, s{D}
        s_add_u32 s{b+3}, s{C}, {WOT}
        s_mov_b32 s{b+4}, {18*1024}
        s_mul_i32 s{C}, s{B}, 36
        s_mul_i32 s{D}, s{B}, 288
        s_sub_u32 s{D}, s{D}, {288*16 - 16}
        s_mov_b32 s{E}, {33*1152}
        s_cmp_lt_u32 s{B}, 16
        s_cselect_b32 s{C}, s{C}, s{D}
        s_cselect_b32 s{b+2}, {17*1152}, s{E}
        s_mov_b32 s{E}, {72*1152}
        s_cselect_b32 s{E}, {4*1152}, s{E}
        s_mul_i32 s{C}, s{C}, 1152
        s_lshl_b32 s{A}, s{A}, 7
        s_add_u32 s{b}, s{C}, s{A}
        s_mov_b32 s{b+1}, 1152
        s_mov_b32 s{A}, s{E}
        s_lshl_b32 s{B}, s{E}, 1
        """)
    def relay_params(self):
        k = self.k; n = sT5
        k(f"s_lshl_b32 s{n}, s{sI}, 2"); k(f"s_add_u32 s{n}, s{n}, s{sWV}")
        self.p_w1(0, n); self.lane_off(0, sT0, sT1)
        self.p_w2(1, n); self.lane_off(1, sT0, sT1)
        L2, L3, LD = k.label("t2b"), k.label("t2c"), k.label("t2d")
        k(f"""
        s_cmp_lt_u32 s{n}, 68
        s_cselect_b64 s[{T2S}:{T2S+1}], s[{W2S}:{W2S+1}], s[{sWO}:{sWO+1}]
        s_mov_b32 s{T2S+2}, 663552
        s_cselect_b32 s{T2S+2}, 5308416, s{T2S+2}
        s_cmp_lt_u32 s{n}, 34
        s_cselect_b64 s[{T2S}:{T2S+1}], s[{W1S}:{W1S+1}], s[{T2S}:{T2S+1}]
        s_mov_b32 s{T2S+3}, 0x20000
        s_mov_b32 s{sV2}, 1
        s_cbranch_scc0 {L2}
        s_add_u32 s{n}, s{n}, 128
        """)
        self.p_w1(2, n); k(f"s_branch {LD}"); k(f"{L2}:")
        k(f"s_cmp_lt_u32 s{n}, 68"); k(f"s_cbranch_scc0 {L3}"); k(f"s_add_u32 s{n}, s{n}, 94")
        self.p_w2(2, n); k(f"s_branch {LD}"); k(f"{L3}:")
        k(f"""
        s_sub_u32 s{n}, s{n}, 68
        s_lshl_b32 s{n}, s{n}, 3
        s_add_u32 s{n}, s{n}, s{sX}
        s_cmp_lt_u32 s{n}, 162
        s_cselect_b32 s{sV2}, 1, 0
        s_cselect_b32 s{n}, s{n}, 0
        """)
        self.p_wo(2, n); k(f"{LD}:")
        self.lane_off(2, sT0, sT1)
    def skip2(self, t):
        if t < 2: return None
        L = self.k.label("sk2"); self.k(f"s_cmp_eq_u32 s{sV2}, 0"); self.k(f"s_cbranch_scc1 {L}"); return L
    def relay_loads(self, t):
        k = self.k; b = sRL + 5*t; srd = (W1S, W2S, T2S)[t]; L = self.skip2(t)
        k(f"s_mov_b32 s{sT2}, s{b}")
        for s in range(8):
            k.vm(f"buffer_load_dwordx2 {vr(200+16*t+2*s,2)}, v{128+t}, {sr(srd,4)}, s{sT2} offen", ("rl", t), count=(t < 2))
            if s < 7: k(f"s_add_u32 s{sT2}, s{sT2}, s{b+2 if s == 3 else b+1}")
        if L: k(f"{L}:")
    def relay_stores(self, t, tmp):
        k = self.k; b = sRL + 5*t; L = self.skip2(t)
        k(f"s_mov_b32 s{sT2}, s{b+3}")
        for e in range(4):
            o = tmp + 4*e
            for d in range(4):
                lo = 200+16*t+2*(2*d)+(e >> 1); hi = lo + 2
                k(f"v_perm_b32 v{o+d}, v{hi}, v{lo}, s{sPO if e & 1 else sPE}")
            k.vm(f"buffer_store_dwordx4 {vr(o,4)}, v1, {sr(WS,4)}, s{sT2} offen sc1", ("rs", t), count=(t < 2))
            if e < 3: k(f"s_add_u32 s{sT2}, s{sT2}, s{b+4}")
        if L: k(f"{L}:")
    def relay_warm(self, t, tmp):
        k = self.k; b = sRL + 5*t; L = self.skip2(t)
        k(f"s_mov_b32 s{sT2}, s{b+3}")
        for e in range(4):
            k.vm(f"buffer_load_dwordx4 {vr(tmp,4)}, v1, {sr(WS,4)}, s{sT2} offen sc1", ("rw", t), count=(t < 2))
            if e < 3: k(f"s_add_u32 s{sT2}, s{sT2}, s{b+4}")
        if L: k(f"{L}:")

    def tr_reads(self, kk, addrs, buf):
        k = self.k; out = []
        for T, a in enumerate(addrs):
            for h in range(2):
                off = (kk & 7) * 8192 + 1024 * h
                out.append(lambda T=T, a=a, h=h, off=off: k.ds(
                    f"ds_read_b64_tr_b16 {vr(buf+4*T+2*h,2)}, v{a} offset:{off}", ("b", kk)))
        return out
    def bump(self, addrs):
        for a in addrs: self.k(f"v_add_u32 v{a}, 0x10000, v{a}")

    def phase_a(self):
        k = self.k
        for s in range(7):
            self.stage(s)
            if s == 0: self.ts("st0")
        self.ts("st6")
        self.setup_a()
        self.ts("setup")
        KA = [4, 5, 6, 7, 8]
        k.wait(vm=("st", 0), ds="all"); k("s_barrier")
        L = k.label("ng")
        k("s_cmp_lg_u32 s2, 0"); k(f"s_cbranch_scc1 {L}")
        k("v_mov_b32 v16, 1"); k("v_mov_b32 v17, 0"); k("s_mov_b64 exec, 1")
        k(f"buffer_store_dword v16, v17, {sr(DS,4)}, 0 offen sc1"); k("s_mov_b64 exec, -1"); k(f"{L}:")
        self.ts("A.first")
        for f in self.tr_reads(0, KA, 64): f()
        for kk in range(18):
            buf = 64 + 20 * (kk & 1)
            fill = []
            if kk + 1 < 18:
                if (kk + 1) % 2 == 0:
                    fill.append(lambda s=(kk+1)//2: (k.wait(vm=("st", s)), k("s_barrier")))
                if (kk + 1) % 8 == 0: fill.append(lambda: self.bump(KA))
                fill += self.tr_reads(kk + 1, KA, 64 + 20 * ((kk + 1) & 1))
            if kk == 1: fill.append(lambda: self.stage(7))
            if kk == 3: fill.append(lambda: self.stage(8))
            if kk in (5, 7, 9): fill.append(lambda t=(kk-5)//2: self.relay_loads(t))
            if kk == 11:
                fill.append(lambda: (k("v_mov_b32 v14, 0"), k.vm(f"buffer_load_dword v14, v14, {sr(DS,4)}, 0 offen sc1", "gate")))
            k.wait(ds=[("b", kk)])
            ms = []
            for T in range(5):
                for mt in range(2):
                    d = vr(16 + 8*T + 4*mt, 4)
                    ms.append((d, ar((kk*2+mt)*4, 4), vr(buf + 4*T, 4), d if kk else None))
            for mt in range(2):
                d = vr(56 + 4*mt, 4); xa = ar((kk*2+mt)*4, 4)
                ms.append((d, xa, xa, d if kk else None))
            for m in ms:
                self.mfma(*m)
                if fill: fill.pop(0)()
            L = k.label("cs")
            k(f"s_cmp_lg_u32 s{sWV}, {kk & 3}"); k(f"s_cbranch_scc1 {L}")
            for T in range(5):
                d = vr(104 + 4*T, 4); self.mfma(d, "v[124:127]", vr(buf + 4*T, 4), d if kk >= 4 else None)
            k(f"{L}:")
            while fill: fill.pop(0)()
        self.ts("A.kloop")
        k(f"""
        s_lshl_b32 s{sT0}, s{sWV}, 8
        s_add_u32 s{sT0}, s{sT0}, {ST}
        v_lshl_add_u32 v132, v3, 4, s{sT0}
        v_lshl_add_u32 v133, v2, 2, s{sT0}
        s_lshl_b32 s{sT0}, s{sWV}, 2
        s_add_u32 s{sT0}, s{sT0}, {CS}
        v_lshl_add_u32 v134, v2, 4, s{sT0}
        v_lshlrev_b32 v135, 4, v2
        v_add_u32 v135, {CS}, v135
        """)
        self.setexec(0x0001000100010001)
        for mt in range(2): k.ds(f"ds_write_b128 v132, {vr(48+4*mt,4)} offset:{128*mt}")
        for r in range(4):
            self.setexec(0x1000010000100001 << r)
            for mt in range(2): k.ds(f"ds_write_b32 v133, v{56+4*mt+r} offset:{64+128*mt}")
        self.setexec(0xffff)
        for T in range(5): k.ds(f"ds_write_b32 v134, v{104+4*T} offset:{256*T}")
        self.setexec(-1)
        Lg, Ld = k.label("gate"), k.label("gated")
        k.wait(vm="gate")
        k(f"v_cmp_ne_u32 vcc, 1, v14"); k(f"s_cbranch_vccz {Ld}")
        k("v_mov_b32 v15, 0"); sv = list(k.vq); self.poll(15, "0", 14, srd=DS); k.vq = sv
        k(f"{Ld}:")
        k.wait(ds="all"); k("s_barrier")
        for mt in range(2):
            k.ds(f"ds_read_b128 {vr(136+8*mt,4)}, v132 offset:{128*mt}", ("s", mt))
            k.ds(f"ds_read_b128 {vr(140+8*mt,4)}, v132 offset:{128*mt+64}", ("s", mt))
        for T in range(5): k.ds(f"ds_read_b128 {vr(104+4*T,4)}, v135 offset:{256*T}", ("c", T))
        k(f"s_mov_b32 s{sC0}, {hex(f2u(-1/576))}"); k(f"s_mov_b32 s{sC1}, {hex(f2u(1/576))}")
        k(f"s_mov_b32 s{sC2}, {hex(f2u(1.4426950408889634))}"); k(f"s_mov_b32 s{sC3}, {hex(f2u(1e-6))}")
        k(f"v_mov_b32 v15, {hex(f2u(1e-5))}")
        NM = lambda mt, r: 136 + 8*mt + r
        RS = lambda mt, r: 140 + 8*mt + r
        RLg = lambda mt, r: 152 + 4*mt + r
        for mt in range(2):
            k.wait(ds=[("s", mt)])
            self.stats([(NM(mt, r), RS(mt, r), RLg(mt, r)) for r in range(4)])
        for T in range(5):
            k.wait(ds=[("c", T)]); c = 104 + 4*T
            k(f"v_add_f32 v{c}, v{c}, v{c+1}"); k(f"v_add_f32 v{c+2}, v{c+2}, v{c+3}"); k(f"v_add_f32 v{c}, v{c}, v{c+2}")
        k(f"s_mov_b32 s{sMK}, 0xf000f000"); k(f"s_mov_b32 s{sMK+1}, 0xf000f000")
        PK = lambda T: 160 + 4*T
        for T in (0, 2, 1, 3, 4):
            for mt in range(2):
                el = [(16 + 8*T + 4*mt + r, NM(mt, r), 104 + 4*T, RS(mt, r), RLg(mt, r)) for r in range(4)]
                self.affine(el, phi=T in (0, 1, 4), keep=(T == 4), tmp=64)
                for h in range(2):
                    a = 16 + 8*T + 4*mt + 2*h
                    k(f"v_cvt_pk_bf16_f32 v{PK(T)+2*mt+h}, v{a}, v{a+1}")
            if T == 2: self.mfma("v[16:19]", vr(PK(0), 4), vr(PK(2), 4))
            if T == 3: self.mfma("v[20:23]", vr(PK(1), 4), vr(PK(3), 4))
        X = PK(4); BA, BB, AC, AD, AEA, AEB = 72, 76, 80, 84, 88, 92
        for d in range(4): k(f"v_and_or_b32 v{BA+d}, v{X+d}, v249, v248")
        for d in range(4): k(f"v_and_b32 v{AC+d}, v{X+d}, v252")
        self.mfma("v[24:27]", vr(PK(0), 4), vr(BA, 4))
        for d in range(4): k(f"v_and_or_b32 v{BB+d}, v{X+d}, v251, v250")
        self.mfma("v[28:31]", vr(AC, 4), vr(PK(2), 4))
        for d in range(4): k(f"v_and_b32 v{AD+d}, v{X+d}, v253")
        self.mfma("v[24:27]", vr(PK(1), 4), vr(BB, 4), "v[24:27]")
        for d in range(4): k(f"v_and_b32 v{AEA+d}, v{X+d}, v254")
        self.mfma("v[28:31]", vr(AD, 4), vr(PK(3), 4), "v[28:31]")
        for d in range(4): k(f"v_and_b32 v{AEB+d}, v{X+d}, v131")
        self.mfma("v[28:31]", vr(AEA, 4), vr(BA, 4), "v[28:31]")
        self.mfma("v[28:31]", vr(AEB, 4), vr(BB, 4), "v[28:31]")
        self.ts("A.epi")
        k(f"v_add_u32 v134, {AUX}, v1")
        LD = k.label("kvd"); labs = [k.label("kv") for _ in range(4)]
        for w in range(4):
            k(f"{labs[w]}:")
            if w < 3: k(f"s_cmp_lg_u32 s{sWV}, {w}"); k(f"s_cbranch_scc1 {labs[w+1]}")
            for T in range(4):
                if T != w: k(f"ds_write_b128 v134, {vr(16+4*T,4)} offset:{T*3072 + ((w-T-1) & 3)*1024}")
            for r in range(4): k(f"v_mov_b32 v{32+r}, v{16+4*w+r}")
            if w < 3: k(f"s_branch {LD}")
        k(f"{LD}:")
        k(f"s_mul_i32 s{sT0}, s{sWV}, 3072"); k(f"v_add_u32 v134, s{sT0}, v134")
        k("s_waitcnt lgkmcnt(0)"); k.lq = []; k("s_barrier")
        for q in range(3): k.ds(f"ds_read_b128 {vr(16+4*q,4)}, v134 offset:{q*1024}", ("r", q))
        k(f"""
        s_lshl_b32 s{sT0}, s{sP}, 4
        s_add_u32 s{sT0}, s{sT0}, s{sR}
        s_lshl_b32 s{sT0}, s{sT0}, 2
        s_add_u32 s{sT0}, s{sT0}, s{sWV}
        s_lshl_b32 s{sT0}, s{sT0}, 10
        s_add_u32 s{sT0}, s{sT0}, {KVP}
        """)
        for q in range(3):
            k.wait(ds=[("r", q)])
            for r in range(4): k(f"v_add_f32 v{32+r}, v{32+r}, v{16+4*q+r}")
        k.vm(f"buffer_store_dwordx4 v[32:35], v1, {sr(WS,4)}, s{sT0} offen sc1", "kvp")
        self.ts("A.kvst")

    def stats(self, L):
        k = self.k
        for a, b, c in L: k(f"v_mul_f32 v{a}, s{sC0}, v{a}")
        for a, b, c in L: k(f"v_fma_f32 v{b}, v{b}, s{sC1}, v15")
        for a, b, c in L: k(f"v_fma_f32 v{b}, -v{a}, v{a}, v{b}")
        for a, b, c in L: k(f"v_max_f32 v{b}, v{b}, v15")
        for a, b, c in L: k(f"v_rsq_f32 v{b}, v{b}")
        for a, b, c in L:
            if c is not None: k(f"v_mul_f32 v{c}, s{sC2}, v{b}")
    def affine(self, el, phi, keep, tmp):
        k = self.k
        for a, nm, cs, rs, rl in el: k(f"v_fma_f32 v{a}, v{nm}, v{cs}, v{a}")
        if not phi:
            for a, nm, cs, rs, rl in el: k(f"v_mul_f32 v{a}, v{a}, v{rs}")
            return
        for n, (a, nm, cs, rs, rl) in enumerate(el): k(f"v_mul_f32 v{tmp+n}, v{a}, v{rl}")
        if keep:
            for n, (a, nm, cs, rs, rl) in enumerate(el): k(f"v_mul_f32 v{tmp+4+n}, v{a}, v{rs}")
        for n, (a, nm, cs, rs, rl) in enumerate(el): k(f"v_exp_f32 v{tmp+n}, v{tmp+n} clamp")
        for a, nm, cs, rs, rl in el: k(f"v_fma_f32 v{a}, v{a}, v{rs}, s{sC3}")
        for a, nm, cs, rs, rl in el: k(f"v_max_f32 v{a}, s{sC3}, v{a}")
        for n, (a, nm, cs, rs, rl) in enumerate(el): k(f"v_add_f32 v{a}, v{a}, v{tmp+n}")
        if keep:
            for n, (a, nm, cs, rs, rl) in enumerate(el):
                k(f"v_cndmask_b32 v{a}, v{a}, v{tmp+4+n}, s[{sMK}:{sMK+1}]")

    def finish(self):
        k = self.k
        if self.prof:
            self.ts("end")
            k(f"""
            s_lshl_b32 s{sT0}, s2, 2
            s_add_u32 s{sT0}, s{sT0}, s{sWV}
            s_lshl_b32 s{sT0}, s{sT0}, 8
            s_add_u32 s{sT0}, s{sT0}, {PROF}
            v_lshlrev_b32 v4, 2, v0
            buffer_store_dword v255, v4, {sr(WS,4)}, s{sT0} offen
            """)
            if self.dbgwg is not None:
                k(f"s_cmp_lg_u32 s2, {self.dbgwg}"); k("s_cbranch_scc1 L_nd")
                k(f"s_cmp_lg_u32 s{sWV}, 0"); k("s_cbranch_scc1 L_nd")
                k("v_readlane_b32 s3, v255, 0"); k("v_subrev_u32 v255, s3, v255")
                k("s_mov_b64 exec, 0xfffe")
                k(f"buffer_store_dword v255, v4, {sr(DS,4)}, 0 offen"); k("L_nd:")
        k("s_waitcnt vmcnt(0)"); k("L_end:"); k("s_endpgm")


def build(stop=None, prof=False, only=None, dbgwg=None):
    from gen2 import hop1, phase_b, phase_f
    g = G(stop, prof); g.only = only; g.dbgwg = dbgwg
    g.prologue(); g.phase_a()
    for name, fn in (("q", hop1), ("b", phase_b), ("f", phase_f)):
        if stop == "pre" + name: break
        fn(g)
    g.finish()
    hdr = "".join(open("cdna_kernels/" + NAME + ".s.ref").readlines()[:12]) if True else ""
    txt = g.k.text(hdr, NAME + "_kernel", 256, 256, 102, (256, 1, 1), (256, 1, 1), 163840)
    return txt, g

if __name__ == "__main__":
    out = sys.argv[1]; stop = sys.argv[2] if len(sys.argv) > 2 and sys.argv[2] != "-" else None
    prof = len(sys.argv) > 3
    txt, g = build(stop, prof)
    open(out, "w").write(txt)
    import json; json.dump(g.tsn, open(out + ".ts.json", "w"))
    print("lines", txt.count("\n"), "bytes", len(txt), "nop states", g.k.nops)
```

```python
import sys, json, argparse
import gen
ap = argparse.ArgumentParser()
ap.add_argument("out"); ap.add_argument("--stop"); ap.add_argument("--prof", action="store_true")
ap.add_argument("--only"); ap.add_argument("--dbg", type=int)
a = ap.parse_args()
txt, g = gen.build(a.stop, a.prof, a.only.split(",") if a.only else None, a.dbg)
open(a.out, "w").write(txt)
if "work" in a.out or "/" not in a.out: json.dump(g.tsn, open(a.out + ".ts.json", "w"))
print("lines", txt.count("\n"), "bytes", len(txt), "nop states", g.k.nops, g.tsn)
import chk; chk.check(a.out)
```

```python
import sys
from kgen import *

NAME = "sequential_preLN__linear_attn_block__dense_activation_relu__prompt"
FK, FW, FO, FH, FP = 0, 4096, 5120, 9216, 13312
ZERO_BYTES = 53248
KVP, OB, HB, WOT, WT, PB, PROF = 0x10000, 0x200000, 0x480000, 0x700000, 0x800000, 0x1300000, 0x3000000
WS_SIZE = 0x4000000
AUX = 147456
ST, CS, KVX = AUX + 12288, AUX + 13312, AUX + 13312
SPIN = 20000
WS, XS, QS, W1S, W2S, T2S, DS, OS = 4, 8, 12, 16, 20, 24, 28, 32
sWO = 36
sX, sI, sWV, sR, sP, sDL = 38, 39, 40, 41, 42, 43
sT0, sT1, sT2, sT3, sT4, sT5 = 44, 45, 46, 47, 48, 49
sV3, sDK, sCNT, sV2 = 50, 51, 52, 53
sRL = 56
sDM = 72
sPE, sPO = 74, 75
sMK = 76
sC0, sC1, sC2, sC3 = 78, 79, 80, 81
sTS = 82
sBR, sBC = 84, 85
sA0, sA1, sA2, sA3 = 86, 87, 88, 89
sXB = 90
sJ, sRF = 94, 95
OPT = dict(touch=1, fmap=1)
ONE2 = 0x3F803F80
def f2u(x):
    import struct
    return struct.unpack("<I", struct.pack("<f", x))[0]

class G:
    def __init__(self, stop=None, prof=False):
        self.k = Kern(); self.stop = stop; self.prof = prof; self.nts = 0; self.tsn = []; self.only = None; self.dbgwg = None
    def ts(self, name):
        if not self.prof: return
        if self.only is not None and name not in self.only: return
        k = self.k
        k(f"s_memtime s[{sTS}:{sTS+1}]"); k("s_waitcnt lgkmcnt(0)"); k.lq = []
        k(f"v_writelane_b32 v255, s{sTS}, {self.nts}")
        self.tsn.append(name); self.nts += 1
    def rt(self, lane):
        k = self.k
        k(f"s_memrealtime s[{sTS}:{sTS+1}]"); k("s_waitcnt lgkmcnt(0)"); k.lq = []
        k(f"v_writelane_b32 v255, s{sTS}, {lane}")
    def mfma(self, d, a, b, c=None, k16=False):
        op = "v_mfma_f32_16x16x16_bf16" if k16 else "v_mfma_f32_16x16x32_bf16"
        cc = "0" if c is None else c
        self.k(f"{op} {d}, {a}, {b}, {cc}")
    def setexec(self, m):
        k = self.k
        if m == -1: k("s_mov_b64 exec, -1")
        else:
            k(f"s_mov_b32 exec_lo, {hex(m & 0xffffffff)}"); k(f"s_mov_b32 exec_hi, {hex(m >> 32)}")
    def poll(self, vaddr, soff, vtmp, n=1, srd=WS):
        k = self.k; L = k.label("poll"); D = k.label("pdone")
        k(f"s_mov_b32 s{sCNT}, 0"); k(f"{L}:")
        sfx = {1: "dword", 2: "dwordx2", 4: "dwordx4"}[n]
        k(f"buffer_load_{sfx} {vr(vtmp, n)}, v{vaddr}, {sr(srd,4)}, {soff} offen sc1")
        k("s_waitcnt vmcnt(0)"); k.vq = []
        if n == 4:
            k(f"v_and_b32 v{vtmp}, v{vtmp}, v{vtmp+1}"); k(f"v_and_b32 v{vtmp+2}, v{vtmp+2}, v{vtmp+3}")
            k(f"v_and_b32 v{vtmp}, v{vtmp}, v{vtmp+2}")
        if n == 2: k(f"v_and_b32 v{vtmp}, v{vtmp}, v{vtmp+1}")
        k(f"v_cmp_ne_u32 vcc, 1, v{vtmp}")
        k(f"s_cbranch_vccz {D}")
        k(f"s_add_u32 s{sCNT}, s{sCNT}, 1"); k(f"s_cmp_lt_u32 s{sCNT}, {SPIN}"); k(f"s_cbranch_scc1 {L}")
        k(f"{D}:")
    def poll1(self, vaddr, soff, vtmp):
        k = self.k; L = k.label("p1")
        k(f"s_cmp_lg_u32 s{sWV}, 0"); k(f"s_cbranch_scc1 {L}")
        self.poll(vaddr, soff, vtmp)
        k(f"{L}:"); k("s_waitcnt vmcnt(0)"); k("s_barrier")
    def flag(self, soff, vone, vzero, srd=WS):
        k = self.k
        k("s_mov_b64 exec, 1")
        k.vm(f"buffer_store_dword v{vone}, v{vzero}, {sr(srd,4)}, {soff} offen sc1")
        k("s_mov_b64 exec, -1")

    def prologue(self):
        k = self.k
        k(f"""
        s_cmp_ge_u32 s2, 256
        s_cbranch_scc1 L_end
        s_load_dwordx2 s[{XS}:{XS+1}], s[0:1], 0
        s_load_dwordx2 s[{QS}:{QS+1}], s[0:1], 8
        s_load_dwordx2 s[{WS}:{WS+1}], s[0:1], 64
        s_load_dwordx2 s[{sWO}:{sWO+1}], s[0:1], 16
        s_load_dwordx2 s[{W1S}:{W1S+1}], s[0:1], 32
        s_load_dwordx2 s[{W2S}:{W2S+1}], s[0:1], 40
        s_load_dwordx2 s[{OS}:{OS+1}], s[0:1], 48
        s_load_dwordx2 s[{DS}:{DS+1}], s[0:1], 56
        v_lshrrev_b32 v1, 6, v0
        v_lshlrev_b32 v15, 4, v0
        v_and_b32 v0, 63, v0
        v_readfirstlane_b32 s{sWV}, v1
        v_lshlrev_b32 v1, 4, v0
        v_and_b32 v2, 15, v0
        v_lshrrev_b32 v3, 4, v0
        s_and_b32 s{sX}, s2, 7
        s_lshr_b32 s{sI}, s2, 3
        s_and_b32 s{sT0}, s{sX}, 1
        s_lshl_b32 s{sT0}, s{sT0}, 3
        s_and_b32 s{sT1}, s{sI}, 7
        s_add_u32 s{sR}, s{sT0}, s{sT1}
        s_lshr_b32 s{sT0}, s{sX}, 1
        s_lshl_b32 s{sT0}, s{sT0}, 2
        s_lshr_b32 s{sT1}, s{sI}, 3
        s_add_u32 s{sP}, s{sT0}, s{sT1}
        s_and_b32 s{sDL}, s{sP}, 1
        s_lshl_b32 s{sDL}, s{sDL}, 3
        """)
        for srd, size in ((WS, WS_SIZE), (XS, 2359296), (QS, 1990656), (W1S, 5308416), (W2S, 5308416), (DS, 256), (OS, 2359296)):
            k(f"s_mov_b32 s{srd+2}, {size}"); k(f"s_mov_b32 s{srd+3}, 0x20000")
        k(f"""
        s_lshl_b32 s{sT0}, s{sR}, 7
        s_lshl_b32 s{sT1}, s{sWV}, 5
        s_add_u32 s{sT0}, s{sT0}, s{sT1}
        s_mul_i32 s{sXB}, s{sT0}, 1152
        s_add_u32 s{sXB+1}, s{sXB}, 9216
        s_add_u32 s{sXB+2}, s{sXB}, {2*9216}
        s_add_u32 s{sXB+3}, s{sXB}, {3*9216}
        v_lshrrev_b32 v16, 3, v0
        v_and_b32 v17, 6, v16
        v_xor_b32 v17, v17, v0
        v_and_b32 v17, 7, v17
        s_movk_i32 s{sT1}, 1152
        v_mul_u32_u24 v12, s{sT1}, v16
        v_lshl_add_u32 v12, v17, 4, v12
        """)
        k(f"""
        s_and_b32 s{sT0}, s{sWV}, 1
        s_lshl_b32 s{sT0}, s{sT0}, 3
        v_lshl_add_u32 v16, v3, 1, s{sT0}
        v_sub_u32 v16, v2, v16
        v_and_b32 v16, 15, v16
        v_cmp_ne_u32 s[{sDM}:{sDM+1}], 15, v16
        v_mul_u32_u24 v17, 52, v16
        v_lshrrev_b32 v17, 8, v17
        s_movk_i32 s{sT1}, 1072
        v_mul_u32_u24 v17, s{sT1}, v17
        v_lshl_add_u32 v17, v16, 4, v17
        s_movk_i32 s{sT1}, 3456
        v_mul_u32_u24 v13, s{sT1}, v3
        s_mul_i32 s{sT0}, s{sWV}, 27648
        s_mul_i32 s{sT1}, s{sP}, 72
        s_add_u32 s{sT0}, s{sT0}, s{sT1}
        s_sub_u32 s{sT0}, s{sT0}, s{sDL}
        v_add3_u32 v13, v13, v17, s{sT0}
        s_lshl_b32 s{sDK}, s{sWV}, 11
        s_waitcnt lgkmcnt(0)
        """)
        if self.prof:
            k("v_mov_b32 v255, 0"); self.rt(62)
        self.ts("start")
        L = k.label("nz")
        k(f"s_cmp_lg_u32 s2, 0"); k(f"s_cbranch_scc1 {L}")
        for r in range(4): k(f"v_mov_b32 v{20+r}, 0")
        for n in range(ZERO_BYTES // 4096):
            k(f"s_movk_i32 s{sT0}, {n*4096}" if n * 4096 < 32768 else f"s_mov_b32 s{sT0}, {n*4096}")
            k(f"buffer_store_dwordx4 v[20:23], v15, {sr(WS,4)}, s{sT0} offen sc1")
        k(f"{L}:")

    def x_stage(self, s):
        k = self.k
        for j in range(4):
            k(f"s_add_u32 m0, s{sDK}, {(2*s + 2 + (j >> 1))*8192 + (j & 1)*1024 - 128*s}")
            k.vm(f"buffer_load_dwordx4 v12, {sr(XS,4)}, s{sXB+j} offen offset:{128*s} lds", ("x", s))
    def w_stage(self, s):
        k = self.k
        k(f"s_mov_b64 exec, s[{sDM}:{sDM+1}]")
        for kk in (2*s, 2*s+1):
            k(f"s_add_u32 m0, s{sDK}, {kk*8192}")
            k(f"s_mov_b32 s{sT0}, {kk*110592}"); k(f"s_mov_b32 s{sT1}, {kk*110592+13824-1024}")
            k.vm(f"buffer_load_dwordx4 v13, {sr(QS,4)}, s{sT0} offen lds", ("st", s))
            k.vm(f"buffer_load_dwordx4 v13, {sr(QS,4)}, s{sT1} offen offset:1024 lds", ("st", s))
        k("s_mov_b64 exec, -1")
    def w_touch(self):
        k = self.k
        k(f"""
        s_lshl_b32 s{sT0}, s{sI}, 2
        s_add_u32 s{sT0}, s{sT0}, s{sWV}
        s_mul_i32 s{sT0}, s{sT0}, 81
        s_lshr_b32 s{sT1}, s{sX}, 1
        s_lshl_b32 s{sT1}, s{sT1}, 8
        s_movk_i32 s{sT2}, 1152
        s_mov_b32 s{sT3}, 43691
        """)
        for h in range(2):
            k(f"""
            v_add_u32 v16, s{sT0}, v0
            v_mul_u32_u24 v17, s{sT3}, v16
            v_lshrrev_b32 v17, 18, v17
            v_mul_u32_u24 v18, 6, v17
            v_sub_u32 v18, v16, v18
            v_mul_u32_u24 v17, s{sT2}, v17
            v_lshl_add_u32 v17, v18, 6, v17
            """)
            if h: k("s_mov_b64 exec, 0x1ffff")
            k.vm(f"buffer_load_dword v{144+h}, v17, {sr(QS,4)}, s{sT1} offen", "touch")
            if h: k("s_mov_b64 exec, -1")
            else: k(f"s_add_u32 s{sT0}, s{sT0}, 64")
    def x_read(self, s):
        k = self.k
        if s in (4, 8):
            for a in (140, 141): k(f"v_add_u32 v{a}, 0x10000, v{a}")
        for h in range(2):
            for mt in range(2):
                k.ds(f"ds_read_b128 {ar(((2*s+h)*2+mt)*4,4)}, v{140+h} offset:{(s & 3)*16384 + mt*8192}", ("xr", s))
        if s < 8: self.ones()
    def ones(self):
        k = self.k
        k("s_mov_b64 exec, 0xffff")
        k.ds("ds_write_b128 v142, v[124:127]")
        k("s_mov_b64 exec, -1")
        k("v_add_u32 v142, 0x4000, v142")

    def setup_a(self):
        k = self.k
        for r in range(4): k(f"v_mov_b32 v{124+r}, {hex(ONE2)}")
        k(f"""
        s_and_b32 s{sT0}, s{sWV}, 1
        s_lshl_b32 s{sT0}, s{sT0}, 3
        s_add_u32 s{sT0}, s{sT0}, 15
        v_and_b32 v16, 3, v0
        v_lshl_add_u32 v16, v16, 1, s{sT0}
        v_and_b32 v16, 15, v16
        v_and_b32 v17, 7, v0
        v_lshlrev_b32 v18, 8, v17
        v_lshl_add_u32 v16, v16, 4, v18
        v_bfe_u32 v18, v0, 3, 1
        v_lshl_add_u32 v16, v18, 13, v16
        v_add_u32 v142, s{sDK}, v16
        v_and_b32 v16, 6, v0
        v_xor_b32 v16, v16, v3
        v_lshlrev_b32 v16, 4, v16
        v_lshl_add_u32 v16, v17, 7, v16
        v_lshl_add_u32 v143, v18, 10, v16
        s_add_u32 s{sT0}, s{sDK}, 16384
        v_add_u32 v140, s{sT0}, v143
        v_xor_b32 v141, 64, v140
        """)
        self.ones()
        k(f"""
        v_lshrrev_b32 v16, 2, v2
        v_and_b32 v17, 3, v0
        v_and_b32 v18, 1, v3
        v_lshl_add_u32 v18, v18, 2, v16
        v_lshlrev_b32 v18, 5, v18
        v_add_u32 v18, s{sDL}, v18
        v_lshl_add_u32 v19, v3, 3, v16
        v_lshlrev_b32 v19, 8, v19
        v_lshl_add_u32 v20, v17, 3, v18
        s_movk_i32 s{sT0}, 255
        """)
        for reg, off in ((4, 80), (5, 120), (6, 160), (7, 200), (9, 0), (10, 40)):
            k(f"v_add_u32 v21, {off}, v20"); k(f"v_and_or_b32 v{reg}, v21, s{sT0}, v19")
        k(f"v_add_u32 v21, 32, v18"); k(f"v_and_or_b32 v11, v21, s{sT0}, v19")
        k(f"""
        v_mov_b32 v21, 112
        v_mov_b32 v22, 192
        v_cmp_eq_u32 vcc, 3, v17
        v_cndmask_b32 v21, v21, v22, vcc
        s_sub_u32 s{sT1}, 248, s{sDL}
        v_mov_b32 v22, s{sT1}
        v_cmp_eq_u32 vcc, 0, v17
        v_cndmask_b32 v21, v21, v22, vcc
        v_add_u32 v21, v21, v18
        v_and_or_b32 v8, v21, s{sT0}, v19
        """)
        for reg, bits, one in ((248, 0x111, 1), (249, 0x3000, 0), (250, 0x222, 1), (251, 0xC000, 0),
                               (252, 0x30, 0), (253, 0xC00, 0), (254, 0x300, 0), (131, 0xC0, 0)):
            k(f"s_mov_b32 s{sT1}, {hex(bits)}"); k(f"v_bfe_i32 v{reg}, s{sT1}, v2, 1")
            if one: k(f"v_and_b32 v{reg}, {hex(ONE2)}, v{reg}")
        k(f"s_mov_b32 s{sPE}, 0x05040100"); k(f"s_mov_b32 s{sPO}, 0x07060302")

    def lane_off(self, t, c1, c2):
        k = self.k
        k(f"""
        v_and_b32 v16, 1, v3
        v_lshrrev_b32 v17, 1, v3
        v_mul_lo_u32 v16, v16, s{c1}
        v_mul_lo_u32 v17, v17, s{c2}
        v_lshlrev_b32 v18, 3, v2
        v_add3_u32 v{128+t}, v16, v17, v18
        """)
    def p_w1(self, t, n):
        k = self.k; b = sRL + 5*t; A, B, C, D = sT0, sT1, sT2, sT3
        k(f"""
        s_mul_i32 s{A}, s{n}, 205
        s_lshr_b32 s{A}, s{A}, 10
        s_mul_i32 s{B}, s{A}, 5
        s_sub_u32 s{B}, s{n}, s{B}
        s_cmp_eq_u32 s{B}, 4
        s_cselect_b32 s{B}, 8, s{B}
        s_sub_u32 s{C}, s{n}, 90
        s_and_b32 s{D}, s{C}, 3
        s_add_u32 s{D}, s{D}, 4
        s_lshr_b32 s{C}, s{C}, 2
        s_cmp_lt_u32 s{n}, 90
        s_cselect_b32 s{A}, s{A}, s{C}
        s_cselect_b32 s{B}, s{B}, s{D}
        s_lshr_b32 s{C}, s{A}, 1
        s_lshl_b32 s{C}, s{C}, 6
        s_and_b32 s{D}, s{A}, 1
        s_lshl_b32 s{D}, s{D}, 1
        s_add_u32 s{C}, s{C}, s{D}
        s_mul_i32 s{C}, s{C}, 9216
        s_lshl_b32 s{B}, s{B}, 7
        s_add_u32 s{C}, s{C}, s{B}
        s_mul_i32 s{D}, s{sX}, 1152
        s_add_u32 s{b}, s{C}, s{D}
        s_mov_b32 s{b+1}, {4*9216}
        s_mov_b32 s{b+2}, {16*9216 - 12*9216}
        s_mul_i32 s{C}, s{sX}, {4*324*1024}
        s_lshl_b32 s{D}, s{n}, 10
        s_add_u32 s{C}, s{C}, s{D}
        s_add_u32 s{b+3}, s{C}, {WT}
        s_mov_b32 s{b+4}, {324*1024}
        s_mov_b32 s{A}, {32*9216}
        s_mov_b32 s{B}, 9216
        """)
    def p_w2(self, t, n):
        k = self.k; b = sRL + 5*t; A, B, C, D, E = sT0, sT1, sT2, sT3, sT4
        k(f"""
        s_cmp_ge_u32 s{n}, 54
        s_cselect_b32 s{A}, 54, 0
        s_cselect_b32 s{B}, 3, 0
        s_sub_u32 s{A}, s{n}, s{A}
        s_mul_i32 s{C}, s{A}, 171
        s_lshr_b32 s{C}, s{C}, 9
        s_mul_i32 s{D}, s{C}, 3
        s_sub_u32 s{A}, s{A}, s{D}
        s_add_u32 s{B}, s{B}, s{A}
        s_sub_u32 s{A}, s{n}, 108
        s_and_b32 s{D}, s{A}, 1
        s_add_u32 s{D}, s{D}, 6
        s_lshr_b32 s{A}, s{A}, 1
        s_cmp_ge_u32 s{n}, 108
        s_cselect_b32 s{C}, s{A}, s{C}
        s_cselect_b32 s{B}, s{D}, s{B}
        s_sub_u32 s{A}, s{n}, 144
        s_cmp_ge_u32 s{n}, 144
        s_cselect_b32 s{C}, s{A}, s{C}
        s_cselect_b32 s{B}, 8, s{B}
        s_add_u32 s{A}, s{sX}, s{B}
        s_and_b32 s{A}, s{A}, 7
        s_cmp_eq_u32 s{B}, 0
        s_cselect_b32 s{A}, 8, s{A}
        s_lshl_b32 s{A}, s{A}, 7
        s_add_u32 s{B}, s{C}, 8
        s_sub_u32 s{D}, s{C}, 2
        s_cmp_lt_u32 s{C}, 10
        s_cselect_b32 s{B}, s{B}, s{D}
        s_cmp_lt_u32 s{C}, 8
        s_cselect_b32 s{C}, s{C}, s{B}
        s_lshr_b32 s{B}, s{C}, 2
        s_lshl_b32 s{B}, s{B}, 7
        s_and_b32 s{D}, s{C}, 3
        s_add_u32 s{B}, s{B}, s{D}
        s_lshl_b32 s{D}, s{C}, 1
        s_add_u32 s{D}, s{D}, 480
        s_mov_b32 s{E}, {1152 - 12*1152 + (1 << 32)}
        s_cmp_lt_u32 s{C}, 16
        s_cselect_b32 s{B}, s{B}, s{D}
        s_cselect_b32 s{b+2}, {64*1152 - 12*1152}, s{E}
        s_mul_i32 s{D}, s{sX}, 576
        s_add_u32 s{B}, s{B}, s{D}
        s_mul_i32 s{B}, s{B}, 1152
        s_add_u32 s{b}, s{B}, s{A}
        s_mov_b32 s{b+1}, {4*1152}
        s_mul_i32 s{C}, s{sX}, {4*324*1024}
        s_lshl_b32 s{D}, s{n}, 10
        s_add_u32 s{C}, s{C}, s{D}
        s_add_u32 s{b+3}, s{C}, {WT + 162*1024}
        s_mov_b32 s{b+4}, {324*1024}
        s_mov_b32 s{A}, {16*1152}
        s_mov_b32 s{B}, {32*1152}
        """)
    def p_wo(self, t, n):
        k = self.k; b = sRL + 5*t; A, B, C, D, E = sT0, sT1, sT2, sT3, sT4
        k(f"""
        s_mul_i32 s{A}, s{n}, 57
        s_lshr_b32 s{A}, s{A}, 10
        s_mul_i32 s{B}, s{A}, 18
        s_sub_u32 s{B}, s{n}, s{B}
        s_mul_i32 s{C}, s{A}, {4*18*1024}
        s_lshl_b32 s{D}, s{B}, 10
        s_add_u32 s{C}, s{C}, s{D}
        s_add_u32 s{b+3}, s{C}, {WOT}
        s_mov_b32 s{b+4}, {18*1024}
        s_mul_i32 s{C}, s{B}, 36
        s_mul_i32 s{D}, s{B}, 288
        s_sub_u32 s{D}, s{D}, {288*16 - 16}
        s_mov_b32 s{E}, {33*1152}
        s_cmp_lt_u32 s{B}, 16
        s_cselect_b32 s{C}, s{C}, s{D}
        s_cselect_b32 s{b+2}, {17*1152}, s{E}
        s_mov_b32 s{E}, {72*1152}
        s_cselect_b32 s{E}, {4*1152}, s{E}
        s_mul_i32 s{C}, s{C}, 1152
        s_lshl_b32 s{A}, s{A}, 7
        s_add_u32 s{b}, s{C}, s{A}
        s_mov_b32 s{b+1}, 1152
        s_mov_b32 s{A}, s{E}
        s_lshl_b32 s{B}, s{E}, 1
        """)
    def relay_params(self, early):
        k = self.k; n = sT5
        k(f"s_lshl_b32 s{n}, s{sI}, 2"); k(f"s_add_u32 s{n}, s{n}, s{sWV}")
        LB, LD = k.label("tb"), k.label("td")
        k(f"s_mov_b32 s{T2S+3}, 0x20000")
        if early:
            k(f"""
            s_cmp_lt_u32 s{n}, 107
            s_cselect_b64 s[{T2S}:{T2S+1}], s[{W1S}:{W1S+1}], s[{sWO}:{sWO+1}]
            s_mov_b32 s{T2S+2}, 663552
            s_cselect_b32 s{T2S+2}, 5308416, s{T2S+2}
            s_mov_b32 s{sV2}, 1
            s_cbranch_scc0 {LB}
            """)
            self.p_w1(0, n); k(f"s_branch {LD}"); k(f"{LB}:")
            k(f"""
            s_sub_u32 s{n}, s{n}, 107
            s_lshl_b32 s{n}, s{n}, 3
            s_add_u32 s{n}, s{n}, s{sX}
            s_cmp_lt_u32 s{n}, 162
            s_cselect_b32 s{sV2}, 1, 0
            s_cselect_b32 s{n}, s{n}, 0
            """)
            self.p_wo(0, n); self.void(0, sV2); k(f"{LD}:")
            self.lane_off(0, sT0, sT1)
        else:
            self.p_w2(1, n); self.lane_off(1, sT0, sT1)
            k(f"""
            s_cmp_lt_u32 s{n}, 89
            s_cselect_b32 s{sV3}, 1, 0
            s_cmp_lt_u32 s{n}, 55
            s_cselect_b64 s[{T2S}:{T2S+1}], s[{W1S}:{W1S+1}], s[{W2S}:{W2S+1}]
            s_mov_b32 s{T2S+2}, 5308416
            s_cbranch_scc0 {LB}
            s_add_u32 s{n}, s{n}, 107
            """)
            self.p_w1(2, n); k(f"s_branch {LD}"); k(f"{LB}:")
            k(f"s_add_u32 s{n}, s{n}, 73"); k(f"s_min_u32 s{n}, s{n}, 161")
            self.p_w2(2, n); self.void(2, sV3); k(f"{LD}:")
            self.lane_off(2, sT0, sT1)
    def void(self, t, valid):
        k = self.k; b = sRL + 5*t
        k(f"s_cmp_eq_u32 s{valid}, 0")
        k(f"s_cselect_b32 s{b}, 0x7f000000, s{b}"); k(f"s_cselect_b32 s{b+3}, 0x7f000000, s{b+3}")
    def relay_loads(self, t):
        k = self.k; b = sRL + 5*t; srd = (T2S, W2S, T2S)[t]
        k(f"s_mov_b32 s{sT2}, s{b}")
        for s in range(8):
            k.vm(f"buffer_load_dwordx2 {vr(200+16*t+2*s,2)}, v{128+t}, {sr(srd,4)}, s{sT2} offen", ("rl", t))
            if s < 7: k(f"s_add_u32 s{sT2}, s{sT2}, s{b+2 if s == 3 else b+1}")
    def relay_stores(self, t, tmp):
        k = self.k; b = sRL + 5*t
        k(f"s_mov_b32 s{sT2}, s{b+3}")
        for e in range(4):
            o = tmp + 4*e
            for d in range(4):
                lo = 200+16*t+2*(2*d)+(e >> 1); hi = lo + 2
                k(f"v_perm_b32 v{o+d}, v{hi}, v{lo}, s{sPO if e & 1 else sPE}")
            k.vm(f"buffer_store_dwordx4 {vr(o,4)}, v1, {sr(WS,4)}, s{sT2} offen sc1", ("rs", t))
            if e < 3: k(f"s_add_u32 s{sT2}, s{sT2}, s{b+4}")

    def tr_reads(self, kk, addrs, buf):
        k = self.k; out = []
        for T, a in enumerate(addrs):
            for h in range(2):
                off = (kk & 7) * 8192 + 1024 * h
                out.append(lambda T=T, a=a, h=h, off=off: k.ds(
                    f"ds_read_b64_tr_b16 {vr(buf+4*T+2*h,2)}, v{a} offset:{off}", ("b", kk)))
        return out
    def bump(self, addrs):
        for a in addrs: self.k(f"v_add_u32 v{a}, 0x10000, v{a}")

    def phase_a(self):
        k = self.k
        if OPT["touch"]: self.w_touch()
        self.w_stage(0)
        for s in range(9): self.x_stage(s)
        self.ts("issued")
        self.relay_params(True); self.relay_loads(0)
        self.setup_a()
        self.relay_params(False)
        self.ts("setup")
        KA = [4, 5, 6, 7, 8]
        for s in range(9):
            k.wait(vm=("x", s))
            if s == 0:
                self.ts("x0")
                L = k.label("ng")
                k("s_cmp_lg_u32 s2, 0"); k(f"s_cbranch_scc1 {L}"); k("s_barrier")
                k("v_mov_b32 v16, 1"); k("v_mov_b32 v17, 0"); k("s_mov_b64 exec, 1")
                k(f"buffer_store_dword v16, v17, {sr(DS,4)}, 0 offen sc1"); k("s_mov_b64 exec, -1"); k(f"{L}:")
            self.x_read(s)
            if s > 0: k.wait(ds=[("xr", s - 1)]); self.w_stage(s)
        self.ts("x8")
        k.wait(vm=("rl", 0)); self.relay_stores(0, 184)
        k.wait(ds="all"); k("s_barrier")
        self.ts("A.first")
        for f in self.tr_reads(0, KA, 64): f()
        for kk in range(18):
            buf = 64 + 20 * (kk & 1)
            fill = []
            if kk + 1 < 18:
                if (kk + 1) % 2 == 0:
                    fill.append(lambda s=(kk+1)//2: (k.wait(vm=("st", s)), k("s_barrier")))
                if (kk + 1) % 8 == 0: fill.append(lambda: self.bump(KA))
                fill += self.tr_reads(kk + 1, KA, 64 + 20 * ((kk + 1) & 1))
            if kk in (6, 8): fill.append(lambda t=(kk-4)//2: self.relay_loads(t))
            if kk == 4:
                fill.append(lambda: (k("v_mov_b32 v14, 0"), k.vm(f"buffer_load_dword v14, v14, {sr(DS,4)}, 0 offen sc1", "gate")))
            k.wait(ds=[("b", kk)])
            ms = []
            for T in range(5):
                for mt in range(2):
                    d = vr(16 + 8*T + 4*mt, 4)
                    ms.append((d, ar((kk*2+mt)*4, 4), vr(buf + 4*T, 4), d if kk else None))
            for mt in range(2):
                d = vr(56 + 4*mt, 4); xa = ar((kk*2+mt)*4, 4)
                ms.append((d, xa, xa, d if kk else None))
            for m in ms:
                self.mfma(*m)
                if fill: fill.pop(0)()
            L = k.label("cs")
            k(f"s_cmp_lg_u32 s{sWV}, {kk & 3}"); k(f"s_cbranch_scc1 {L}")
            for T in range(5):
                d = vr(104 + 4*T, 4); self.mfma(d, "v[124:127]", vr(buf + 4*T, 4), d if kk >= 4 else None)
            k(f"{L}:")
            while fill: fill.pop(0)()
        self.ts("A.kloop")
        k(f"""
        s_lshl_b32 s{sT0}, s{sWV}, 8
        s_add_u32 s{sT0}, s{sT0}, {ST}
        v_lshl_add_u32 v132, v3, 4, s{sT0}
        v_lshl_add_u32 v133, v2, 2, s{sT0}
        s_lshl_b32 s{sT0}, s{sWV}, 2
        s_add_u32 s{sT0}, s{sT0}, {CS}
        v_lshl_add_u32 v134, v2, 4, s{sT0}
        v_lshlrev_b32 v135, 4, v2
        v_add_u32 v135, {CS}, v135
        """)
        self.setexec(0x0001000100010001)
        for mt in range(2): k.ds(f"ds_write_b128 v132, {vr(48+4*mt,4)} offset:{128*mt}")
        for r in range(4):
            self.setexec(0x1000010000100001 << r)
            for mt in range(2): k.ds(f"ds_write_b32 v133, v{56+4*mt+r} offset:{64+128*mt}")
        self.setexec(0xffff)
        for T in range(5): k.ds(f"ds_write_b32 v134, v{104+4*T} offset:{256*T}")
        self.setexec(-1)
        Lg, Ld = k.label("gate"), k.label("gated")
        k.wait(vm="gate")
        k(f"v_cmp_ne_u32 vcc, 1, v14"); k(f"s_cbranch_vccz {Ld}")
        k("v_mov_b32 v15, 0"); sv = list(k.vq); self.poll(15, "0", 14, srd=DS); k.vq = sv
        k(f"{Ld}:")
        k.wait(ds="all"); k("s_barrier")
        L = k.label("fw")
        k(f"s_cmp_lg_u32 s{sWV}, 0"); k(f"s_cbranch_scc1 {L}")
        k(f"s_lshl_b32 s{sT0}, s2, 2"); k(f"s_add_u32 s{sT0}, s{sT0}, {FW}")
        k("v_mov_b32 v14, 1"); k("v_mov_b32 v15, 0")
        k("s_mov_b64 exec, 1"); k(f"buffer_store_dword v14, v15, {sr(WS,4)}, s{sT0} offen sc1"); k("s_mov_b64 exec, -1")
        k(f"{L}:")
        for mt in range(2):
            k.ds(f"ds_read_b128 {vr(136+8*mt,4)}, v132 offset:{128*mt}", ("s", mt))
            k.ds(f"ds_read_b128 {vr(140+8*mt,4)}, v132 offset:{128*mt+64}", ("s", mt))
        for T in range(5): k.ds(f"ds_read_b128 {vr(104+4*T,4)}, v135 offset:{256*T}", ("c", T))
        k(f"s_mov_b32 s{sC0}, {hex(f2u(-1/576))}"); k(f"s_mov_b32 s{sC1}, {hex(f2u(1/576))}")
        k(f"s_mov_b32 s{sC2}, {hex(f2u(1.4426950408889634))}"); k(f"s_mov_b32 s{sC3}, {hex(f2u(1e-6))}")
        k(f"v_mov_b32 v15, {hex(f2u(1e-5))}")
        NM = lambda mt, r: 136 + 8*mt + r
        RS = lambda mt, r: 140 + 8*mt + r
        RLg = lambda mt, r: 152 + 4*mt + r
        for mt in range(2):
            k.wait(ds=[("s", mt)])
            self.stats([(NM(mt, r), RS(mt, r), RLg(mt, r)) for r in range(4)])
        for T in range(5):
            k.wait(ds=[("c", T)]); c = 104 + 4*T
            k(f"v_add_f32 v{c}, v{c}, v{c+1}"); k(f"v_add_f32 v{c+2}, v{c+2}, v{c+3}"); k(f"v_add_f32 v{c}, v{c}, v{c+2}")
        k(f"s_mov_b32 s{sMK}, 0xf000f000"); k(f"s_mov_b32 s{sMK+1}, 0xf000f000")
        PK = lambda T: 160 + 4*T
        for T in (0, 2, 1, 3, 4):
            for mt in range(2):
                el = [(16 + 8*T + 4*mt + r, NM(mt, r), 104 + 4*T, RS(mt, r), RLg(mt, r)) for r in range(4)]
                self.affine(el, phi=T in (0, 1, 4), keep=(T == 4), tmp=64)
                for h in range(2):
                    a = 16 + 8*T + 4*mt + 2*h
                    k(f"v_cvt_pk_bf16_f32 v{PK(T)+2*mt+h}, v{a}, v{a+1}")
            if T == 2: self.mfma("v[16:19]", vr(PK(0), 4), vr(PK(2), 4))
            if T == 3: self.mfma("v[20:23]", vr(PK(1), 4), vr(PK(3), 4))
        X = PK(4); BA, BB, AC, AD, AEA, AEB = 72, 76, 80, 84, 88, 92
        for d in range(4): k(f"v_and_or_b32 v{BA+d}, v{X+d}, v249, v248")
        for d in range(4): k(f"v_and_b32 v{AC+d}, v{X+d}, v252")
        self.mfma("v[24:27]", vr(PK(0), 4), vr(BA, 4))
        for d in range(4): k(f"v_and_or_b32 v{BB+d}, v{X+d}, v251, v250")
        self.mfma("v[28:31]", vr(AC, 4), vr(PK(2), 4))
        for d in range(4): k(f"v_and_b32 v{AD+d}, v{X+d}, v253")
        self.mfma("v[24:27]", vr(PK(1), 4), vr(BB, 4), "v[24:27]")
        for d in range(4): k(f"v_and_b32 v{AEA+d}, v{X+d}, v254")
        self.mfma("v[28:31]", vr(AD, 4), vr(PK(3), 4), "v[28:31]")
        for d in range(4): k(f"v_and_b32 v{AEB+d}, v{X+d}, v131")
        self.mfma("v[28:31]", vr(AEA, 4), vr(BA, 4), "v[28:31]")
        self.mfma("v[28:31]", vr(AEB, 4), vr(BB, 4), "v[28:31]")
        self.ts("A.epi")
        k(f"v_add_u32 v134, {AUX}, v1")
        LD = k.label("kvd"); labs = [k.label("kv") for _ in range(4)]
        for w in range(4):
            k(f"{labs[w]}:")
            if w < 3: k(f"s_cmp_lg_u32 s{sWV}, {w}"); k(f"s_cbranch_scc1 {labs[w+1]}")
            for T in range(4):
                if T != w: k(f"ds_write_b128 v134, {vr(16+4*T,4)} offset:{T*3072 + ((w-T-1) & 3)*1024}")
            for r in range(4): k(f"v_mov_b32 v{32+r}, v{16+4*w+r}")
            if w < 3: k(f"s_branch {LD}")
        k(f"{LD}:")
        k(f"s_mul_i32 s{sT0}, s{sWV}, 3072"); k(f"v_add_u32 v134, s{sT0}, v134")
        k("s_waitcnt lgkmcnt(0)"); k.lq = []; k("s_barrier")
        for q in range(3): k.ds(f"ds_read_b128 {vr(16+4*q,4)}, v134 offset:{q*1024}", ("r", q))
        k(f"""
        s_lshl_b32 s{sT0}, s{sP}, 4
        s_add_u32 s{sT0}, s{sT0}, s{sR}
        s_lshl_b32 s{sT0}, s{sT0}, 2
        s_add_u32 s{sT0}, s{sT0}, s{sWV}
        s_lshl_b32 s{sT0}, s{sT0}, 10
        s_add_u32 s{sT0}, s{sT0}, {KVP}
        """)
        for q in range(3):
            k.wait(ds=[("r", q)])
            for r in range(4): k(f"v_add_f32 v{32+r}, v{32+r}, v{16+4*q+r}")
        k.vm(f"buffer_store_dwordx4 v[32:35], v1, {sr(WS,4)}, s{sT0} offen sc1", "kvp")
        self.ts("A.kvst")

    def stats(self, L):
        k = self.k
        for a, b, c in L: k(f"v_mul_f32 v{a}, s{sC0}, v{a}")
        for a, b, c in L: k(f"v_fma_f32 v{b}, v{b}, s{sC1}, v15")
        for a, b, c in L: k(f"v_fma_f32 v{b}, -v{a}, v{a}, v{b}")
        for a, b, c in L: k(f"v_max_f32 v{b}, v{b}, v15")
        for a, b, c in L: k(f"v_rsq_f32 v{b}, v{b}")
        for a, b, c in L:
            if c is not None: k(f"v_mul_f32 v{c}, s{sC2}, v{b}")
    def affine(self, el, phi, keep, tmp):
        k = self.k
        for a, nm, cs, rs, rl in el: k(f"v_fma_f32 v{a}, v{nm}, v{cs}, v{a}")
        if not phi:
            for a, nm, cs, rs, rl in el: k(f"v_mul_f32 v{a}, v{a}, v{rs}")
            return
        for n, (a, nm, cs, rs, rl) in enumerate(el): k(f"v_mul_f32 v{tmp+n}, v{a}, v{rl}")
        if keep:
            for n, (a, nm, cs, rs, rl) in enumerate(el): k(f"v_mul_f32 v{tmp+4+n}, v{a}, v{rs}")
        for n, (a, nm, cs, rs, rl) in enumerate(el): k(f"v_exp_f32 v{tmp+n}, v{tmp+n} clamp")
        for a, nm, cs, rs, rl in el: k(f"v_fma_f32 v{a}, v{a}, v{rs}, s{sC3}")
        for a, nm, cs, rs, rl in el: k(f"v_max_f32 v{a}, s{sC3}, v{a}")
        for n, (a, nm, cs, rs, rl) in enumerate(el): k(f"v_add_f32 v{a}, v{a}, v{tmp+n}")
        if keep:
            for n, (a, nm, cs, rs, rl) in enumerate(el):
                k(f"v_cndmask_b32 v{a}, v{a}, v{tmp+4+n}, s[{sMK}:{sMK+1}]")

    def finish(self):
        k = self.k
        if self.prof:
            self.ts("end"); self.rt(63)
            k(f"""
            s_lshl_b32 s{sT0}, s2, 2
            s_add_u32 s{sT0}, s{sT0}, s{sWV}
            s_lshl_b32 s{sT0}, s{sT0}, 8
            s_add_u32 s{sT0}, s{sT0}, {PROF}
            v_lshlrev_b32 v4, 2, v0
            buffer_store_dword v255, v4, {sr(WS,4)}, s{sT0} offen
            """)
            if self.dbgwg is not None:
                k(f"s_cmp_lg_u32 s2, {self.dbgwg}"); k("s_cbranch_scc1 L_nd")
                k(f"s_cmp_lg_u32 s{sWV}, 0"); k("s_cbranch_scc1 L_nd")
                k("v_readlane_b32 s3, v255, 0"); k("v_subrev_u32 v255, s3, v255")
                k("s_mov_b64 exec, 0xfffe")
                k(f"buffer_store_dword v255, v4, {sr(DS,4)}, 0 offen"); k("L_nd:")
        k("s_waitcnt vmcnt(0)"); k("L_end:"); k("s_endpgm")


def build(stop=None, prof=False, only=None, dbgwg=None):
    from gen2 import hop1, phase_b, phase_f
    g = G(stop, prof); g.only = only; g.dbgwg = dbgwg
    g.prologue(); g.phase_a()
    for name, fn in (("q", hop1), ("b", phase_b), ("f", phase_f)):
        if stop == "pre" + name: break
        fn(g)
    g.finish()
    hdr = "".join(open("cdna_kernels/" + NAME + ".s.ref").readlines()[:12]) if True else ""
    txt = g.k.text(hdr, NAME + "_kernel", 256, 256, 102, (256, 1, 1), (256, 1, 1), 163840)
    return txt, g

if __name__ == "__main__":
    out = sys.argv[1]; stop = sys.argv[2] if len(sys.argv) > 2 and sys.argv[2] != "-" else None
    prof = len(sys.argv) > 3
    txt, g = build(stop, prof)
    open(out, "w").write(txt)
    import json; json.dump(g.tsn, open(out + ".ts.json", "w"))
    print("lines", txt.count("\n"), "bytes", len(txt), "nop states", g.k.nops)
```

```python
from kgen import *
import gen as _g
from gen import *

NP1, NP2A = 24, 16
RING = 60
XRB = 81920
WOA = 96

def ring_load(g, seq):
    k = g.k
    if seq % 4 == 0:
        k(f"s_add_u32 s{sA0}, s{sA1}, {seq*1024}")
    k.vm(f"buffer_load_dwordx4 {ar(4*(seq % RING),4)}, v1, {sr(WS,4)}, s{sA0} offen offset:{(seq % 4)*1024} sc1", ("w", seq))

def hop1(g):
    k = g.k
    QA = [9, 10, 11]
    for f in g.tr_reads(0, QA, 64): f()
    k(f"""
    s_lshr_b32 s{sT0}, s{sI}, 3
    s_lshl_b32 s{sBR}, s{sX}, 2
    s_add_u32 s{sBR}, s{sBR}, s{sT0}
    s_and_b32 s{sBC}, s{sI}, 7
    v_mov_b32 v14, 1
    v_mov_b32 v6, 0
    """)
    if OPT["fmap"]:
        k(f"""
        s_and_b32 s{sJ}, s{sX}, 6
        s_and_b32 s{sT0}, s{sI}, 1
        s_add_u32 s{sJ}, s{sJ}, s{sT0}
        s_and_b32 s{sRF}, s{sX}, 1
        s_lshl_b32 s{sRF}, s{sRF}, 4
        s_lshr_b32 s{sT0}, s{sI}, 1
        s_add_u32 s{sRF}, s{sRF}, s{sT0}
        """)
    else:
        k(f"s_mov_b32 s{sJ}, s{sX}"); k(f"s_mov_b32 s{sRF}, s{sI}")
    k(f"""
    s_lshl_b32 s{sT3}, s{sP}, 8
    s_lshl_b32 s{sT0}, s{sWV}, 6
    s_add_u32 s{sT3}, s{sT3}, s{sT0}
    s_lshl_b32 s{sT0}, s{sR}, 2
    s_add_u32 s{sT4}, s{sT3}, s{sT0}
    """)
    g.ts("Q.start")
    for kk in range(18):
        buf = 64 + 12 * (kk & 1); fill = []
        if kk + 1 < 18:
            if (kk + 1) % 8 == 0: fill.append(lambda: g.bump(QA))
            fill += g.tr_reads(kk + 1, QA, 64 + 12 * ((kk + 1) & 1))
        else:
            for mt in range(2):
                fill.append(lambda mt=mt: k.ds(f"ds_read_b32 v{136+mt}, v133 offset:{128*mt}", "qs"))
                fill.append(lambda mt=mt: k.ds(f"ds_read_b32 v{138+mt}, v133 offset:{128*mt+64}", "qs"))
        if kk == 3: fill.append(lambda: (k.wait(vm="kvp"), g.flag(f"s{sT4}", 14, 6)))
        k.wait(ds=[("b", kk)])
        ms = []
        for T in range(3):
            for mt in range(2):
                d = vr(16 + 8*T + 4*mt, 4)
                ms.append((d, vr(buf + 4*T, 4), ar((kk*2+mt)*4, 4), d if kk else None))
            d = vr(40 + 4*T, 4); ms.append((d, vr(buf + 4*T, 4), "v[124:127]", d if kk else None))
        for m in ms:
            g.mfma(*m)
            if fill: fill.pop(0)()
        while fill: fill.pop(0)()
    k.wait(ds=["qs"])
    g.stats([(136 + mt, 138 + mt, 140 + mt) for mt in range(2)])
    for T in range(3):
        for mt in range(2):
            el = [(16 + 8*T + 4*mt + r, 136 + mt, 40 + 4*T + r, 138 + mt, 140 + mt) for r in range(4)]
            g.affine(el, phi=True, keep=False, tmp=64)
            dst = 144 + 4*mt + 2*T if T < 2 else 152 + 2*mt
            for h in range(2):
                a = 16 + 8*T + 4*mt + 2*h
                k(f"v_cvt_pk_bf16_f32 v{dst+h}, v{a}, v{a+1}")
    for reg, bits in ((248, 0x3111), (249, 0xC222)):
        k(f"s_mov_b32 s{sT1}, {hex(bits)}"); k(f"v_bfe_i32 v{reg}, s{sT1}, v2, 1")
    k("v_bfe_i32 v250, 2, v3, 1"); k("v_bfe_i32 v251, 4, v3, 1")
    k(f"""
    v_lshlrev_b32 v134, 2, v2
    s_lshl_b32 s{sT0}, s{sP}, 16
    s_lshl_b32 s{sT1}, s{sWV}, 10
    s_add_u32 s{sT0}, s{sT0}, s{sT1}
    s_add_u32 s{sT0}, s{sT0}, {KVP}
    s_lshl_b32 s{sT1}, s{sWV}, 9
    s_add_u32 s{sT1}, s{sT1}, {KVX}
    v_lshl_add_u32 v132, v0, 3, s{sT1}
    v_lshlrev_b32 v133, 3, v0
    v_add_u32 v133, {KVX}, v133
    """)
    g.ts("Q.end")
    g.poll(134, f"s{sT3}", 136)
    g.ts("FK.seen")
    for q in range(16):
        k.vm(f"buffer_load_dwordx4 {vr(64+4*q,4)}, v1, {sr(WS,4)}, s{sT0} offen sc1", ("kv", q))
        if q < 15: k(f"s_add_u32 s{sT0}, s{sT0}, 4096")
    k(f"s_movk_i32 s{sT0}, {FW}")
    k.vm(f"buffer_load_dwordx4 v[168:171], v1, {sr(WS,4)}, s{sT0} offen sc1", "fw")
    k(f"""
    s_lshl_b32 s{sT0}, s{sBR}, 6
    s_lshl_b32 s{sT1}, s{sWV}, 4
    s_add_u32 s{sT1}, s{sT1}, s{sT0}
    s_mul_i32 s{sT1}, s{sT1}, 1152
    s_lshl_b32 s{sT2}, s{sBC}, 7
    s_add_u32 s{sXB}, s{sT1}, s{sT2}
    s_add_u32 s{sXB+1}, s{sXB}, 9216
    s_lshr_b32 s{sT1}, s{sBC}, 1
    s_lshl_b32 s{sT1}, s{sT1}, 4
    s_add_u32 s{sT0}, s{sT0}, s{sT1}
    s_lshl_b32 s{sT1}, s{sWV}, 3
    s_add_u32 s{sT0}, s{sT0}, s{sT1}
    s_mul_i32 s{sT0}, s{sT0}, 1152
    s_add_u32 s{sXB+2}, s{sT0}, 1024
    s_cmp_lt_u32 s{sWV}, 2
    s_cselect_b32 s{sXB+2}, s{sXB+2}, 0x7f000000
    """)
    for q in range(1, 16):
        k.wait(vm=("kv", q)); d = 64 + 4*(q & 1 if q > 1 else 0)
        if q == 1: continue
        for h in range(2): k(f"v_pk_add_f32 {vr(d+2*h,2)}, {vr(d+2*h,2)}, {vr(64+4*q+2*h,2)}")
    for h in range(2): k(f"v_pk_add_f32 {vr(64+2*h,2)}, {vr(64+2*h,2)}, {vr(68+2*h,2)}")
    k("v_cvt_pk_bf16_f32 v160, v64, v65"); k("v_cvt_pk_bf16_f32 v161, v66, v67")
    k.ds("ds_write_b64 v132, v[160:161]")
    k.wait(ds="all"); k("s_barrier")
    for T in range(4): k.ds(f"ds_read_b64 {vr(160+2*T,2)}, v133 offset:{512*T}", ("x", T))
    for j in range(3):
        k(f"s_add_u32 m0, s{sDK}, {XRB + 1024*j}" if j < 2 else f"s_lshr_b32 s{sT0}, s{sDK}, 1")
        if j == 2: k(f"s_add_u32 m0, s{sT0}, {XRB + 8192}")
        k.vm(f"buffer_load_dwordx4 v12, {sr(XS,4)}, s{sXB+j} offen lds", "xr")
    k(f"""
    s_lshl_b32 s{sT0}, s{sR}, 1
    s_lshr_b32 s{sT1}, s{sWV}, 1
    s_add_u32 s{sT0}, s{sT0}, s{sT1}
    s_lshl_b32 s{sT4}, s{sT0}, 7
    s_mul_i32 s{sT0}, s{sT0}, 73728
    s_and_b32 s{sT1}, s{sWV}, 1
    s_lshl_b32 s{sT2}, s{sT1}, 11
    s_add_u32 s{sT0}, s{sT0}, s{sT2}
    s_add_u32 s{sT0}, s{sT0}, {OB}
    s_lshl_b32 s{sT1}, s{sT1}, 2
    s_add_u32 s{sT4}, s{sT4}, s{sT1}
    s_lshl_b32 s{sT1}, s{sP}, 3
    s_add_u32 s{sT4}, s{sT4}, s{sT1}
    s_add_u32 s{sT4}, s{sT4}, {FO}
    s_lshr_b32 s{sT1}, s{sP}, 3
    s_add_u32 s{sT1}, s{sT1}, 16
    s_lshl_b32 s{sT1}, s{sT1}, 12
    s_and_b32 s{sT2}, s{sP}, 6
    s_lshl_b32 s{sT2}, s{sT2}, 7
    s_add_u32 s{sT1}, s{sT1}, s{sT2}
    s_add_u32 s{sT1}, s{sT1}, s{sDL}
    s_add_u32 s{sT1}, s{sT1}, s{sT0}
    s_lshl_b32 s{sT2}, s{sP}, 12
    s_add_u32 s{sT0}, s{sT0}, s{sT2}
    v_lshlrev_b32 v134, 4, v2
    """)
    T0, T1, O1, O2 = 160, 162, 164, 166
    AF, A0L, A1L, AFL = 56, 60, 62, 64
    E = lambda q, mt: 16 + 12*mt + 4*q
    k.wait(ds=[("x", 1)])
    for mt in range(2):
        g.mfma(vr(E(0, mt), 4), vr(T0, 2), vr(144 + 4*mt, 2), k16=True)
        g.mfma(vr(E(1, mt), 4), vr(T1, 2), vr(146 + 4*mt, 2), k16=True)
    k.wait(ds=[("x", 3)])
    k(f"""
    v_mov_b32 v61, 0
    v_mov_b32 v62, 0
    v_and_b32 v{AF}, v{O1}, v248
    v_and_b32 v{AF+1}, v{O1+1}, v248
    v_and_b32 v{AF+2}, v{O1}, v249
    v_and_b32 v{AF+3}, v{O1+1}, v249
    v_and_b32 v{AFL}, v{O2}, v251
    v_and_b32 v{AFL+1}, v{O2+1}, v250
    v_and_b32 v{A0L}, v{O2}, v250
    v_and_b32 v{A1L+1}, v{O2+1}, v251
    """)
    for mt in range(2): g.mfma(vr(E(2, mt), 4), vr(AF, 4), vr(144 + 4*mt, 4))
    for mt in range(2): g.mfma(vr(E(2, mt), 4), vr(AFL, 2), vr(152 + 2*mt, 2), vr(E(2, mt), 4), k16=True)
    for mt in range(2):
        g.mfma(vr(E(0, mt), 4), vr(A0L, 2), vr(152 + 2*mt, 2), vr(E(0, mt), 4), k16=True)
        g.mfma(vr(E(1, mt), 4), vr(A1L, 2), vr(152 + 2*mt, 2), vr(E(1, mt), 4), k16=True)
    for mt in range(2):
        F = E(2, mt); c = 68 + 4*mt
        for q in range(2):
            k(f"v_add_f32 v{c+2*q}, s{sC3}, v{F+q}"); k(f"v_add_f32 v{c+2*q+1}, s{sC3}, v{F+q}")
    for mt in range(2):
        c = 68 + 4*mt
        for q in range(2): k(f"v_permlane16_swap_b32 v{c+2*q}, v{c+2*q+1}")
    for mt in range(2):
        c = 68 + 4*mt
        for q in range(2): k(f"v_rcp_f32 v{c+2*q}, v{c+2*q}")
    for mt in range(2):
        c = 68 + 4*mt; o = 80 + 8*mt
        for q in range(2):
            for r in range(4): k(f"v_mul_f32 v{E(q,mt)+r}, v{E(q,mt)+r}, v{c+2*q}")
            for h in range(2): k(f"v_cvt_pk_bf16_f32 v{o+2*q+h}, v{E(q,mt)+2*h}, v{E(q,mt)+2*h+1}")
        k.vm(f"buffer_store_dwordx4 {vr(o,4)}, v1, {sr(WS,4)}, s{sT0} offen offset:{1024*mt} sc1", "o")
    for mt in range(2):
        c = 68 + 4*mt; o = 84 + 8*mt; F = E(2, mt)
        for r in range(4): k(f"v_mul_f32 v{F+r}, v{F+r}, v{c+2*(r>>1)}")
        for h in range(2): k(f"v_cvt_pk_bf16_f32 v{o+h}, v{F+2*h}, v{F+2*h+1}")
    g.setexec(0xffff << 48)
    for mt in range(2):
        k.vm(f"buffer_store_dwordx2 {vr(84+8*mt,2)}, v134, {sr(WS,4)}, s{sT1} offen offset:{1024*mt} sc1", "o")
    g.setexec(-1)
    g.ts("O.st")

def sel(g, dst, se, h, tmp):
    k = g.k
    k(f"v_lshl_add_u32 v{tmp}, v2, 2, s{se}")
    k(f"v_lshlrev_b32 v{tmp+1}, 3, v3")
    k(f"v_sub_u32 v{tmp}, v{tmp}, v{tmp+1}")
    if h: k(f"v_subrev_u32 v{tmp}, 32, v{tmp}")
    k(f"v_and_b32 v{tmp+1}, 1, v{tmp}")
    k(f"v_lshlrev_b32 v{tmp+1}, 4, v{tmp+1}")
    k(f"v_mov_b32 v{tmp+2}, 0x3f80")
    k(f"v_lshlrev_b32 v{tmp+1}, v{tmp+1}, v{tmp+2}")
    k(f"v_lshrrev_b32 v{tmp}, 1, v{tmp}")
    for d in range(4):
        k(f"v_cmp_eq_u32 vcc, {d}, v{tmp}"); k(f"v_cndmask_b32 v{dst+d}, 0, v{tmp+1}, vcc")

def phase_b(g):
    k = g.k
    L = k.label("fwok")
    k.wait(vm="fw")
    k("v_and_b32 v168, v168, v169"); k("v_and_b32 v170, v170, v171"); k("v_and_b32 v168, v168, v170")
    k("v_cmp_ne_u32 vcc, 1, v168"); k(f"s_cbranch_vccz {L}")
    k(f"s_movk_i32 s{sT0}, {FW}")
    sv = list(k.vq); g.poll(1, f"s{sT0}", 168, n=4); k.vq = sv
    k(f"{L}:")
    k(f"""
    s_and_b32 s{sT0}, s{sBC}, 1
    s_lshl_b32 s{sT0}, s{sT0}, 1
    s_add_u32 s{sT5}, s{sT0}, s{sWV}
    s_lshl_b32 s{sT0}, s{sBC}, 2
    s_add_u32 s{sT0}, s{sT0}, s{sWV}
    s_mul_i32 s{sT0}, s{sT0}, 18432
    s_add_u32 s{sT0}, s{sT0}, {WOT}
    s_add_u32 s{sT1}, s{sT5}, 32
    s_mul_i32 s{sT1}, s{sT1}, 18432
    s_add_u32 s{sT1}, s{sT1}, {WOT}
    s_cmp_lt_u32 s{sWV}, 2
    s_cselect_b32 s{sT1}, s{sT1}, 0x7f000000
    s_lshl_b32 s{sA1}, s{sJ}, 2
    s_add_u32 s{sA1}, s{sA1}, s{sWV}
    s_mul_i32 s{sA1}, s{sA1}, {324*1024}
    s_add_u32 s{sA1}, s{sA1}, {WT}
    """)
    for kk in range(18):
        for t, so in ((0, sT0), (1, sT1)):
            k.vm(f"buffer_load_dwordx4 {ar(WOA+72*t+4*kk,4)}, v1, {sr(WS,4)}, s{so} offen offset:{(kk & 3)*1024} sc1", "wo")
            if kk & 3 == 3: k(f"s_add_u32 s{so}, s{so}, 4096")
    for h in range(2):
        sel(g, 40 + 4*h, sWV, h, 100); sel(g, 48 + 4*h, sT5, h, 100)
    k(f"""
    v_and_b32 v56, 31, v0
    v_lshlrev_b32 v56, 2, v56
    s_lshl_b32 s{sT0}, s{sBR}, 7
    s_add_u32 s{sT0}, s{sT0}, {FO}
    s_mul_i32 s{sT1}, s{sBR}, 73728
    s_add_u32 s{sT1}, s{sT1}, {OB}
    s_lshr_b32 s{sT2}, s{sBC}, 1
    s_lshl_b32 s{sT2}, s{sT2}, 10
    v_add_u32 v57, s{sT2}, v1
    v_add_u32 v58, 0x10000, v1
    v_add_u32 v59, 0x10000, v57
    v_and_b32 v100, 6, v0
    v_xor_b32 v100, v100, v3
    v_lshlrev_b32 v100, 4, v100
    v_and_b32 v101, 7, v0
    v_lshl_add_u32 v100, v101, 7, v100
    v_bfe_u32 v101, v0, 3, 1
    v_lshl_add_u32 v100, v101, 10, v100
    v_add_u32 v62, {XRB}, v100
    v_xor_b32 v63, 64, v62
    """)
    k.wait(vm="o"); g.flag(f"s{sT4}", 14, 6)
    g.ts("FO.set")
    g.poll1(56, f"s{sT0}", 60)
    g.ts("FO.seen")
    for s in range(5):
        if s < 4:
            k(f"s_lshl_b32 s{sT2}, s{sWV}, 12"); k(f"s_add_u32 s{sT2}, s{sT2}, {s*16384}")
        else:
            k(f"s_lshl_b32 s{sT2}, s{sWV}, 11"); k(f"s_add_u32 s{sT2}, s{sT2}, 65536")
        k(f"s_mov_b32 m0, s{sT2}"); k(f"s_add_u32 s{sT2}, s{sT2}, s{sT1}")
        for q in range(4 if s < 4 else 2):
            k.vm(f"buffer_load_dwordx4 v1, {sr(WS,4)}, s{sT2} offen offset:{q*1024} sc1 lds", ("os", s))
    for h in range(2):
        for mt in range(5): k.ds(f"ds_read_b128 {vr(104+8*mt+4*h,4)}, v{62+h} offset:{2048*mt}", ("xr", h))
    for t in (1, 2): g.relay_stores(t, 168 + 16*(t - 1))
    for seq in range(NP1): ring_load(g, seq)
    for h in range(2):
        k.wait(ds=[("xr", h)])
        for mt in range(5):
            d = vr(16 + 4*mt, 4); g.mfma(d, vr((40 if mt < 4 else 48) + 4*h, 4), vr(104 + 8*mt + 4*h, 4), d if h else None)
    def reads(kk):
        buf = 64 + 20 * (kk & 1); out = []
        for q in range(5):
            a = (1, 57)[q == 4] if kk < 16 else (58, 59)[q == 4]
            off = (kk & 15) * 4096 + (q & 3) * 1024
            out.append(lambda q=q, a=a, off=off: k.ds(f"ds_read_b128 {vr(buf+4*q,4)}, v{a} offset:{off}", ("ob", kk)))
        return out
    k.wait(vm=("os", 0)); k("s_barrier")
    g.ts("O.first")
    for f in reads(0): f()
    for kk in range(18):
        buf = 64 + 20 * (kk & 1); fill = []
        if kk + 1 < 18:
            if (kk + 1) % 4 == 0: fill.append(lambda s=(kk+1)//4: (k.wait(vm=("os", s)), k("s_barrier")))
            fill += reads(kk + 1)
        k.wait(ds=[("ob", kk)])
        for q in range(5):
            d = vr(16 + 4*q, 4)
            g.mfma(d, ar(WOA + (0 if q < 4 else 72) + 4*kk, 4), vr(buf + 4*q, 4), d)
            if fill: fill.pop(0)()
        while fill: fill.pop(0)()
    k(f"""
    s_mul_i32 s{sT0}, s{sBR}, 73728
    s_add_u32 s{sT0}, s{sT0}, {HB}
    s_and_b32 s{sT2}, s{sBC}, 1
    s_add_u32 s{sT2}, s{sT2}, 16
    s_lshl_b32 s{sT2}, s{sT2}, 2
    s_lshr_b32 s{sT3}, s{sBC}, 1
    s_add_u32 s{sT2}, s{sT2}, s{sT3}
    s_lshl_b32 s{sT2}, s{sT2}, 10
    s_lshl_b32 s{sT3}, s{sWV}, 9
    s_add_u32 s{sT2}, s{sT2}, s{sT3}
    s_add_u32 s{sT1}, s{sT2}, s{sT0}
    s_lshl_b32 s{sT2}, s{sBC}, 1
    s_lshr_b32 s{sT3}, s{sWV}, 1
    s_add_u32 s{sT2}, s{sT2}, s{sT3}
    s_lshl_b32 s{sT2}, s{sT2}, 12
    s_and_b32 s{sT3}, s{sWV}, 1
    s_lshl_b32 s{sT3}, s{sT3}, 9
    s_add_u32 s{sT2}, s{sT2}, s{sT3}
    s_add_u32 s{sT0}, s{sT0}, s{sT2}
    v_lshrrev_b32 v56, 1, v3
    v_lshlrev_b32 v56, 8, v56
    v_lshl_add_u32 v56, v2, 4, v56
    v_and_b32 v57, 1, v3
    v_lshl_add_u32 v4, v57, 10, v56
    v_lshl_add_u32 v5, v57, 3, v56
    s_lshl_b32 s{sT4}, s{sBR}, 3
    s_add_u32 s{sT4}, s{sT4}, s{sBC}
    s_lshl_b32 s{sT4}, s{sT4}, 2
    s_add_u32 s{sT4}, s{sT4}, s{sWV}
    s_lshl_b32 s{sT4}, s{sT4}, 2
    s_add_u32 s{sT4}, s{sT4}, {FH}
    """)
    for pb in range(2):
        o = 40 + 4*pb
        for q in range(4):
            a = 16 + 8*pb + 2*q; k(f"v_cvt_pk_bf16_f32 v{o+q}, v{a}, v{a+1}")
        k(f"v_permlane16_swap_b32 v{o}, v{o+2}"); k(f"v_permlane16_swap_b32 v{o+1}, v{o+3}")
        k.vm(f"buffer_store_dwordx4 {vr(o,4)}, v4, {sr(WS,4)}, s{sT0} offen offset:{2048*pb} sc1", "h")
    k("v_cvt_pk_bf16_f32 v48, v32, v33"); k("v_cvt_pk_bf16_f32 v49, v34, v35")
    L = k.label("nx")
    k(f"s_cmp_ge_u32 s{sWV}, 2"); k(f"s_cbranch_scc1 {L}")
    k.vm(f"buffer_store_dwordx2 v[48:49], v5, {sr(WS,4)}, s{sT1} offen sc1", "h", count=False)
    k(f"{L}:")
    g.ts("H.st")
    for seq in range(NP1, NP1 + NP2A): ring_load(g, seq)
    k.wait(vm="h"); g.flag(f"s{sT4}", 14, 6)
    g.ts("FH.set")

from gen3 import phase_f
```

```python
from kgen import *
from gen import *
import gen2

HP = 73728
ID = 208
vG1B, vG2A, vG2B, vHP, vHP8, vP0, vP1, vOWN, vRS = 210, 211, 212, 213, 214, 215, 216, 217, 218
ORDER = list(range(8)) + [16, 17] + list(range(8, 16))
NSEQ = 324

def b_reads(g, src, kp, buf):
    k = g.k
    a = ((1, vG1B), (vG2A, vG2B))[src][kp >= 16]
    return [lambda mt=mt: k.ds(f"ds_read_b128 {vr(buf+4*mt,4)}, v{a} offset:{(kp & 15)*4096 + mt*1024}", ("fb", src, kp, buf))
            for mt in range(4)]

class Stream:
    def __init__(self): self.seq = 0; self.step = 0

def gpass(g, st, src, nblk, acc, nxt, fill, hooks={}):
    k = g.k
    order = list(range(18)) if src == 0 else ORDER
    for pos, kp in enumerate(order):
        buf = 160 + 16 * (st.step & 1); nb = 160 + 16 * ((st.step + 1) & 1)
        pre = [hooks[pos]] if pos in hooks else []
        if pos + 1 < 18: pre += b_reads(g, src, order[pos + 1], nb)
        elif nxt is not None: pre += b_reads(g, nxt, 0, nb)
        k.wait(ds=[("fb", src, kp, buf)])
        for b in range(nblk):
            k.wait(vm=("w", st.seq))
            for mt in range(4):
                d = vr(acc + 16*b + 4*mt, 4)
                g.mfma(d, ar(4 * (st.seq % gen2.RING), 4), vr(buf + 4*mt, 4), d if pos else None)
                n = 0
                if pre: pre.pop(0)(); n += 1
                if mt == 3 and st.seq + gen2.RING < NSEQ: gen2.ring_load(g, st.seq + gen2.RING); n += 1
                while fill and n < (1 if mt == 3 else 2): fill.pop(0)(); n += 1
            st.seq += 1
        while pre: pre.pop(0)()
        st.step += 1

def relu_ops(g, acc, pis, blk8):
    k = g.k; ops = []; n = 0
    for q, pi in enumerate(pis):
        for mt in range(4):
            t = 192 + 4 * (n & 3); n += 1
            for d in range(4):
                a = acc + 16 * (2*q + (d >> 1)) + 4*mt + 2*(d & 1)
                ops.append(lambda t=t, d=d, a=a: k(f"v_cvt_pk_bf16_f32 v{t+d}, v{a}, v{a+1}"))
            for d in range(4): ops.append(lambda t=t, d=d: k(f"v_pk_max_i16 v{t+d}, v{t+d}, 0"))
            ops.append(lambda t=t, pi=pi, mt=mt: k.ds(f"ds_write_b128 v{vHP}, {vr(t,4)} offset:{pi*16384 + mt*1024}", "hp"))
    if blk8 is not None:
        for mt in range(4):
            t = 192 + 4 * (n & 3); n += 1
            for d in range(2):
                a = acc + 16*blk8 + 4*mt + 2*d
                ops.append(lambda t=t, d=d, a=a: k(f"v_cvt_pk_bf16_f32 v{t+d}, v{a}, v{a+1}"))
            for d in range(2): ops.append(lambda t=t, d=d: k(f"v_pk_max_i16 v{t+d}, v{t+d}, 0"))
            ops.append(lambda t=t, mt=mt: k.ds(f"ds_write_b64 v{vHP8}, {vr(t,2)} offset:{mt*1024}", "hp"))
    return ops

def blk_index(g, dst, rel):
    k = g.k
    if rel == 0: k(f"s_add_u32 s{dst}, s{sA2}, 8")
    else:
        k(f"s_add_u32 s{dst}, s{sJ}, {rel}"); k(f"s_and_b32 s{dst}, s{dst}, 7"); k(f"s_add_u32 s{dst}, s{dst}, s{sA2}")

def part_ops(g, acc, rels, tag):
    k = g.k; ops = []; n = 0
    for b, rel in enumerate(rels):
        ops.append(lambda rel=rel: (blk_index(g, sT0, rel), k(f"s_lshl_b32 s{sT0}, s{sT0}, 16"), k(f"s_add_u32 s{sT0}, s{sT0}, s{sA3}")))
        for pb in range(2):
            t = 192 + 4 * (n & 3); n += 1
            for q in range(4):
                a = acc + 16*b + 8*pb + 2*q
                ops.append(lambda t=t, q=q, a=a: k(f"v_cvt_pk_bf16_f32 v{t+q}, v{a}, v{a+1}"))
            for q in range(2): ops.append(lambda t=t, q=q: k(f"v_permlane16_swap_b32 v{t+q}, v{t+q+2}"))
            ops.append(lambda t=t, pb=pb: k.vm(f"buffer_store_dwordx4 {vr(t,4)}, v{vP0+pb}, {sr(WS,4)}, s{sT0} offen sc1", tag))
    return ops

def part_flags(g, rels, tag):
    k = g.k
    k.wait(vm=tag); k("s_mov_b64 exec, 1")
    for rel in rels:
        blk_index(g, sT1, rel); k(f"s_lshl_b32 s{sT1}, s{sT1}, 7"); k(f"s_add_u32 s{sT1}, s{sT1}, s{sT5}")
        k.vm(f"buffer_store_dword v14, v6, {sr(WS,4)}, s{sT1} offen sc1")
    k("s_mov_b64 exec, -1")

def h_pieces(g, sblk):
    k = g.k
    k(f"s_lshl_b32 s{sT0}, s{sblk}, 13"); k(f"s_add_u32 s{sT0}, s{sT0}, s{sT4}"); k(f"s_add_u32 s{sT1}, s{sT0}, 4096")
    for e in range(4):
        k.vm(f"buffer_load_dwordx2 {vr(128+2*e,2)}, v5, {sr(WS,4)}, s{sT0 if e < 2 else sT1} offen offset:{(e & 1)*512} sc1", "hp")

def reduce_block(g, sblk, qs, own):
    k = g.k
    h_pieces(g, sblk)
    k.wait(vm="hp")
    for e in range(4): g.mfma(vr(32 + 4*e, 4), vr(ID, 2), vr(128 + 2*e, 2), k16=True)
    k(f"""
    s_add_u32 s{sT2}, s{sA2}, s{sblk}
    s_lshl_b32 s{sT0}, s{sT2}, 7
    s_add_u32 s{sT0}, s{sT0}, {FP}
    s_lshl_b32 s{sT2}, s{sT2}, 16
    s_lshl_b32 s{sT1}, s{sWV}, 11
    s_add_u32 s{sT2}, s{sT2}, s{sT1}
    s_add_u32 s{sT2}, s{sT2}, {PB}
    v_and_b32 v136, 31, v0
    """)
    if own:
        k(f"""
        v_lshrrev_b32 v137, 2, v136
        v_add_u32 v138, 4, v136
        v_and_b32 v138, 31, v138
        v_cmp_eq_u32 vcc, s{sJ}, v137
        v_cndmask_b32 v136, v136, v138, vcc
        """)
        k.wait(ds=["own"])
        for n in range(16): k(f"v_fma_f32 v{32+n}, v{48+n}, v{vRS}, v{32+n}")
    k("v_lshlrev_b32 v136, 2, v136")
    g.ts("T.poll")
    g.poll(136, f"s{sT0}", 137)
    g.ts("T.seen")
    for n, q in enumerate(qs):
        k(f"s_add_u32 s{sT0}, s{sJ}, {q}"); k(f"s_and_b32 s{sT0}, s{sT0}, 7"); k(f"s_lshl_b32 s{sT0}, s{sT0}, 13")
        k(f"s_add_u32 s{sT0}, s{sT0}, s{sT2}")
        for c in range(2):
            k.vm(f"buffer_load_dwordx4 {vr(64+8*n+4*c,4)}, v1, {sr(WS,4)}, s{sT0} offen offset:{1024*c} sc1", ("pl", n, c))
    k(f"s_lshl_b32 s{sT0}, s{sblk}, 7")
    for n, q in enumerate(qs):
        for c in range(2):
            k.wait(vm=("pl", n, c))
            for h in range(2):
                d = vr(16 + 8*c + 4*h, 4); g.mfma(d, vr(ID, 2), vr(64 + 8*n + 4*c + 2*h, 2), d if n else None, k16=True)
    for c in range(2):
        for r in range(4): k(f"v_permlane16_swap_b32 v{16+8*c+r}, v{20+8*c+r}")
    for e in range(4):
        for r in range(4): k(f"v_fma_f32 v{16+4*e+r}, v{16+4*e+r}, v{vRS}, v{32+4*e+r}")
    for r in range(4):
        for c in range(2): k(f"v_cvt_pk_bf16_f32 v{140+2*r+c}, v{16+8*c+r}, v{20+8*c+r}")
        if r & 1: k.vm(f"buffer_store_dwordx4 {vr(140+2*(r-1),4)}, v7, {sr(OS,4)}, s{sT0} offen offset:{8*(r-1)}")

def phase_f(g):
    k = g.k
    k(f"""
    s_lshl_b32 s{sT0}, s{sRF}, 7
    s_add_u32 s{sT0}, s{sT0}, {FH}
    s_mul_i32 s{sT4}, s{sRF}, 73728
    s_lshl_b32 s{sT1}, s{sWV}, 10
    s_add_u32 s{sT4}, s{sT4}, s{sT1}
    s_add_u32 s{sT4}, s{sT4}, {HB}
    v_and_b32 v56, 31, v0
    v_lshlrev_b32 v56, 2, v56
    v_lshlrev_b32 v57, 2, v3
    v_sub_u32 v57, v2, v57
    v_and_b32 v58, 1, v57
    v_lshlrev_b32 v58, 4, v58
    v_mov_b32 v59, 0x3f80
    v_lshlrev_b32 v58, v58, v59
    v_lshrrev_b32 v57, 1, v57
    v_cmp_eq_u32 vcc, 0, v57
    v_cndmask_b32 v{ID}, 0, v58, vcc
    v_cmp_eq_u32 vcc, 1, v57
    v_cndmask_b32 v{ID+1}, 0, v58, vcc
    v_add_u32 v{vG1B}, 0x10000, v1
    v_add_u32 v{vG2A}, {HP}, v1
    v_add_u32 v{vG2B}, {HP + 65536}, v1
    s_lshl_b32 s{sT2}, s{sWV}, 12
    v_add_u32 v{vHP}, s{sT2}, v{vG2A}
    s_lshr_b32 s{sT2}, s{sWV}, 1
    s_lshl_b32 s{sT3}, s{sT2}, 12
    s_and_b32 s{sA3}, s{sWV}, 1
    s_lshl_b32 s{sT5}, s{sA3}, 3
    s_add_u32 s{sT3}, s{sT3}, s{sT5}
    v_add_u32 v{vHP8}, s{sT3}, v{vG2B}
    s_lshl_b32 s{sT2}, s{sT2}, 10
    s_lshl_b32 s{sA3}, s{sA3}, 8
    s_add_u32 s{sA3}, s{sA3}, s{sT2}
    s_lshl_b32 s{sT2}, s{sJ}, 13
    s_add_u32 s{sA3}, s{sA3}, s{sT2}
    s_add_u32 s{sA3}, s{sA3}, {PB}
    s_mul_i32 s{sA2}, s{sRF}, 9
    s_lshl_b32 s{sT5}, s{sJ}, 2
    s_add_u32 s{sT5}, s{sT5}, s{sWV}
    s_lshl_b32 s{sT5}, s{sT5}, 2
    s_add_u32 s{sT5}, s{sT5}, {FP}
    v_and_b32 v57, 1, v3
    v_lshrrev_b32 v58, 1, v3
    v_lshlrev_b32 v58, 9, v58
    v_lshl_add_u32 v58, v57, 11, v58
    v_lshl_add_u32 v{vP0}, v2, 4, v58
    v_add_u32 v{vP1}, 0x1000, v{vP0}
    v_add_u32 v8, s{sT1}, v1
    v_add_u32 v9, 0x10000, v8
    v_add_u32 v{vOWN}, {AUX}, v8
    s_lshl_b32 s{sT2}, s{sRF}, 6
    s_lshl_b32 s{sT3}, s{sWV}, 4
    s_add_u32 s{sT2}, s{sT2}, s{sT3}
    v_add_u32 v7, s{sT2}, v2
    s_movk_i32 s{sT2}, 1152
    v_mul_u32_u24 v7, s{sT2}, v7
    v_lshl_add_u32 v7, v3, 5, v7
    """)
    for r in range(4): k(f"v_mov_b32 v{92+r}, {hex(ONE2)}")
    g.poll1(56, f"s{sT0}", 60)
    g.ts("FH.seen")
    k(f"s_mov_b32 s{sT0}, s{sT4}")
    for kk in range(18):
        k.vm(f"buffer_load_dwordx4 {vr(16+4*kk,4)}, v1, {sr(WS,4)}, s{sT0} offen sc1", ("h", kk))
        if kk < 17: k(f"s_add_u32 s{sT0}, s{sT0}, 4096")
    for seq in range(gen2.NP1 + gen2.NP2A, gen2.RING): gen2.ring_load(g, seq)
    for kk in range(18):
        k.wait(vm=("h", kk)); g.mfma("v[88:91]", "v[92:95]", vr(16 + 4*kk, 4), "v[88:91]" if kk else None)
    g.ts("H.in")
    for r in range(4): k(f"v_mul_f32 v{88+r}, s{sC0}, v{88+r}")
    def cvt(kk):
        t = 96 + 8 * (kk % 3); o = 128 + 4 * (kk & 3)
        for d in range(4): k(f"v_cvt_pk_bf16_f32 v{o+d}, v{t+2*d}, v{t+2*d+1}")
        k.ds(f"ds_write_b128 v{8 if kk < 16 else 9}, {vr(o,4)} offset:{(kk & 15)*4096}")
    for kk in range(18):
        t = 96 + 8 * (kk % 3)
        for h in range(2): g.mfma(vr(t + 4*h, 4), vr(ID, 2), vr(16 + 4*kk + 2*h, 2), "v[88:91]", k16=True)
        if kk >= 1: cvt(kk - 1)
    cvt(17)
    k.wait(ds="all"); k("s_barrier")
    g.ts("F.start")
    st = Stream()
    for f in b_reads(g, 0, 0, 160): f()
    bar = lambda: (k.wait(ds=["hp"]), k("s_barrier"))
    def late_load():
        k(f"s_lshl_b32 s{sT0}, s{sJ}, 9"); k(f"s_add_u32 s{sT0}, s{sT0}, {FH}"); k("v_lshlrev_b32 v98, 3, v0")
        k.vm(f"buffer_load_dwordx2 v[96:97], v98, {sr(WS,4)}, s{sT0} offen sc1", "late")
    def late_check():
        L = k.label("late")
        k.wait(vm="late")
        k("v_and_b32 v96, v96, v97"); k("v_cmp_ne_u32 vcc, 1, v96"); k(f"s_cbranch_vccz {L}")
        sv = list(k.vq); g.poll(98, f"s{sT0}", 96, n=2); k.vq = sv
        k(f"{L}:")
    gpass(g, st, 0, 5, 16, 0, [], {2: late_load, 9: late_check})
    g.ts("G1a")
    fill = relu_ops(g, 16, (0, 1), 4)
    gpass(g, st, 0, 4, 96, 1, fill, {17: bar}); assert not fill
    g.ts("G1b")
    fill = relu_ops(g, 96, (2, 3), None)
    def chk9():
        assert not fill
        bar()
    gpass(g, st, 1, 3, 16, 1, fill, {9: chk9})
    g.ts("P1")
    fill = part_ops(g, 16, (0, 1, 2), "p1")
    gpass(g, st, 1, 3, 96, 1, fill, {14: lambda: part_flags(g, (0, 1, 2), "p1")}); assert not fill
    g.ts("P2")
    fill = part_ops(g, 96, (3, 4, 5), "p2")
    gpass(g, st, 1, 2, 16, 1, fill, {16: lambda: part_flags(g, (3, 4, 5), "p2")}); assert not fill
    g.ts("P3")
    fill = part_ops(g, 16, (6, 7), "p3")
    gpass(g, st, 1, 1, 96, None, fill)
    while fill: fill.pop(0)()
    g.ts("P4")
    part_flags(g, (6, 7), "p3")
    for mt in range(4): k.ds(f"ds_write_b128 v{vOWN}, {vr(96+4*mt,4)} offset:{mt*4096}")
    for kk in range(18):
        k.ds(f"ds_read_b128 {vr(16+4*kk,4)}, v{8 if kk < 16 else 9} offset:{(kk & 15)*4096}", ("c", kk))
        if kk == 9: k.wait(ds=[("c", 0)]); k("s_barrier")
    for kk in range(18):
        k.wait(ds=[("c", kk)])
        for d in range(4):
            k(f"v_dot2_f32_bf16 v{88+d}, v{16+4*kk+d}, v{16+4*kk+d}, {'0' if kk == 0 else 'v%d' % (88+d)}")
    k(f"s_mul_i32 s{sT0}, s{sWV}, 3072"); k(f"v_add_u32 v{vOWN}, s{sT0}, v{vOWN}")
    for e in range(4): k.ds(f"ds_read_b128 {vr(48+4*e,4)}, v{vOWN} offset:{e*1024}", "own")
    k(f"""
    v_add_f32 v88, v88, v89
    v_add_f32 v90, v90, v91
    v_add_f32 v88, v88, v90
    v_mov_b32 v89, v88
    v_permlane16_swap_b32 v88, v89
    v_add_f32 v88, v88, v89
    v_mov_b32 v89, v88
    v_permlane32_swap_b32 v88, v89
    v_add_f32 v88, v88, v89
    v_fma_f32 v88, v88, s{sC1}, v15
    v_rsq_f32 v{vRS}, v88
    """)
    L = k.label("n8")
    k(f"s_lshl_b32 s{sT0}, s{sWV}, 1"); k(f"s_cmp_lg_u32 s{sT0}, s{sJ}"); k(f"s_cbranch_scc1 {L}")
    sv, sl = list(k.vq), list(k.lq)
    k(f"s_mov_b32 s{sT3}, 8")
    p = g.prof; g.prof = False
    reduce_block(g, sT3, range(8), False)
    g.prof = p
    k.vq, k.lq = sv, sl
    k(f"{L}:")
    reduce_block(g, sJ, (7, 6, 5, 4, 3, 2, 1), True)
```

```python
import sys, json, argparse
import gen
ap = argparse.ArgumentParser()
ap.add_argument("out"); ap.add_argument("--stop"); ap.add_argument("--prof", action="store_true")
ap.add_argument("--only"); ap.add_argument("--dbg", type=int); ap.add_argument("--opt", default="")
a = ap.parse_args()
for kv in filter(None, a.opt.split(",")):
    n, v = kv.split("="); gen.OPT[n] = int(v)
txt, g = gen.build(a.stop, a.prof, a.only.split(",") if a.only else None, a.dbg)
open(a.out, "w").write(txt)
if "work" in a.out or "/" not in a.out: json.dump(g.tsn, open(a.out + ".ts.json", "w"))
print("lines", txt.count("\n"), "bytes", len(txt), "nop states", g.k.nops)
import chk; chk.check(a.out)
```

```python
import sys
from kgen import *

NAME = "sequential_preLN__linear_attn_block__dense_activation_relu__prompt"
FK, FW, FO, FH, FP = 0, 4096, 5120, 9216, 13312
ZERO_BYTES = 53248
KVP, OB, HB, WOT, WT, PB, PROF = 0x10000, 0x200000, 0x480000, 0x700000, 0x800000, 0x1300000, 0x3000000
WS_SIZE = 0x4000000
AUX = 147456
ST, CS, KVX = AUX + 12288, AUX + 13312, AUX + 13312
SPIN = 20000
WS, XS, QS, W1S, W2S, T2S, DS, OS = 4, 8, 12, 16, 20, 24, 28, 32
sWO = 36
sX, sI, sWV, sR, sP, sDL = 38, 39, 40, 41, 42, 43
sT0, sT1, sT2, sT3, sT4, sT5 = 44, 45, 46, 47, 48, 49
sV3, sDK, sCNT, sV2 = 50, 51, 52, 53
sRL = 56
sDM = 72
sPE, sPO = 74, 75
sMK = 76
sC0, sC1, sC2, sC3 = 78, 79, 80, 81
sTS = 82
sBR, sBC = 84, 85
sA0, sA1, sA2, sA3 = 86, 87, 88, 89
sXB = 90
sJ, sRF = 94, 95
T3S, sXD = 96, 100
sPH, sWK = 54, 55
OPT = dict(touch=1, fmap=1, ptouch=0, rot=1, pre=3, rsq=1, np1=24, np2=16)
ONE2 = 0x3F803F80
def f2u(x):
    import struct
    return struct.unpack("<I", struct.pack("<f", x))[0]

class G:
    def __init__(self, stop=None, prof=False):
        self.k = Kern(); self.stop = stop; self.prof = prof; self.nts = 0; self.tsn = []; self.only = None; self.dbgwg = None
    def ts(self, name):
        if not self.prof: return
        if self.only is not None and name not in self.only: return
        k = self.k
        k(f"s_memtime s[{sTS}:{sTS+1}]"); k("s_waitcnt lgkmcnt(0)"); k.lq = []
        k(f"v_writelane_b32 v255, s{sTS}, {self.nts}")
        self.tsn.append(name); self.nts += 1
    def rt(self, lane):
        k = self.k
        k(f"s_memrealtime s[{sTS}:{sTS+1}]"); k("s_waitcnt lgkmcnt(0)"); k.lq = []
        k(f"v_writelane_b32 v255, s{sTS}, {lane}")
    def mfma(self, d, a, b, c=None, k16=False):
        op = "v_mfma_f32_16x16x16_bf16" if k16 else "v_mfma_f32_16x16x32_bf16"
        cc = "0" if c is None else c
        self.k(f"{op} {d}, {a}, {b}, {cc}")
    def setexec(self, m):
        k = self.k
        if m == -1: k("s_mov_b64 exec, -1")
        else:
            k(f"s_mov_b32 exec_lo, {hex(m & 0xffffffff)}"); k(f"s_mov_b32 exec_hi, {hex(m >> 32)}")
    def poll(self, vaddr, soff, vtmp, n=1, srd=WS):
        k = self.k; L = k.label("poll"); D = k.label("pdone")
        k(f"s_mov_b32 s{sCNT}, 0"); k(f"{L}:")
        sfx = {1: "dword", 2: "dwordx2", 4: "dwordx4"}[n]
        k(f"buffer_load_{sfx} {vr(vtmp, n)}, v{vaddr}, {sr(srd,4)}, {soff} offen sc1")
        k("s_waitcnt vmcnt(0)"); k.vq = []
        if n == 4:
            k(f"v_and_b32 v{vtmp}, v{vtmp}, v{vtmp+1}"); k(f"v_and_b32 v{vtmp+2}, v{vtmp+2}, v{vtmp+3}")
            k(f"v_and_b32 v{vtmp}, v{vtmp}, v{vtmp+2}")
        if n == 2: k(f"v_and_b32 v{vtmp}, v{vtmp}, v{vtmp+1}")
        k(f"v_cmp_ne_u32 vcc, 1, v{vtmp}")
        k(f"s_cbranch_vccz {D}")
        k(f"s_add_u32 s{sCNT}, s{sCNT}, 1"); k(f"s_cmp_lt_u32 s{sCNT}, {SPIN}"); k(f"s_cbranch_scc1 {L}")
        k(f"{D}:")
    def poll1(self, vaddr, soff, vtmp, wave=0):
        k = self.k; L = k.label("p1"); sv = list(k.vq)
        k(f"s_cmp_lg_u32 s{sWV}, {wave}"); k(f"s_cbranch_scc1 {L}")
        self.poll(vaddr, soff, vtmp)
        k(f"{L}:"); k("s_barrier"); k.vq = sv
    def check(self, vaddr, soff, vtmp, n, srd=WS):
        k = self.k; L = k.label("ok")
        if n == 4:
            k(f"v_and_b32 v{vtmp}, v{vtmp}, v{vtmp+1}"); k(f"v_and_b32 v{vtmp+2}, v{vtmp+2}, v{vtmp+3}")
            k(f"v_and_b32 v{vtmp}, v{vtmp}, v{vtmp+2}")
        if n == 2: k(f"v_and_b32 v{vtmp}, v{vtmp}, v{vtmp+1}")
        k(f"v_cmp_ne_u32 vcc, 1, v{vtmp}"); k(f"s_cbranch_vccz {L}")
        sv = list(k.vq); self.poll(vaddr, soff, vtmp, n=n, srd=srd); k.vq = sv
        k(f"{L}:")
    def flag(self, soff, vone, vzero, srd=WS):
        k = self.k
        k("s_mov_b64 exec, 1")
        k.vm(f"buffer_store_dword v{vone}, v{vzero}, {sr(srd,4)}, {soff} offen sc1")
        k("s_mov_b64 exec, -1")

    def prologue(self):
        k = self.k
        k(f"""
        s_cmp_ge_u32 s2, 256
        s_cbranch_scc1 L_end
        s_load_dwordx2 s[{XS}:{XS+1}], s[0:1], 0
        s_load_dwordx2 s[{QS}:{QS+1}], s[0:1], 8
        s_load_dwordx2 s[{WS}:{WS+1}], s[0:1], 64
        s_load_dwordx2 s[{sWO}:{sWO+1}], s[0:1], 16
        s_load_dwordx2 s[{W1S}:{W1S+1}], s[0:1], 32
        s_load_dwordx2 s[{W2S}:{W2S+1}], s[0:1], 40
        s_load_dwordx2 s[{OS}:{OS+1}], s[0:1], 48
        s_load_dwordx2 s[{DS}:{DS+1}], s[0:1], 56
        v_lshrrev_b32 v1, 6, v0
        v_lshlrev_b32 v15, 4, v0
        v_and_b32 v0, 63, v0
        v_readfirstlane_b32 s{sWV}, v1
        v_lshlrev_b32 v1, 4, v0
        v_and_b32 v2, 15, v0
        v_lshrrev_b32 v3, 4, v0
        s_and_b32 s{sX}, s2, 7
        s_lshr_b32 s{sI}, s2, 3
        s_and_b32 s{sT0}, s{sX}, 1
        s_lshl_b32 s{sT0}, s{sT0}, 3
        s_and_b32 s{sT1}, s{sI}, 7
        s_add_u32 s{sR}, s{sT0}, s{sT1}
        s_lshr_b32 s{sT0}, s{sX}, 1
        s_lshl_b32 s{sT0}, s{sT0}, 2
        s_lshr_b32 s{sT1}, s{sI}, 3
        s_add_u32 s{sP}, s{sT0}, s{sT1}
        s_and_b32 s{sDL}, s{sP}, 1
        s_lshl_b32 s{sDL}, s{sDL}, 3
        """)
        for srd, size in ((WS, WS_SIZE), (XS, 2359296), (QS, 1990656), (W1S, 5308416), (W2S, 5308416), (DS, 256), (OS, 2359296)):
            k(f"s_mov_b32 s{srd+2}, {size}"); k(f"s_mov_b32 s{srd+3}, 0x20000")
        k(f"""
        s_lshl_b32 s{sT0}, s{sR}, 7
        s_lshl_b32 s{sT1}, s{sWV}, 5
        s_add_u32 s{sT0}, s{sT0}, s{sT1}
        s_mul_i32 s{sXB}, s{sT0}, 1152
        s_lshr_b32 s{sT1}, s{sI}, 3
        s_lshl_b32 s{sT1}, s{sT1}, 1
        s_and_b32 s{sPH}, s{sI}, 7
        s_add_u32 s{sPH}, s{sPH}, s{sT1}
        s_sub_u32 s{sT1}, s{sPH}, 9
        s_cmp_ge_u32 s{sPH}, 9
        s_cselect_b32 s{sPH}, s{sT1}, s{sPH}
        s_mul_i32 s{sPH}, s{sPH}, {OPT["rot"]}
        s_mul_i32 s{sWK}, s{sPH}, 221184
        s_lshl_b32 s{sT1}, s{sPH}, 7
        s_add_u32 s{sXB}, s{sXB}, s{sT1}
        s_add_u32 s{sXB+1}, s{sXB}, 9216
        s_add_u32 s{sXB+2}, s{sXB}, {2*9216}
        s_add_u32 s{sXB+3}, s{sXB}, {3*9216}
        v_lshrrev_b32 v16, 3, v0
        v_and_b32 v17, 6, v16
        v_xor_b32 v17, v17, v0
        v_and_b32 v17, 7, v17
        s_movk_i32 s{sT1}, 1152
        v_mul_u32_u24 v12, s{sT1}, v16
        v_lshl_add_u32 v12, v17, 4, v12
        """)
        k(f"""
        s_and_b32 s{sT0}, s{sWV}, 1
        s_lshl_b32 s{sT0}, s{sT0}, 3
        v_lshl_add_u32 v16, v3, 1, s{sT0}
        v_sub_u32 v16, v2, v16
        v_and_b32 v16, 15, v16
        v_cmp_ne_u32 s[{sDM}:{sDM+1}], 15, v16
        v_mul_u32_u24 v17, 52, v16
        v_lshrrev_b32 v17, 8, v17
        s_movk_i32 s{sT1}, 1072
        v_mul_u32_u24 v17, s{sT1}, v17
        v_lshl_add_u32 v17, v16, 4, v17
        s_movk_i32 s{sT1}, 3456
        v_mul_u32_u24 v13, s{sT1}, v3
        s_mul_i32 s{sT0}, s{sWV}, 27648
        s_mul_i32 s{sT1}, s{sP}, 72
        s_add_u32 s{sT0}, s{sT0}, s{sT1}
        s_sub_u32 s{sT0}, s{sT0}, s{sDL}
        v_add3_u32 v13, v13, v17, s{sT0}
        s_lshl_b32 s{sDK}, s{sWV}, 11
        s_waitcnt lgkmcnt(0)
        """)
        if self.prof:
            k("v_mov_b32 v255, 0"); self.rt(62)
        self.ts("start")
        L = k.label("nz")
        k(f"s_cmp_lg_u32 s2, 0"); k(f"s_cbranch_scc1 {L}")
        for r in range(4): k(f"v_mov_b32 v{20+r}, 0")
        for n in range(ZERO_BYTES // 4096):
            k(f"s_movk_i32 s{sT0}, {n*4096}" if n * 4096 < 32768 else f"s_mov_b32 s{sT0}, {n*4096}")
            k(f"buffer_store_dwordx4 v[20:23], v15, {sr(WS,4)}, s{sT0} offen sc1")
        k(f"{L}:")

    def x_stage(self, s):
        k = self.k
        if s < 8:
            k(f"s_cmp_eq_u32 s{sPH}, 8"); k(f"s_cselect_b32 s{sXD}, -8, 1")
            k(f"s_cselect_b32 s{sPH}, -1, s{sPH}"); k(f"s_add_u32 s{sPH}, s{sPH}, 1")
            k(f"s_lshl_b32 s{sXD}, s{sXD}, 7")
        for j in range(4):
            k(f"s_add_u32 m0, s{sDK}, {(2*s + 2 + (j >> 1))*8192 + (j & 1)*1024}")
            k.vm(f"buffer_load_dwordx4 v12, {sr(XS,4)}, s{sXB+j} offen lds", ("x", s))
            if s < 8: k(f"s_add_u32 s{sXB+j}, s{sXB+j}, s{sXD}")
    def w_half(self, kk):
        k = self.k
        k(f"s_mov_b64 exec, s[{sDM}:{sDM+1}]")
        k(f"s_add_u32 m0, s{sDK}, {kk*8192}")
        k(f"s_add_u32 s{sXD}, s{sWK}, {13824-1024}")
        k.vm(f"buffer_load_dwordx4 v13, {sr(QS,4)}, s{sWK} offen lds", ("st", kk >> 1))
        k.vm(f"buffer_load_dwordx4 v13, {sr(QS,4)}, s{sXD} offen offset:1024 lds", ("st", kk >> 1))
        k(f"s_add_u32 s{sWK}, s{sWK}, 110592")
        if kk & 1: k(f"s_cmp_eq_u32 s{sWK}, {18*110592}"); k(f"s_cselect_b32 s{sWK}, 0, s{sWK}")
        k("s_mov_b64 exec, -1")
    def w_stage(self, s):
        self.w_half(2*s); self.w_half(2*s + 1)
    def w_touch(self):
        k = self.k
        k(f"""
        s_lshl_b32 s{sT0}, s{sI}, 2
        s_add_u32 s{sT0}, s{sT0}, s{sWV}
        s_mul_i32 s{sT0}, s{sT0}, 81
        s_lshr_b32 s{sT1}, s{sX}, 1
        s_lshl_b32 s{sT1}, s{sT1}, 8
        s_movk_i32 s{sT2}, 1152
        s_mov_b32 s{sT3}, 43691
        """)
        for h in range(2):
            k(f"""
            v_add_u32 v16, s{sT0}, v0
            v_mul_u32_u24 v17, s{sT3}, v16
            v_lshrrev_b32 v17, 18, v17
            v_mul_u32_u24 v18, 6, v17
            v_sub_u32 v18, v16, v18
            v_mul_u32_u24 v17, s{sT2}, v17
            v_lshl_add_u32 v17, v18, 6, v17
            """)
            if h: k("s_mov_b64 exec, 0x1ffff")
            k.vm(f"buffer_load_dword v{144+h}, v17, {sr(QS,4)}, s{sT1} offen", "touch")
            if h: k("s_mov_b64 exec, -1")
            else: k(f"s_add_u32 s{sT0}, s{sT0}, 64")
    def x_read(self, s):
        k = self.k
        if s in (4, 8):
            for a in (140, 141): k(f"v_add_u32 v{a}, 0x10000, v{a}")
        for h in range(2):
            for mt in range(2):
                k.ds(f"ds_read_b128 {ar(((2*s+h)*2+mt)*4,4)}, v{140+h} offset:{(s & 3)*16384 + mt*8192}", ("xr", s))
        if s < 8: self.ones()
    def ones(self):
        k = self.k
        k("s_mov_b64 exec, 0xffff")
        k.ds("ds_write_b128 v142, v[124:127]")
        k("s_mov_b64 exec, -1")
        k("v_add_u32 v142, 0x4000, v142")

    def setup_a(self):
        k = self.k
        for r in range(4): k(f"v_mov_b32 v{124+r}, {hex(ONE2)}")
        k(f"""
        s_and_b32 s{sT0}, s{sWV}, 1
        s_lshl_b32 s{sT0}, s{sT0}, 3
        s_add_u32 s{sT0}, s{sT0}, 15
        v_and_b32 v16, 3, v0
        v_lshl_add_u32 v16, v16, 1, s{sT0}
        v_and_b32 v16, 15, v16
        v_and_b32 v17, 7, v0
        v_lshlrev_b32 v18, 8, v17
        v_lshl_add_u32 v16, v16, 4, v18
        v_bfe_u32 v18, v0, 3, 1
        v_lshl_add_u32 v16, v18, 13, v16
        v_add_u32 v142, s{sDK}, v16
        v_and_b32 v16, 6, v0
        v_xor_b32 v16, v16, v3
        v_lshlrev_b32 v16, 4, v16
        v_lshl_add_u32 v16, v17, 7, v16
        v_lshl_add_u32 v143, v18, 10, v16
        s_add_u32 s{sT0}, s{sDK}, 16384
        v_add_u32 v140, s{sT0}, v143
        v_xor_b32 v141, 64, v140
        """)
        self.ones()
    def setup_b(self):
        k = self.k
        k(f"""
        v_lshrrev_b32 v16, 2, v2
        v_and_b32 v17, 3, v0
        v_and_b32 v18, 1, v3
        v_lshl_add_u32 v18, v18, 2, v16
        v_lshlrev_b32 v18, 5, v18
        v_add_u32 v18, s{sDL}, v18
        v_lshl_add_u32 v19, v3, 3, v16
        v_lshlrev_b32 v19, 8, v19
        v_lshl_add_u32 v20, v17, 3, v18
        s_movk_i32 s{sT0}, 255
        """)
        for reg, off in ((4, 80), (5, 120), (6, 160), (7, 200), (9, 0), (10, 40)):
            k(f"v_add_u32 v21, {off}, v20"); k(f"v_and_or_b32 v{reg}, v21, s{sT0}, v19")
        k(f"v_add_u32 v21, 32, v18"); k(f"v_and_or_b32 v11, v21, s{sT0}, v19")
        k(f"""
        v_mov_b32 v21, 112
        v_mov_b32 v22, 192
        v_cmp_eq_u32 vcc, 3, v17
        v_cndmask_b32 v21, v21, v22, vcc
        s_sub_u32 s{sT1}, 248, s{sDL}
        v_mov_b32 v22, s{sT1}
        v_cmp_eq_u32 vcc, 0, v17
        v_cndmask_b32 v21, v21, v22, vcc
        v_add_u32 v21, v21, v18
        v_and_or_b32 v8, v21, s{sT0}, v19
        """)
    def setup_c(self):
        k = self.k
        for reg, bits, one in ((248, 0x111, 1), (249, 0x3000, 0), (250, 0x222, 1), (251, 0xC000, 0),
                               (252, 0x30, 0), (253, 0xC00, 0), (254, 0x300, 0), (131, 0xC0, 0)):
            k(f"s_mov_b32 s{sT1}, {hex(bits)}"); k(f"v_bfe_i32 v{reg}, s{sT1}, v2, 1")
            if one: k(f"v_and_b32 v{reg}, {hex(ONE2)}, v{reg}")
        k(f"s_mov_b32 s{sPE}, 0x05040100"); k(f"s_mov_b32 s{sPO}, 0x07060302")

    def lane_off(self, t, c1, c2):
        k = self.k
        k(f"""
        v_and_b32 v16, 1, v3
        v_lshrrev_b32 v17, 1, v3
        v_mul_lo_u32 v16, v16, s{c1}
        v_mul_lo_u32 v17, v17, s{c2}
        v_lshlrev_b32 v18, 3, v2
        v_add3_u32 v{128+t}, v16, v17, v18
        """)
    def p_w1(self, t, n):
        k = self.k; b = sRL + 5*t; A, B, C, D = sT0, sT1, sT2, sT3
        k(f"""
        s_mul_i32 s{A}, s{n}, 205
        s_lshr_b32 s{A}, s{A}, 10
        s_mul_i32 s{B}, s{A}, 5
        s_sub_u32 s{B}, s{n}, s{B}
        s_cmp_eq_u32 s{B}, 4
        s_cselect_b32 s{B}, 8, s{B}
        s_sub_u32 s{C}, s{n}, 90
        s_and_b32 s{D}, s{C}, 3
        s_add_u32 s{D}, s{D}, 4
        s_lshr_b32 s{C}, s{C}, 2
        s_cmp_lt_u32 s{n}, 90
        s_cselect_b32 s{A}, s{A}, s{C}
        s_cselect_b32 s{B}, s{B}, s{D}
        s_lshr_b32 s{C}, s{A}, 1
        s_lshl_b32 s{C}, s{C}, 6
        s_and_b32 s{D}, s{A}, 1
        s_lshl_b32 s{D}, s{D}, 1
        s_add_u32 s{C}, s{C}, s{D}
        s_mul_i32 s{C}, s{C}, 9216
        s_lshl_b32 s{B}, s{B}, 7
        s_add_u32 s{C}, s{C}, s{B}
        s_mul_i32 s{D}, s{sX}, 1152
        s_add_u32 s{b}, s{C}, s{D}
        s_mov_b32 s{b+1}, {4*9216}
        s_mov_b32 s{b+2}, {16*9216 - 12*9216}
        s_mul_i32 s{C}, s{sX}, {4*324*1024}
        s_lshl_b32 s{D}, s{n}, 10
        s_add_u32 s{C}, s{C}, s{D}
        s_add_u32 s{b+3}, s{C}, {WT}
        s_mov_b32 s{b+4}, {324*1024}
        s_mov_b32 s{A}, {32*9216}
        s_mov_b32 s{B}, 9216
        """)
    def p_w2(self, t, n):
        k = self.k; b = sRL + 5*t; A, B, C, D, E = sT0, sT1, sT2, sT3, sT4
        k(f"""
        s_cmp_ge_u32 s{n}, 54
        s_cselect_b32 s{A}, 54, 0
        s_cselect_b32 s{B}, 3, 0
        s_sub_u32 s{A}, s{n}, s{A}
        s_mul_i32 s{C}, s{A}, 171
        s_lshr_b32 s{C}, s{C}, 9
        s_mul_i32 s{D}, s{C}, 3
        s_sub_u32 s{A}, s{A}, s{D}
        s_add_u32 s{B}, s{B}, s{A}
        s_sub_u32 s{A}, s{n}, 108
        s_and_b32 s{D}, s{A}, 1
        s_add_u32 s{D}, s{D}, 6
        s_lshr_b32 s{A}, s{A}, 1
        s_cmp_ge_u32 s{n}, 108
        s_cselect_b32 s{C}, s{A}, s{C}
        s_cselect_b32 s{B}, s{D}, s{B}
        s_sub_u32 s{A}, s{n}, 144
        s_cmp_ge_u32 s{n}, 144
        s_cselect_b32 s{C}, s{A}, s{C}
        s_cselect_b32 s{B}, 8, s{B}
        s_add_u32 s{A}, s{sX}, s{B}
        s_and_b32 s{A}, s{A}, 7
        s_cmp_eq_u32 s{B}, 0
        s_cselect_b32 s{A}, 8, s{A}
        s_lshl_b32 s{A}, s{A}, 7
        s_add_u32 s{B}, s{C}, 8
        s_sub_u32 s{D}, s{C}, 2
        s_cmp_lt_u32 s{C}, 10
        s_cselect_b32 s{B}, s{B}, s{D}
        s_cmp_lt_u32 s{C}, 8
        s_cselect_b32 s{C}, s{C}, s{B}
        s_lshr_b32 s{B}, s{C}, 2
        s_lshl_b32 s{B}, s{B}, 7
        s_and_b32 s{D}, s{C}, 3
        s_add_u32 s{B}, s{B}, s{D}
        s_lshl_b32 s{D}, s{C}, 1
        s_add_u32 s{D}, s{D}, 480
        s_mov_b32 s{E}, {1152 - 12*1152 + (1 << 32)}
        s_cmp_lt_u32 s{C}, 16
        s_cselect_b32 s{B}, s{B}, s{D}
        s_cselect_b32 s{b+2}, {64*1152 - 12*1152}, s{E}
        s_mul_i32 s{D}, s{sX}, 576
        s_add_u32 s{B}, s{B}, s{D}
        s_mul_i32 s{B}, s{B}, 1152
        s_add_u32 s{b}, s{B}, s{A}
        s_mov_b32 s{b+1}, {4*1152}
        s_mul_i32 s{C}, s{sX}, {4*324*1024}
        s_lshl_b32 s{D}, s{n}, 10
        s_add_u32 s{C}, s{C}, s{D}
        s_add_u32 s{b+3}, s{C}, {WT + 162*1024}
        s_mov_b32 s{b+4}, {324*1024}
        s_mov_b32 s{A}, {16*1152}
        s_mov_b32 s{B}, {32*1152}
        """)
    def p_wo(self, t, n):
        k = self.k; b = sRL + 5*t; A, B, C, D, E = sT0, sT1, sT2, sT3, sT4
        k(f"""
        s_mul_i32 s{A}, s{n}, 57
        s_lshr_b32 s{A}, s{A}, 10
        s_mul_i32 s{B}, s{A}, 18
        s_sub_u32 s{B}, s{n}, s{B}
        s_mul_i32 s{C}, s{A}, {4*18*1024}
        s_lshl_b32 s{D}, s{B}, 10
        s_add_u32 s{C}, s{C}, s{D}
        s_add_u32 s{b+3}, s{C}, {WOT}
        s_mov_b32 s{b+4}, {18*1024}
        s_mul_i32 s{C}, s{B}, 36
        s_mul_i32 s{D}, s{B}, 288
        s_sub_u32 s{D}, s{D}, {288*16 - 16}
        s_mov_b32 s{E}, {33*1152}
        s_cmp_lt_u32 s{B}, 16
        s_cselect_b32 s{C}, s{C}, s{D}
        s_cselect_b32 s{b+2}, {17*1152}, s{E}
        s_mov_b32 s{E}, {72*1152}
        s_cselect_b32 s{E}, {4*1152}, s{E}
        s_mul_i32 s{C}, s{C}, 1152
        s_lshl_b32 s{A}, s{A}, 7
        s_add_u32 s{b}, s{C}, s{A}
        s_mov_b32 s{b+1}, 1152
        s_mov_b32 s{A}, s{E}
        s_lshl_b32 s{B}, s{E}, 1
        """)
    def relay_params(self, early):
        k = self.k; n = sT5
        k(f"s_lshl_b32 s{n}, s{sI}, 2"); k(f"s_add_u32 s{n}, s{n}, s{sWV}")
        LB, LD = k.label("tb"), k.label("td")
        if early == 0:
            k(f"s_mov_b32 s{T2S+3}, 0x20000")
            k(f"""
            s_cmp_lt_u32 s{n}, 107
            s_cselect_b64 s[{T2S}:{T2S+1}], s[{W1S}:{W1S+1}], s[{sWO}:{sWO+1}]
            s_mov_b32 s{T2S+2}, 663552
            s_cselect_b32 s{T2S+2}, 5308416, s{T2S+2}
            s_mov_b32 s{sV2}, 1
            s_cbranch_scc0 {LB}
            """)
            self.p_w1(0, n); k(f"s_branch {LD}"); k(f"{LB}:")
            k(f"""
            s_sub_u32 s{n}, s{n}, 107
            s_lshl_b32 s{n}, s{n}, 3
            s_add_u32 s{n}, s{n}, s{sX}
            s_cmp_lt_u32 s{n}, 162
            s_cselect_b32 s{sV2}, 1, 0
            s_cselect_b32 s{n}, s{n}, 0
            """)
            self.p_wo(0, n); self.void(0, sV2); k(f"{LD}:")
            self.lane_off(0, sT0, sT1)
        elif early == 1:
            self.p_w2(1, n); self.lane_off(1, sT0, sT1)
        else:
            k(f"""
            s_mov_b32 s{T3S+3}, 0x20000
            s_cmp_lt_u32 s{n}, 89
            s_cselect_b32 s{sV3}, 1, 0
            s_cmp_lt_u32 s{n}, 55
            s_cselect_b64 s[{T3S}:{T3S+1}], s[{W1S}:{W1S+1}], s[{W2S}:{W2S+1}]
            s_mov_b32 s{T3S+2}, 5308416
            s_cbranch_scc0 {LB}
            s_add_u32 s{n}, s{n}, 107
            """)
            self.p_w1(2, n); k(f"s_branch {LD}"); k(f"{LB}:")
            k(f"s_add_u32 s{n}, s{n}, 73"); k(f"s_min_u32 s{n}, s{n}, 161")
            self.p_w2(2, n); self.void(2, sV3); k(f"{LD}:")
            self.lane_off(2, sT0, sT1)
    def void(self, t, valid):
        k = self.k; b = sRL + 5*t
        k(f"s_cmp_eq_u32 s{valid}, 0")
        k(f"s_cselect_b32 s{b}, 0x7f000000, s{b}"); k(f"s_cselect_b32 s{b+3}, 0x7f000000, s{b+3}")
    def relay_loads(self, t):
        k = self.k; b = sRL + 5*t; srd = (T2S, W2S, T3S)[t]
        k(f"s_mov_b32 s{sT2}, s{b}")
        for s in range(8):
            k.vm(f"buffer_load_dwordx2 {vr(200+16*t+2*s,2)}, v{128+t}, {sr(srd,4)}, s{sT2} offen", ("rl", t))
            if s < 7: k(f"s_add_u32 s{sT2}, s{sT2}, s{b+2 if s == 3 else b+1}")
    def relay_store_ops(self, t, tmp):
        k = self.k; b = sRL + 5*t; ops = []
        for e in range(4):
            o = tmp + 4*e
            for d in range(4):
                lo = 200+16*t+2*(2*d)+(e >> 1); hi = lo + 2
                ops.append(lambda o=o, d=d, lo=lo, hi=hi, e=e: k(f"v_perm_b32 v{o+d}, v{hi}, v{lo}, s{sPO if e & 1 else sPE}"))
            ops.append(lambda o=o: (k.vm(f"buffer_store_dwordx4 {vr(o,4)}, v1, {sr(WS,4)}, s{b+3} offen sc1", ("rs", t)),
                                    k(f"s_add_u32 s{b+3}, s{b+3}, s{b+4}")))
        return ops
    def relay_stores(self, t, tmp):
        for f in self.relay_store_ops(t, tmp): f()

    def tr_reads(self, kk, addrs, buf):
        k = self.k; out = []
        for T, a in enumerate(addrs):
            for h in range(2):
                off = (kk & 7) * 8192 + 1024 * h
                out.append(lambda T=T, a=a, h=h, off=off: k.ds(
                    f"ds_read_b64_tr_b16 {vr(buf+4*T+2*h,2)}, v{a} offset:{off}", ("b", kk)))
        return out
    def bump(self, addrs):
        for a in addrs: self.k(f"v_add_u32 v{a}, 0x10000, v{a}")

    def phase_a(self):
        k = self.k
        if OPT["touch"]: self.w_touch()
        self.w_stage(0)
        chunks = [self.setup_a, lambda: self.relay_params(0), self.setup_b, self.setup_c,
                  lambda: self.relay_params(1), lambda: self.relay_params(2)]
        for s in range(9):
            self.x_stage(s)
            if s >= 1 and chunks: chunks.pop(0)()
        self.relay_loads(0)
        self.ts("issued")
        KA = [4, 5, 6, 7, 8]
        PRE = OPT["pre"]
        for s in range(PRE):
            k.wait(vm=("x", s))
            if s == 0:
                self.ts("x0")
                L = k.label("ng")
                k("s_cmp_lg_u32 s2, 0"); k(f"s_cbranch_scc1 {L}"); k("s_barrier")
                k("v_mov_b32 v16, 1"); k("v_mov_b32 v17, 0"); k("s_mov_b64 exec, 1")
                k(f"buffer_store_dword v16, v17, {sr(DS,4)}, 0 offen sc1"); k("s_mov_b64 exec, -1"); k(f"{L}:")
            self.x_read(s)
            if s > 0: k.wait(ds=[("xr", s - 1)]); self.w_stage(s)
        k("s_barrier")
        self.ts("A.first")
        for f in self.tr_reads(0, KA, 64): f()
        rs0 = None
        for kk in range(18):
            buf = 64 + 20 * (kk & 1)
            fill = []; nx = (kk >> 1) + PRE
            if nx < 9 and kk & 1 == 0:
                fill.append(lambda s=nx: (k.wait(vm=("x", s)), self.x_read(s)))
            if kk + 1 < 18:
                if (kk + 1) % 2 == 0:
                    fill.append(lambda s=(kk+1)//2: (k.wait(vm=("st", s)), k("s_barrier")))
                if (kk + 1) % 8 == 0: fill.append(lambda: self.bump(KA))
                fill += self.tr_reads(kk + 1, KA, 64 + 20 * ((kk + 1) & 1))
            if nx < 9:
                fill.insert(3, lambda h=2*nx + (kk & 1): (k.wait(ds=[("xr", (h >> 1) - 1)]), self.w_half(h)))
            KR = 2 * (9 - PRE)
            if kk == KR:
                rs0 = self.relay_store_ops(0, 184); fill.append(lambda: k.wait(vm=("rl", 0)))
            if kk in (KR, KR + 1):
                for _ in range(10): fill.append(rs0.pop(0))
            if kk == KR + 1:
                fill.append(lambda: (k("v_mov_b32 v14, 0"), k.vm(f"buffer_load_dword v14, v14, {sr(DS,4)}, 0 offen sc1", "gate")))
            if kk in (KR + 2, KR + 3): fill.append(lambda t=kk-KR-1: self.relay_loads(t))
            k.wait(ds=[("b", kk)])
            ms = []
            for T in range(5):
                for mt in range(2):
                    d = vr(16 + 8*T + 4*mt, 4)
                    ms.append((d, ar((kk*2+mt)*4, 4), vr(buf + 4*T, 4), d if kk else None))
            for mt in range(2):
                d = vr(56 + 4*mt, 4); xa = ar((kk*2+mt)*4, 4)
                ms.append((d, xa, xa, d if kk else None))
            for m in ms:
                self.mfma(*m)
                if fill: fill.pop(0)()
            L = k.label("cs")
            k(f"s_cmp_lg_u32 s{sWV}, {kk & 3}"); k(f"s_cbranch_scc1 {L}")
            for T in range(5):
                d = vr(104 + 4*T, 4); self.mfma(d, "v[124:127]", vr(buf + 4*T, 4), d if kk >= 4 else None)
            k(f"{L}:")
            while fill: fill.pop(0)()
        self.ts("A.kloop")
        k(f"""
        s_lshl_b32 s{sT0}, s{sWV}, 8
        s_add_u32 s{sT0}, s{sT0}, {ST}
        v_lshl_add_u32 v132, v3, 4, s{sT0}
        v_lshl_add_u32 v133, v2, 2, s{sT0}
        s_lshl_b32 s{sT0}, s{sWV}, 2
        s_add_u32 s{sT0}, s{sT0}, {CS}
        v_lshl_add_u32 v134, v2, 4, s{sT0}
        v_lshlrev_b32 v135, 4, v2
        v_add_u32 v135, {CS}, v135
        """)
        self.setexec(0x0001000100010001)
        for mt in range(2): k.ds(f"ds_write_b128 v132, {vr(48+4*mt,4)} offset:{128*mt}")
        for r in range(4):
            self.setexec(0x1000010000100001 << r)
            for mt in range(2): k.ds(f"ds_write_b32 v133, v{56+4*mt+r} offset:{64+128*mt}")
        self.setexec(0xffff)
        for T in range(5): k.ds(f"ds_write_b32 v134, v{104+4*T} offset:{256*T}")
        self.setexec(-1)
        k.wait(ds="all"); k("s_barrier")
        for mt in range(2):
            k.ds(f"ds_read_b128 {vr(136+8*mt,4)}, v132 offset:{128*mt}", ("s", mt))
            k.ds(f"ds_read_b128 {vr(140+8*mt,4)}, v132 offset:{128*mt+64}", ("s", mt))
        for T in range(5): k.ds(f"ds_read_b128 {vr(104+4*T,4)}, v135 offset:{256*T}", ("c", T))
        k(f"s_mov_b32 s{sC0}, {hex(f2u(-1/576))}"); k(f"s_mov_b32 s{sC1}, {hex(f2u(1/576))}")
        k(f"s_mov_b32 s{sC2}, {hex(f2u(1.4426950408889634))}"); k(f"s_mov_b32 s{sC3}, {hex(f2u(1e-6))}")
        k(f"v_mov_b32 v15, {hex(f2u(1e-5))}")
        NM = lambda mt, r: 136 + 8*mt + r
        RS = lambda mt, r: 140 + 8*mt + r
        RLg = lambda mt, r: 152 + 4*mt + r
        for mt in range(2):
            k.wait(ds=[("s", mt)])
            self.stats([(NM(mt, r), RS(mt, r), RLg(mt, r)) for r in range(4)])
        for T in range(5):
            k.wait(ds=[("c", T)]); c = 104 + 4*T
            k(f"v_add_f32 v{c}, v{c}, v{c+1}"); k(f"v_add_f32 v{c+2}, v{c+2}, v{c+3}"); k(f"v_add_f32 v{c}, v{c}, v{c+2}")
        k(f"s_mov_b32 s{sMK}, 0xf000f000"); k(f"s_mov_b32 s{sMK+1}, 0xf000f000")
        PK = lambda T: 160 + 4*T
        for T in (0, 2, 1, 3, 4):
            for mt in range(2):
                el = [(16 + 8*T + 4*mt + r, NM(mt, r), 104 + 4*T, RS(mt, r), RLg(mt, r)) for r in range(4)]
                self.affine(el, phi=T in (0, 1, 4), keep=(T == 4), tmp=64)
                for h in range(2):
                    a = 16 + 8*T + 4*mt + 2*h
                    k(f"v_cvt_pk_bf16_f32 v{PK(T)+2*mt+h}, v{a}, v{a+1}")
            if T == 2: self.mfma("v[16:19]", vr(PK(0), 4), vr(PK(2), 4))
            if T == 3: self.mfma("v[20:23]", vr(PK(1), 4), vr(PK(3), 4))
        X = PK(4); BA, BB, AC, AD, AEA, AEB = 72, 76, 80, 84, 88, 92
        for d in range(4): k(f"v_and_or_b32 v{BA+d}, v{X+d}, v249, v248")
        for d in range(4): k(f"v_and_b32 v{AC+d}, v{X+d}, v252")
        self.mfma("v[24:27]", vr(PK(0), 4), vr(BA, 4))
        for d in range(4): k(f"v_and_or_b32 v{BB+d}, v{X+d}, v251, v250")
        self.mfma("v[28:31]", vr(AC, 4), vr(PK(2), 4))
        for d in range(4): k(f"v_and_b32 v{AD+d}, v{X+d}, v253")
        self.mfma("v[24:27]", vr(PK(1), 4), vr(BB, 4), "v[24:27]")
        for d in range(4): k(f"v_and_b32 v{AEA+d}, v{X+d}, v254")
        self.mfma("v[28:31]", vr(AD, 4), vr(PK(3), 4), "v[28:31]")
        for d in range(4): k(f"v_and_b32 v{AEB+d}, v{X+d}, v131")
        self.mfma("v[28:31]", vr(AEA, 4), vr(BA, 4), "v[28:31]")
        self.mfma("v[28:31]", vr(AEB, 4), vr(BB, 4), "v[28:31]")
        self.ts("A.epi")
        k(f"v_add_u32 v134, {AUX}, v1")
        LD = k.label("kvd"); labs = [k.label("kv") for _ in range(4)]
        for w in range(4):
            k(f"{labs[w]}:")
            if w < 3: k(f"s_cmp_lg_u32 s{sWV}, {w}"); k(f"s_cbranch_scc1 {labs[w+1]}")
            for T in range(4):
                if T != w: k(f"ds_write_b128 v134, {vr(16+4*T,4)} offset:{T*3072 + ((w-T-1) & 3)*1024}")
            for r in range(4): k(f"v_mov_b32 v{32+r}, v{16+4*w+r}")
            if w < 3: k(f"s_branch {LD}")
        k(f"{LD}:")
        k(f"s_mul_i32 s{sT0}, s{sWV}, 3072"); k(f"v_add_u32 v134, s{sT0}, v134")
        k("s_waitcnt lgkmcnt(0)"); k.lq = []; k("s_barrier")
        for q in range(3): k.ds(f"ds_read_b128 {vr(16+4*q,4)}, v134 offset:{q*1024}", ("r", q))
        k(f"""
        s_lshl_b32 s{sT0}, s{sP}, 4
        s_add_u32 s{sT0}, s{sT0}, s{sR}
        s_lshl_b32 s{sT0}, s{sT0}, 2
        s_add_u32 s{sT0}, s{sT0}, s{sWV}
        s_lshl_b32 s{sT0}, s{sT0}, 10
        s_add_u32 s{sT0}, s{sT0}, {KVP}
        """)
        for q in range(3):
            k.wait(ds=[("r", q)])
            for r in range(4): k(f"v_add_f32 v{32+r}, v{32+r}, v{16+4*q+r}")
        k.vm(f"buffer_store_dwordx4 v[32:35], v1, {sr(WS,4)}, s{sT0} offen sc1", "kvp")
        self.ts("A.kvst")

    def stats(self, L):
        k = self.k
        for a, b, c in L: k(f"v_mul_f32 v{a}, s{sC0}, v{a}")
        for a, b, c in L: k(f"v_fma_f32 v{b}, v{b}, s{sC1}, v15")
        for a, b, c in L: k(f"v_fma_f32 v{b}, -v{a}, v{a}, v{b}")
        for a, b, c in L: k(f"v_max_f32 v{b}, v{b}, v15")
        for a, b, c in L: k(f"v_rsq_f32 v{b}, v{b}")
        for a, b, c in L:
            if c is not None: k(f"v_mul_f32 v{c}, s{sC2}, v{b}")
    def affine(self, el, phi, keep, tmp):
        k = self.k
        for a, nm, cs, rs, rl in el: k(f"v_fma_f32 v{a}, v{nm}, v{cs}, v{a}")
        if not phi:
            for a, nm, cs, rs, rl in el: k(f"v_mul_f32 v{a}, v{a}, v{rs}")
            return
        for n, (a, nm, cs, rs, rl) in enumerate(el): k(f"v_mul_f32 v{tmp+n}, v{a}, v{rl}")
        if keep:
            for n, (a, nm, cs, rs, rl) in enumerate(el): k(f"v_mul_f32 v{tmp+4+n}, v{a}, v{rs}")
        for n, (a, nm, cs, rs, rl) in enumerate(el): k(f"v_exp_f32 v{tmp+n}, v{tmp+n} clamp")
        for a, nm, cs, rs, rl in el: k(f"v_fma_f32 v{a}, v{a}, v{rs}, s{sC3}")
        for a, nm, cs, rs, rl in el: k(f"v_max_f32 v{a}, s{sC3}, v{a}")
        for n, (a, nm, cs, rs, rl) in enumerate(el): k(f"v_add_f32 v{a}, v{a}, v{tmp+n}")
        if keep:
            for n, (a, nm, cs, rs, rl) in enumerate(el):
                k(f"v_cndmask_b32 v{a}, v{a}, v{tmp+4+n}, s[{sMK}:{sMK+1}]")

    def finish(self):
        k = self.k
        if self.prof:
            self.ts("end"); self.rt(63)
            k(f"""
            s_lshl_b32 s{sT0}, s2, 2
            s_add_u32 s{sT0}, s{sT0}, s{sWV}
            s_lshl_b32 s{sT0}, s{sT0}, 8
            s_add_u32 s{sT0}, s{sT0}, {PROF}
            v_lshlrev_b32 v4, 2, v0
            buffer_store_dword v255, v4, {sr(WS,4)}, s{sT0} offen
            """)
            if self.dbgwg is not None:
                k(f"s_cmp_lg_u32 s2, {self.dbgwg}"); k("s_cbranch_scc1 L_nd")
                k(f"s_cmp_lg_u32 s{sWV}, 0"); k("s_cbranch_scc1 L_nd")
                k("v_readlane_b32 s3, v255, 0"); k("v_subrev_u32 v255, s3, v255")
                k("s_mov_b64 exec, 0xfffe")
                k(f"buffer_store_dword v255, v4, {sr(DS,4)}, 0 offen"); k("L_nd:")
        k("s_waitcnt vmcnt(0)"); k("L_end:"); k("s_endpgm")


def build(stop=None, prof=False, only=None, dbgwg=None):
    from gen2 import hop1, phase_b, phase_f
    g = G(stop, prof); g.only = only; g.dbgwg = dbgwg
    g.prologue(); g.phase_a()
    for name, fn in (("q", hop1), ("b", phase_b), ("f", phase_f)):
        if stop == "pre" + name: break
        fn(g)
    g.finish()
    hdr = "".join(open("cdna_kernels/" + NAME + ".s.ref").readlines()[:12]) if True else ""
    txt = g.k.text(hdr, NAME + "_kernel", 256, 256, 102, (256, 1, 1), (256, 1, 1), 163840)
    return txt, g

if __name__ == "__main__":
    out = sys.argv[1]; stop = sys.argv[2] if len(sys.argv) > 2 and sys.argv[2] != "-" else None
    prof = len(sys.argv) > 3
    txt, g = build(stop, prof)
    open(out, "w").write(txt)
    import json; json.dump(g.tsn, open(out + ".ts.json", "w"))
    print("lines", txt.count("\n"), "bytes", len(txt), "nop states", g.k.nops)
```

```python
from kgen import *
import gen as _g
from gen import *

NP1, NP2A = OPT['np1'], OPT['np2']
RING = 60
XRB = 81920
WOA = 96

def ring_load(g, seq):
    k = g.k
    if seq % 4 == 0:
        k(f"s_add_u32 s{sA0}, s{sA1}, {seq*1024}")
    k.vm(f"buffer_load_dwordx4 {ar(4*(seq % RING),4)}, v1, {sr(WS,4)}, s{sA0} offen offset:{(seq % 4)*1024} sc1", ("w", seq))

def p_touch(g):
    k = g.k
    k("v_lshlrev_b32 v158, 7, v0")
    for h in range(2):
        k(f"""
        s_lshl_b32 s{sT0}, s{sWV}, 1
        s_add_u32 s{sT0}, s{sT0}, s{sJ}
        s_add_u32 s{sT0}, s{sT0}, {h}
        s_and_b32 s{sT0}, s{sT0}, 7
        s_cmp_eq_u32 s{sT0}, s{sJ}
        s_cselect_b32 s{sT0}, 8, s{sT0}
        s_mul_i32 s{sT1}, s{sRF}, 9
        s_add_u32 s{sT0}, s{sT0}, s{sT1}
        s_lshl_b32 s{sT0}, s{sT0}, 3
        s_add_u32 s{sT0}, s{sT0}, s{sJ}
        s_lshl_b32 s{sT0}, s{sT0}, 13
        s_add_u32 s{sT0}, s{sT0}, {PB}
        """)
        k.vm(f"buffer_load_dword v{156+h}, v158, {sr(WS,4)}, s{sT0} offen sc1", "pt")

def hop1(g):
    k = g.k
    QA = [9, 10, 11]
    for f in g.tr_reads(0, QA, 64): f()
    k(f"""
    s_lshr_b32 s{sT0}, s{sI}, 3
    s_lshl_b32 s{sBR}, s{sX}, 2
    s_add_u32 s{sBR}, s{sBR}, s{sT0}
    s_and_b32 s{sBC}, s{sI}, 7
    v_mov_b32 v6, 0
    """)
    if OPT["fmap"]:
        k(f"""
        s_and_b32 s{sJ}, s{sX}, 6
        s_and_b32 s{sT0}, s{sI}, 1
        s_add_u32 s{sJ}, s{sJ}, s{sT0}
        s_and_b32 s{sRF}, s{sX}, 1
        s_lshl_b32 s{sRF}, s{sRF}, 4
        s_lshr_b32 s{sT0}, s{sI}, 1
        s_add_u32 s{sRF}, s{sRF}, s{sT0}
        """)
    else:
        k(f"s_mov_b32 s{sJ}, s{sX}"); k(f"s_mov_b32 s{sRF}, s{sI}")
    k(f"""
    s_lshl_b32 s{sT3}, s{sP}, 8
    s_lshl_b32 s{sT0}, s{sWV}, 6
    s_add_u32 s{sT3}, s{sT3}, s{sT0}
    s_lshl_b32 s{sT0}, s{sR}, 2
    s_add_u32 s{sT4}, s{sT3}, s{sT0}
    """)
    rsq = []
    for t in (1, 2)[:OPT["rsq"]]: rsq += g.relay_store_ops(t, 176 + 8*0)
    def ready_loads():
        k(f"""
        v_lshlrev_b32 v135, 10, v3
        v_lshl_add_u32 v135, v2, 4, v135
        s_movk_i32 s{sA0}, {FK + 768}
        s_lshr_b32 s{sA1}, s{sJ}, 1
        s_lshl_b32 s{sA1}, s{sA1}, 10
        """)
        k.vm(f"buffer_load_dwordx4 v[168:171], v135, {sr(WS,4)}, s{sA0} offen sc1", "fw")
        k.vm(f"buffer_load_dwordx4 v[172:175], v1, {sr(WS,4)}, s{sA1} offen sc1", "fw")
    g.ts("Q.start")
    for kk in range(18):
        buf = 64 + 12 * (kk & 1); fill = []
        if kk + 1 < 18:
            if (kk + 1) % 8 == 0: fill.append(lambda: g.bump(QA))
            fill += g.tr_reads(kk + 1, QA, 64 + 12 * ((kk + 1) & 1))
        else:
            for mt in range(2):
                fill.append(lambda mt=mt: k.ds(f"ds_read_b32 v{136+mt}, v133 offset:{128*mt}", "qs"))
                fill.append(lambda mt=mt: k.ds(f"ds_read_b32 v{138+mt}, v133 offset:{128*mt+64}", "qs"))
        if kk == 3:
            fill.append(lambda: (k.wait(vm="kvp"), g.check(6, "0", 14, 1, srd=DS), k("v_mov_b32 v14, 1"), g.flag(f"s{sT4}", 14, 6)))
        if 4 <= kk < 9:
            for _ in range(8):
                if rsq: fill.append(rsq.pop(0))
        if kk == 12: fill.append(ready_loads)
        if kk == 5 and OPT["ptouch"]: fill.append(lambda: p_touch(g))
        k.wait(ds=[("b", kk)])
        ms = []
        for T in range(3):
            for mt in range(2):
                d = vr(16 + 8*T + 4*mt, 4)
                ms.append((d, vr(buf + 4*T, 4), ar((kk*2+mt)*4, 4), d if kk else None))
            d = vr(40 + 4*T, 4); ms.append((d, vr(buf + 4*T, 4), "v[124:127]", d if kk else None))
        for m in ms:
            g.mfma(*m)
            if fill: fill.pop(0)()
        while fill: fill.pop(0)()
    k.wait(ds=["qs"])
    g.stats([(136 + mt, 138 + mt, 140 + mt) for mt in range(2)])
    for T in range(3):
        for mt in range(2):
            el = [(16 + 8*T + 4*mt + r, 136 + mt, 40 + 4*T + r, 138 + mt, 140 + mt) for r in range(4)]
            g.affine(el, phi=True, keep=False, tmp=64)
            dst = 144 + 4*mt + 2*T if T < 2 else 152 + 2*mt
            for h in range(2):
                a = 16 + 8*T + 4*mt + 2*h
                k(f"v_cvt_pk_bf16_f32 v{dst+h}, v{a}, v{a+1}")
    for reg, bits in ((248, 0x3111), (249, 0xC222)):
        k(f"s_mov_b32 s{sT1}, {hex(bits)}"); k(f"v_bfe_i32 v{reg}, s{sT1}, v2, 1")
    k("v_bfe_i32 v250, 2, v3, 1"); k("v_bfe_i32 v251, 4, v3, 1")
    k(f"""
    v_lshlrev_b32 v134, 2, v2
    s_lshl_b32 s{sT0}, s{sP}, 16
    s_lshl_b32 s{sT1}, s{sWV}, 10
    s_add_u32 s{sT0}, s{sT0}, s{sT1}
    s_add_u32 s{sT0}, s{sT0}, {KVP}
    s_lshl_b32 s{sT1}, s{sWV}, 9
    s_add_u32 s{sT1}, s{sT1}, {KVX}
    v_lshl_add_u32 v132, v0, 3, s{sT1}
    v_lshlrev_b32 v133, 3, v0
    v_add_u32 v133, {KVX}, v133
    """)
    g.ts("Q.end")
    g.poll(134, f"s{sT3}", 136)
    g.check(135, f"s{sA0}", 168, 4); g.check(1, f"s{sA1}", 172, 4)
    g.ts("FK.seen")
    for q in range(16):
        k.vm(f"buffer_load_dwordx4 {vr(64+4*q,4)}, v1, {sr(WS,4)}, s{sT0} offen sc1", ("kv", q))
        if q < 15: k(f"s_add_u32 s{sT0}, s{sT0}, 4096")
    k(f"""
    s_lshl_b32 s{sT0}, s{sBC}, 2
    s_add_u32 s{sT0}, s{sT0}, s{sWV}
    s_mul_i32 s{sT0}, s{sT0}, 18432
    s_add_u32 s{sT0}, s{sT0}, {WOT}
    """)
    for kk in range(18):
        k.vm(f"buffer_load_dwordx4 {ar(WOA+4*kk,4)}, v1, {sr(WS,4)}, s{sT0} offen offset:{(kk & 3)*1024} sc1", "wo")
        if kk & 3 == 3: k(f"s_add_u32 s{sT0}, s{sT0}, 4096")
    k(f"""
    s_lshl_b32 s{sT0}, s{sBR}, 6
    s_lshl_b32 s{sT1}, s{sWV}, 4
    s_add_u32 s{sT1}, s{sT1}, s{sT0}
    s_mul_i32 s{sT1}, s{sT1}, 1152
    s_lshl_b32 s{sT2}, s{sBC}, 7
    s_add_u32 s{sXB}, s{sT1}, s{sT2}
    s_add_u32 s{sXB+1}, s{sXB}, 9216
    s_lshr_b32 s{sT1}, s{sBC}, 1
    s_lshl_b32 s{sT1}, s{sT1}, 4
    s_add_u32 s{sT0}, s{sT0}, s{sT1}
    s_lshl_b32 s{sT1}, s{sWV}, 3
    s_add_u32 s{sT0}, s{sT0}, s{sT1}
    s_mul_i32 s{sT0}, s{sT0}, 1152
    s_add_u32 s{sXB+2}, s{sT0}, 1024
    s_cmp_lt_u32 s{sWV}, 2
    s_cselect_b32 s{sXB+2}, s{sXB+2}, 0x7f000000
    """)
    for q in range(1, 16):
        k.wait(vm=("kv", q)); d = 64 + 4*(q & 1 if q > 1 else 0)
        if q == 1: continue
        for h in range(2): k(f"v_pk_add_f32 {vr(d+2*h,2)}, {vr(d+2*h,2)}, {vr(64+4*q+2*h,2)}")
    for h in range(2): k(f"v_pk_add_f32 {vr(64+2*h,2)}, {vr(64+2*h,2)}, {vr(68+2*h,2)}")
    k("v_cvt_pk_bf16_f32 v160, v64, v65"); k("v_cvt_pk_bf16_f32 v161, v66, v67")
    k.ds("ds_write_b64 v132, v[160:161]")
    k.wait(ds="all"); k("s_barrier")
    for T in range(4): k.ds(f"ds_read_b64 {vr(160+2*T,2)}, v133 offset:{512*T}", ("x", T))
    for j in range(3):
        k(f"s_add_u32 m0, s{sDK}, {XRB + 1024*j}" if j < 2 else f"s_lshr_b32 s{sT0}, s{sDK}, 1")
        if j == 2: k(f"s_add_u32 m0, s{sT0}, {XRB + 8192}")
        k.vm(f"buffer_load_dwordx4 v12, {sr(XS,4)}, s{sXB+j} offen lds", "xr")
    k(f"""
    s_lshl_b32 s{sT0}, s{sR}, 1
    s_lshr_b32 s{sT1}, s{sWV}, 1
    s_add_u32 s{sT0}, s{sT0}, s{sT1}
    s_lshl_b32 s{sT4}, s{sT0}, 7
    s_mul_i32 s{sT0}, s{sT0}, 73728
    s_and_b32 s{sT1}, s{sWV}, 1
    s_lshl_b32 s{sT2}, s{sT1}, 11
    s_add_u32 s{sT0}, s{sT0}, s{sT2}
    s_add_u32 s{sT0}, s{sT0}, {OB}
    s_lshl_b32 s{sT1}, s{sT1}, 2
    s_add_u32 s{sT4}, s{sT4}, s{sT1}
    s_lshl_b32 s{sT1}, s{sP}, 3
    s_add_u32 s{sT4}, s{sT4}, s{sT1}
    s_add_u32 s{sT4}, s{sT4}, {FO}
    s_lshr_b32 s{sT1}, s{sP}, 3
    s_add_u32 s{sT1}, s{sT1}, 16
    s_lshl_b32 s{sT1}, s{sT1}, 12
    s_and_b32 s{sT2}, s{sP}, 6
    s_lshl_b32 s{sT2}, s{sT2}, 7
    s_add_u32 s{sT1}, s{sT1}, s{sT2}
    s_add_u32 s{sT1}, s{sT1}, s{sDL}
    s_add_u32 s{sT1}, s{sT1}, s{sT0}
    s_lshl_b32 s{sT2}, s{sP}, 12
    s_add_u32 s{sT0}, s{sT0}, s{sT2}
    v_lshlrev_b32 v134, 4, v2
    """)
    T0, T1, O1, O2 = 160, 162, 164, 166
    AF, A0L, A1L, AFL = 56, 60, 62, 64
    E = lambda q, mt: 16 + 12*mt + 4*q
    k.wait(ds=[("x", 1)])
    for mt in range(2):
        g.mfma(vr(E(0, mt), 4), vr(T0, 2), vr(144 + 4*mt, 2), k16=True)
        g.mfma(vr(E(1, mt), 4), vr(T1, 2), vr(146 + 4*mt, 2), k16=True)
    k.wait(ds=[("x", 3)])
    k(f"""
    v_mov_b32 v61, 0
    v_mov_b32 v62, 0
    v_and_b32 v{AF}, v{O1}, v248
    v_and_b32 v{AF+1}, v{O1+1}, v248
    v_and_b32 v{AF+2}, v{O1}, v249
    v_and_b32 v{AF+3}, v{O1+1}, v249
    v_and_b32 v{AFL}, v{O2}, v251
    v_and_b32 v{AFL+1}, v{O2+1}, v250
    v_and_b32 v{A0L}, v{O2}, v250
    v_and_b32 v{A1L+1}, v{O2+1}, v251
    """)
    for mt in range(2): g.mfma(vr(E(2, mt), 4), vr(AF, 4), vr(144 + 4*mt, 4))
    for mt in range(2): g.mfma(vr(E(2, mt), 4), vr(AFL, 2), vr(152 + 2*mt, 2), vr(E(2, mt), 4), k16=True)
    for mt in range(2):
        g.mfma(vr(E(0, mt), 4), vr(A0L, 2), vr(152 + 2*mt, 2), vr(E(0, mt), 4), k16=True)
        g.mfma(vr(E(1, mt), 4), vr(A1L, 2), vr(152 + 2*mt, 2), vr(E(1, mt), 4), k16=True)
    for mt in range(2):
        F = E(2, mt); c = 68 + 4*mt
        for q in range(2):
            k(f"v_add_f32 v{c+2*q}, s{sC3}, v{F+q}"); k(f"v_add_f32 v{c+2*q+1}, s{sC3}, v{F+q}")
    for mt in range(2):
        c = 68 + 4*mt
        for q in range(2): k(f"v_permlane16_swap_b32 v{c+2*q}, v{c+2*q+1}")
    for mt in range(2):
        c = 68 + 4*mt
        for q in range(2): k(f"v_rcp_f32 v{c+2*q}, v{c+2*q}")
    for mt in range(2):
        c = 68 + 4*mt; o = 80 + 8*mt
        for q in range(2):
            for r in range(4): k(f"v_mul_f32 v{E(q,mt)+r}, v{E(q,mt)+r}, v{c+2*q}")
            for h in range(2): k(f"v_cvt_pk_bf16_f32 v{o+2*q+h}, v{E(q,mt)+2*h}, v{E(q,mt)+2*h+1}")
        k.vm(f"buffer_store_dwordx4 {vr(o,4)}, v1, {sr(WS,4)}, s{sT0} offen offset:{1024*mt} sc1", "o")
    for mt in range(2):
        c = 68 + 4*mt; o = 84 + 8*mt; F = E(2, mt)
        for r in range(4): k(f"v_mul_f32 v{F+r}, v{F+r}, v{c+2*(r>>1)}")
        for h in range(2): k(f"v_cvt_pk_bf16_f32 v{o+h}, v{F+2*h}, v{F+2*h+1}")
    g.setexec(0xffff << 48)
    for mt in range(2):
        k.vm(f"buffer_store_dwordx2 {vr(84+8*mt,2)}, v134, {sr(WS,4)}, s{sT1} offen offset:{1024*mt} sc1", "o")
    g.setexec(-1)
    g.ts("O.st")

def sel(g, dst, se, h, tmp):
    k = g.k
    k(f"v_lshl_add_u32 v{tmp}, v2, 2, s{se}")
    k(f"v_lshlrev_b32 v{tmp+1}, 3, v3")
    k(f"v_sub_u32 v{tmp}, v{tmp}, v{tmp+1}")
    if h: k(f"v_subrev_u32 v{tmp}, 32, v{tmp}")
    k(f"v_and_b32 v{tmp+1}, 1, v{tmp}")
    k(f"v_lshlrev_b32 v{tmp+1}, 4, v{tmp+1}")
    k(f"v_mov_b32 v{tmp+2}, 0x3f80")
    k(f"v_lshlrev_b32 v{tmp+1}, v{tmp+1}, v{tmp+2}")
    k(f"v_lshrrev_b32 v{tmp}, 1, v{tmp}")
    for d in range(4):
        k(f"v_cmp_eq_u32 vcc, {d}, v{tmp}"); k(f"v_cndmask_b32 v{dst+d}, 0, v{tmp+1}, vcc")

def phase_b(g):
    k = g.k
    k(f"""
    s_and_b32 s{sT0}, s{sBC}, 1
    s_lshl_b32 s{sT0}, s{sT0}, 1
    s_add_u32 s{sT5}, s{sT0}, s{sWV}
    s_add_u32 s{sT3}, s{sT5}, 32
    s_mul_i32 s{sT3}, s{sT3}, 18432
    s_add_u32 s{sT3}, s{sT3}, {WOT}
    s_lshl_b32 s{sA1}, s{sJ}, 2
    s_add_u32 s{sA1}, s{sA1}, s{sWV}
    s_mul_i32 s{sA1}, s{sA1}, {324*1024}
    s_add_u32 s{sA1}, s{sA1}, {WT}
    """)
    for h in range(2):
        sel(g, 40 + 4*h, sWV, h, 100); sel(g, 48 + 4*h, sT5, h, 100)
    k(f"""
    v_and_b32 v56, 31, v0
    v_lshlrev_b32 v56, 2, v56
    s_lshl_b32 s{sT0}, s{sBR}, 7
    s_add_u32 s{sT0}, s{sT0}, {FO}
    s_mul_i32 s{sT1}, s{sBR}, 73728
    s_add_u32 s{sT1}, s{sT1}, {OB}
    s_lshr_b32 s{sT2}, s{sBC}, 1
    s_lshl_b32 s{sT2}, s{sT2}, 10
    v_add_u32 v57, s{sT2}, v1
    v_add_u32 v58, 0x10000, v1
    v_add_u32 v59, 0x10000, v57
    v_and_b32 v100, 6, v0
    v_xor_b32 v100, v100, v3
    v_lshlrev_b32 v100, 4, v100
    v_and_b32 v101, 7, v0
    v_lshl_add_u32 v100, v101, 7, v100
    v_bfe_u32 v101, v0, 3, 1
    v_lshl_add_u32 v100, v101, 10, v100
    v_add_u32 v62, {XRB}, v100
    v_xor_b32 v63, 64, v62
    """)
    k.wait(vm="o"); g.flag(f"s{sT4}", 14, 6)
    g.ts("FO.set")
    L = k.label("nx")
    k(f"s_cmp_ge_u32 s{sWV}, 2"); k(f"s_cbranch_scc1 {L}")
    for kk in range(18):
        k.vm(f"buffer_load_dwordx4 {ar(WOA+72+4*kk,4)}, v1, {sr(WS,4)}, s{sT3} offen offset:{(kk & 3)*1024} sc1", None, count=False)
        if kk & 3 == 3: k(f"s_add_u32 s{sT3}, s{sT3}, 4096")
    k(f"{L}:")
    g.poll1(56, f"s{sT0}", 60, wave=3)
    g.ts("FO.seen")
    for s in range(5):
        if s < 4:
            k(f"s_lshl_b32 s{sT2}, s{sWV}, 12"); k(f"s_add_u32 s{sT2}, s{sT2}, {s*16384}")
        else:
            k(f"s_lshl_b32 s{sT2}, s{sWV}, 11"); k(f"s_add_u32 s{sT2}, s{sT2}, 65536")
        k(f"s_mov_b32 m0, s{sT2}"); k(f"s_add_u32 s{sT2}, s{sT2}, s{sT1}")
        for q in range(4 if s < 4 else 2):
            k.vm(f"buffer_load_dwordx4 v1, {sr(WS,4)}, s{sT2} offen offset:{q*1024} sc1 lds", ("os", s))
    for h in range(2):
        for mt in range(5): k.ds(f"ds_read_b128 {vr(104+8*mt+4*h,4)}, v{62+h} offset:{2048*mt}", ("xr", h))
    later = []
    for t in (1, 2)[OPT["rsq"]:]: later += g.relay_store_ops(t, 168 + 16*(t - 1))
    later += [lambda seq=seq: ring_load(g, seq) for seq in range(NP1)]
    for h in range(2):
        k.wait(ds=[("xr", h)])
        for mt in range(5):
            d = vr(16 + 4*mt, 4); g.mfma(d, vr((40 if mt < 4 else 48) + 4*h, 4), vr(104 + 8*mt + 4*h, 4), d if h else None)
    def reads(kk):
        buf = 64 + 20 * (kk & 1); out = []
        for q in range(5):
            a = (1, 57)[q == 4] if kk < 16 else (58, 59)[q == 4]
            off = (kk & 15) * 4096 + (q & 3) * 1024
            out.append(lambda q=q, a=a, off=off: k.ds(f"ds_read_b128 {vr(buf+4*q,4)}, v{a} offset:{off}", ("ob", kk)))
        return out
    k.wait(vm=("os", 0)); k("s_barrier")
    g.ts("O.first")
    for f in reads(0): f()
    for kk in range(18):
        buf = 64 + 20 * (kk & 1); fill = []
        if kk + 1 < 18:
            if (kk + 1) % 4 == 0: fill.append(lambda s=(kk+1)//4: (k.wait(vm=("os", s)), k("s_barrier")))
            fill += reads(kk + 1)
        k.wait(ds=[("ob", kk)])
        for q in range(5):
            d = vr(16 + 4*q, 4)
            g.mfma(d, ar(WOA + (0 if q < 4 else 72) + 4*kk, 4), vr(buf + 4*q, 4), d)
            if fill: fill.pop(0)()
            if later: later.pop(0)()
        while fill: fill.pop(0)()
    while later: later.pop(0)()
    k(f"""
    s_mul_i32 s{sT0}, s{sBR}, 73728
    s_add_u32 s{sT0}, s{sT0}, {HB}
    s_and_b32 s{sT2}, s{sBC}, 1
    s_add_u32 s{sT2}, s{sT2}, 16
    s_lshl_b32 s{sT2}, s{sT2}, 2
    s_lshr_b32 s{sT3}, s{sBC}, 1
    s_add_u32 s{sT2}, s{sT2}, s{sT3}
    s_lshl_b32 s{sT2}, s{sT2}, 10
    s_lshl_b32 s{sT3}, s{sWV}, 9
    s_add_u32 s{sT2}, s{sT2}, s{sT3}
    s_add_u32 s{sT1}, s{sT2}, s{sT0}
    s_lshl_b32 s{sT2}, s{sBC}, 1
    s_lshr_b32 s{sT3}, s{sWV}, 1
    s_add_u32 s{sT2}, s{sT2}, s{sT3}
    s_lshl_b32 s{sT2}, s{sT2}, 12
    s_and_b32 s{sT3}, s{sWV}, 1
    s_lshl_b32 s{sT3}, s{sT3}, 9
    s_add_u32 s{sT2}, s{sT2}, s{sT3}
    s_add_u32 s{sT0}, s{sT0}, s{sT2}
    v_lshrrev_b32 v56, 1, v3
    v_lshlrev_b32 v56, 8, v56
    v_lshl_add_u32 v56, v2, 4, v56
    v_and_b32 v57, 1, v3
    v_lshl_add_u32 v4, v57, 10, v56
    v_lshl_add_u32 v5, v57, 3, v56
    s_lshl_b32 s{sT4}, s{sBR}, 3
    s_add_u32 s{sT4}, s{sT4}, s{sBC}
    s_lshl_b32 s{sT4}, s{sT4}, 2
    s_add_u32 s{sT4}, s{sT4}, s{sWV}
    s_lshl_b32 s{sT4}, s{sT4}, 2
    s_add_u32 s{sT4}, s{sT4}, {FH}
    """)
    for pb in range(2):
        o = 40 + 4*pb
        for q in range(4):
            a = 16 + 8*pb + 2*q; k(f"v_cvt_pk_bf16_f32 v{o+q}, v{a}, v{a+1}")
        k(f"v_permlane16_swap_b32 v{o}, v{o+2}"); k(f"v_permlane16_swap_b32 v{o+1}, v{o+3}")
        k.vm(f"buffer_store_dwordx4 {vr(o,4)}, v4, {sr(WS,4)}, s{sT0} offen offset:{2048*pb} sc1", "h")
    k("v_cvt_pk_bf16_f32 v48, v32, v33"); k("v_cvt_pk_bf16_f32 v49, v34, v35")
    L = k.label("nx")
    k(f"s_cmp_ge_u32 s{sWV}, 2"); k(f"s_cbranch_scc1 {L}")
    k.vm(f"buffer_store_dwordx2 v[48:49], v5, {sr(WS,4)}, s{sT1} offen sc1", "h", count=False)
    k(f"{L}:")
    g.ts("H.st")
    for seq in range(NP1, NP1 + NP2A): ring_load(g, seq)
    k.wait(vm="h"); g.flag(f"s{sT4}", 14, 6)
    g.ts("FH.set")

from gen3 import phase_f
```

```python
from kgen import *
from gen import *
import gen2

HP = 73728
ID = 208
vG1B, vG2A, vG2B, vHP, vHP8, vP0, vP1, vOWN, vRS = 210, 211, 212, 213, 214, 215, 216, 217, 218
ORDER = list(range(8)) + [16, 17] + list(range(8, 16))
NSEQ = 324

def b_reads(g, src, kp, buf):
    k = g.k
    a = ((1, vG1B), (vG2A, vG2B))[src][kp >= 16]
    return [lambda mt=mt: k.ds(f"ds_read_b128 {vr(buf+4*mt,4)}, v{a} offset:{(kp & 15)*4096 + mt*1024}", ("fb", src, kp, buf))
            for mt in range(4)]

class Stream:
    def __init__(self): self.seq = 0; self.step = 0

def gpass(g, st, src, nblk, acc, nxt, fill, hooks={}):
    k = g.k
    order = list(range(18)) if src == 0 else ORDER
    for pos, kp in enumerate(order):
        buf = 160 + 16 * (st.step & 1); nb = 160 + 16 * ((st.step + 1) & 1)
        pre = [hooks[pos]] if pos in hooks else []
        if pos + 1 < 18: pre += b_reads(g, src, order[pos + 1], nb)
        elif nxt is not None: pre += b_reads(g, nxt, 0, nb)
        k.wait(ds=[("fb", src, kp, buf)])
        for b in range(nblk):
            k.wait(vm=("w", st.seq))
            for mt in range(4):
                d = vr(acc + 16*b + 4*mt, 4)
                g.mfma(d, ar(4 * (st.seq % gen2.RING), 4), vr(buf + 4*mt, 4), d if pos else None)
                n = 0
                if pre: pre.pop(0)(); n += 1
                if mt == 3 and st.seq + gen2.RING < NSEQ: gen2.ring_load(g, st.seq + gen2.RING); n += 1
                while fill and n < (1 if mt == 3 else 2): fill.pop(0)(); n += 1
            st.seq += 1
        while pre: pre.pop(0)()
        st.step += 1

def relu_ops(g, acc, pis, blk8):
    k = g.k; ops = []; n = 0
    for q, pi in enumerate(pis):
        for mt in range(4):
            t = 192 + 4 * (n & 3); n += 1
            for d in range(4):
                a = acc + 16 * (2*q + (d >> 1)) + 4*mt + 2*(d & 1)
                ops.append(lambda t=t, d=d, a=a: k(f"v_cvt_pk_bf16_f32 v{t+d}, v{a}, v{a+1}"))
            for d in range(4): ops.append(lambda t=t, d=d: k(f"v_pk_max_i16 v{t+d}, v{t+d}, 0"))
            ops.append(lambda t=t, pi=pi, mt=mt: k.ds(f"ds_write_b128 v{vHP}, {vr(t,4)} offset:{pi*16384 + mt*1024}", "hp"))
    if blk8 is not None:
        for mt in range(4):
            t = 192 + 4 * (n & 3); n += 1
            for d in range(2):
                a = acc + 16*blk8 + 4*mt + 2*d
                ops.append(lambda t=t, d=d, a=a: k(f"v_cvt_pk_bf16_f32 v{t+d}, v{a}, v{a+1}"))
            for d in range(2): ops.append(lambda t=t, d=d: k(f"v_pk_max_i16 v{t+d}, v{t+d}, 0"))
            ops.append(lambda t=t, mt=mt: k.ds(f"ds_write_b64 v{vHP8}, {vr(t,2)} offset:{mt*1024}", "hp"))
    return ops

def blk_index(g, dst, rel):
    k = g.k
    if rel == 0: k(f"s_add_u32 s{dst}, s{sA2}, 8")
    else:
        k(f"s_add_u32 s{dst}, s{sJ}, {rel}"); k(f"s_and_b32 s{dst}, s{dst}, 7"); k(f"s_add_u32 s{dst}, s{dst}, s{sA2}")

def part_ops(g, acc, rels, tag):
    k = g.k; ops = []; n = 0
    for b, rel in enumerate(rels):
        ops.append(lambda rel=rel: (blk_index(g, sT0, rel), k(f"s_lshl_b32 s{sT0}, s{sT0}, 16"), k(f"s_add_u32 s{sT0}, s{sT0}, s{sA3}")))
        for pb in range(2):
            t = 192 + 4 * (n & 3); n += 1
            for q in range(4):
                a = acc + 16*b + 8*pb + 2*q
                ops.append(lambda t=t, q=q, a=a: k(f"v_cvt_pk_bf16_f32 v{t+q}, v{a}, v{a+1}"))
            for q in range(2): ops.append(lambda t=t, q=q: k(f"v_permlane16_swap_b32 v{t+q}, v{t+q+2}"))
            ops.append(lambda t=t, pb=pb: k.vm(f"buffer_store_dwordx4 {vr(t,4)}, v{vP0+pb}, {sr(WS,4)}, s{sT0} offen sc1", tag))
    return ops

def part_flags(g, rels, tag):
    k = g.k
    k.wait(vm=tag); k("s_mov_b64 exec, 1")
    for rel in rels:
        blk_index(g, sT1, rel); k(f"s_lshl_b32 s{sT1}, s{sT1}, 7"); k(f"s_add_u32 s{sT1}, s{sT1}, s{sT5}")
        k.vm(f"buffer_store_dword v14, v6, {sr(WS,4)}, s{sT1} offen sc1")
    k("s_mov_b64 exec, -1")

def h_pieces(g, sblk):
    k = g.k
    k(f"s_lshl_b32 s{sT0}, s{sblk}, 13"); k(f"s_add_u32 s{sT0}, s{sT0}, s{sT4}"); k(f"s_add_u32 s{sT1}, s{sT0}, 4096")
    for e in range(4):
        k.vm(f"buffer_load_dwordx2 {vr(128+2*e,2)}, v5, {sr(WS,4)}, s{sT0 if e < 2 else sT1} offen offset:{(e & 1)*512} sc1", "hp")

def reduce_block(g, sblk, qs, own):
    k = g.k
    h_pieces(g, sblk)
    k.wait(vm="hp")
    for e in range(4): g.mfma(vr(32 + 4*e, 4), vr(ID, 2), vr(128 + 2*e, 2), k16=True)
    k(f"""
    s_add_u32 s{sT2}, s{sA2}, s{sblk}
    s_lshl_b32 s{sT0}, s{sT2}, 7
    s_add_u32 s{sT0}, s{sT0}, {FP}
    s_lshl_b32 s{sT2}, s{sT2}, 16
    s_lshl_b32 s{sT1}, s{sWV}, 11
    s_add_u32 s{sT2}, s{sT2}, s{sT1}
    s_add_u32 s{sT2}, s{sT2}, {PB}
    v_and_b32 v136, 31, v0
    """)
    if own:
        k(f"""
        v_lshrrev_b32 v137, 2, v136
        v_add_u32 v138, 4, v136
        v_and_b32 v138, 31, v138
        v_cmp_eq_u32 vcc, s{sJ}, v137
        v_cndmask_b32 v136, v136, v138, vcc
        """)
        k.wait(ds=["own"])
        for n in range(16): k(f"v_fma_f32 v{32+n}, v{48+n}, v{vRS}, v{32+n}")
    k("v_lshlrev_b32 v136, 2, v136")
    g.ts("T.poll")
    g.poll(136, f"s{sT0}", 137)
    g.ts("T.seen")
    for n, q in enumerate(qs):
        k(f"s_add_u32 s{sT0}, s{sJ}, {q}"); k(f"s_and_b32 s{sT0}, s{sT0}, 7"); k(f"s_lshl_b32 s{sT0}, s{sT0}, 13")
        k(f"s_add_u32 s{sT0}, s{sT0}, s{sT2}")
        for c in range(2):
            k.vm(f"buffer_load_dwordx4 {vr(64+8*n+4*c,4)}, v1, {sr(WS,4)}, s{sT0} offen offset:{1024*c} sc1", ("pl", n, c))
    k(f"s_lshl_b32 s{sT0}, s{sblk}, 7")
    for n, q in enumerate(qs):
        for c in range(2):
            k.wait(vm=("pl", n, c))
            for h in range(2):
                d = vr(16 + 8*c + 4*h, 4); g.mfma(d, vr(ID, 2), vr(64 + 8*n + 4*c + 2*h, 2), d if n else None, k16=True)
    for c in range(2):
        for r in range(4): k(f"v_permlane16_swap_b32 v{16+8*c+r}, v{20+8*c+r}")
    for e in range(4):
        for r in range(4): k(f"v_fma_f32 v{16+4*e+r}, v{16+4*e+r}, v{vRS}, v{32+4*e+r}")
    for r in range(4):
        for c in range(2): k(f"v_cvt_pk_bf16_f32 v{140+2*r+c}, v{16+8*c+r}, v{20+8*c+r}")
        if r & 1: k.vm(f"buffer_store_dwordx4 {vr(140+2*(r-1),4)}, v7, {sr(OS,4)}, s{sT0} offen offset:{8*(r-1)}")

def phase_f(g):
    k = g.k
    k(f"""
    s_lshl_b32 s{sT0}, s{sRF}, 7
    s_add_u32 s{sT0}, s{sT0}, {FH}
    s_mul_i32 s{sT4}, s{sRF}, 73728
    s_lshl_b32 s{sT1}, s{sWV}, 10
    s_add_u32 s{sT4}, s{sT4}, s{sT1}
    s_add_u32 s{sT4}, s{sT4}, {HB}
    v_and_b32 v56, 31, v0
    v_lshlrev_b32 v56, 2, v56
    v_lshlrev_b32 v57, 2, v3
    v_sub_u32 v57, v2, v57
    v_and_b32 v58, 1, v57
    v_lshlrev_b32 v58, 4, v58
    v_mov_b32 v59, 0x3f80
    v_lshlrev_b32 v58, v58, v59
    v_lshrrev_b32 v57, 1, v57
    v_cmp_eq_u32 vcc, 0, v57
    v_cndmask_b32 v{ID}, 0, v58, vcc
    v_cmp_eq_u32 vcc, 1, v57
    v_cndmask_b32 v{ID+1}, 0, v58, vcc
    v_add_u32 v{vG1B}, 0x10000, v1
    v_add_u32 v{vG2A}, {HP}, v1
    v_add_u32 v{vG2B}, {HP + 65536}, v1
    s_lshl_b32 s{sT2}, s{sWV}, 12
    v_add_u32 v{vHP}, s{sT2}, v{vG2A}
    s_lshr_b32 s{sT2}, s{sWV}, 1
    s_lshl_b32 s{sT3}, s{sT2}, 12
    s_and_b32 s{sA3}, s{sWV}, 1
    s_lshl_b32 s{sT5}, s{sA3}, 3
    s_add_u32 s{sT3}, s{sT3}, s{sT5}
    v_add_u32 v{vHP8}, s{sT3}, v{vG2B}
    s_lshl_b32 s{sT2}, s{sT2}, 10
    s_lshl_b32 s{sA3}, s{sA3}, 8
    s_add_u32 s{sA3}, s{sA3}, s{sT2}
    s_lshl_b32 s{sT2}, s{sJ}, 13
    s_add_u32 s{sA3}, s{sA3}, s{sT2}
    s_add_u32 s{sA3}, s{sA3}, {PB}
    s_mul_i32 s{sA2}, s{sRF}, 9
    s_lshl_b32 s{sT5}, s{sJ}, 2
    s_add_u32 s{sT5}, s{sT5}, s{sWV}
    s_lshl_b32 s{sT5}, s{sT5}, 2
    s_add_u32 s{sT5}, s{sT5}, {FP}
    v_and_b32 v57, 1, v3
    v_lshrrev_b32 v58, 1, v3
    v_lshlrev_b32 v58, 9, v58
    v_lshl_add_u32 v58, v57, 11, v58
    v_lshl_add_u32 v{vP0}, v2, 4, v58
    v_add_u32 v{vP1}, 0x1000, v{vP0}
    v_add_u32 v8, s{sT1}, v1
    v_add_u32 v9, 0x10000, v8
    v_add_u32 v{vOWN}, {AUX}, v8
    s_lshl_b32 s{sT2}, s{sRF}, 6
    s_lshl_b32 s{sT3}, s{sWV}, 4
    s_add_u32 s{sT2}, s{sT2}, s{sT3}
    v_add_u32 v7, s{sT2}, v2
    s_movk_i32 s{sT2}, 1152
    v_mul_u32_u24 v7, s{sT2}, v7
    v_lshl_add_u32 v7, v3, 5, v7
    """)
    for r in range(4): k(f"v_mov_b32 v{92+r}, {hex(ONE2)}")
    g.poll1(56, f"s{sT0}", 60)
    g.ts("FH.seen")
    k(f"s_mov_b32 s{sT0}, s{sT4}")
    for kk in range(18):
        k.vm(f"buffer_load_dwordx4 {vr(16+4*kk,4)}, v1, {sr(WS,4)}, s{sT0} offen sc1", ("h", kk))
        if kk < 17: k(f"s_add_u32 s{sT0}, s{sT0}, 4096")
    for seq in range(gen2.NP1 + gen2.NP2A, gen2.RING): gen2.ring_load(g, seq)
    for kk in range(18):
        k.wait(vm=("h", kk)); g.mfma("v[88:91]", "v[92:95]", vr(16 + 4*kk, 4), "v[88:91]" if kk else None)
    g.ts("H.in")
    for r in range(4): k(f"v_mul_f32 v{88+r}, s{sC0}, v{88+r}")
    def cvt(kk):
        t = 96 + 8 * (kk % 3); o = 128 + 4 * (kk & 3)
        for d in range(4): k(f"v_cvt_pk_bf16_f32 v{o+d}, v{t+2*d}, v{t+2*d+1}")
        k.ds(f"ds_write_b128 v{8 if kk < 16 else 9}, {vr(o,4)} offset:{(kk & 15)*4096}")
    for kk in range(18):
        t = 96 + 8 * (kk % 3)
        for h in range(2): g.mfma(vr(t + 4*h, 4), vr(ID, 2), vr(16 + 4*kk + 2*h, 2), "v[88:91]", k16=True)
        if kk >= 1: cvt(kk - 1)
    cvt(17)
    k.wait(ds="all"); k("s_barrier")
    g.ts("F.start")
    st = Stream()
    for f in b_reads(g, 0, 0, 160): f()
    bar = lambda: (k.wait(ds=["hp"]), k("s_barrier"))
    def late_load():
        k(f"s_lshl_b32 s{sT0}, s{sJ}, 9"); k(f"s_add_u32 s{sT0}, s{sT0}, {FH}"); k("v_lshlrev_b32 v98, 3, v0")
        k.vm(f"buffer_load_dwordx2 v[96:97], v98, {sr(WS,4)}, s{sT0} offen sc1", "late")
    def late_check():
        k.wait(vm="late"); g.check(98, f"s{sT0}", 96, 2)
    gpass(g, st, 0, 5, 16, 0, [], {2: late_load, 9: late_check})
    g.ts("G1a")
    fill = relu_ops(g, 16, (0, 1), 4)
    gpass(g, st, 0, 4, 96, 1, fill, {17: bar}); assert not fill
    g.ts("G1b")
    fill = relu_ops(g, 96, (2, 3), None)
    def chk9():
        assert not fill
        bar()
    gpass(g, st, 1, 3, 16, 1, fill, {9: chk9})
    g.ts("P1")
    fill = part_ops(g, 16, (0, 1, 2), "p1")
    gpass(g, st, 1, 3, 96, 1, fill, {14: lambda: part_flags(g, (0, 1, 2), "p1")}); assert not fill
    g.ts("P2")
    fill = part_ops(g, 96, (3, 4, 5), "p2")
    gpass(g, st, 1, 2, 16, 1, fill, {16: lambda: part_flags(g, (3, 4, 5), "p2")}); assert not fill
    g.ts("P3")
    fill = part_ops(g, 16, (6, 7), "p3")
    gpass(g, st, 1, 1, 96, None, fill)
    while fill: fill.pop(0)()
    g.ts("P4")
    part_flags(g, (6, 7), "p3")
    for mt in range(4): k.ds(f"ds_write_b128 v{vOWN}, {vr(96+4*mt,4)} offset:{mt*4096}")
    for kk in range(18):
        k.ds(f"ds_read_b128 {vr(16+4*kk,4)}, v{8 if kk < 16 else 9} offset:{(kk & 15)*4096}", ("c", kk))
        if kk == 9: k.wait(ds=[("c", 0)]); k("s_barrier")
    for kk in range(18):
        k.wait(ds=[("c", kk)])
        for d in range(4):
            k(f"v_dot2_f32_bf16 v{88+d}, v{16+4*kk+d}, v{16+4*kk+d}, {'0' if kk == 0 else 'v%d' % (88+d)}")
    k(f"s_mul_i32 s{sT0}, s{sWV}, 3072"); k(f"v_add_u32 v{vOWN}, s{sT0}, v{vOWN}")
    for e in range(4): k.ds(f"ds_read_b128 {vr(48+4*e,4)}, v{vOWN} offset:{e*1024}", "own")
    k(f"""
    v_add_f32 v88, v88, v89
    v_add_f32 v90, v90, v91
    v_add_f32 v88, v88, v90
    v_mov_b32 v89, v88
    v_permlane16_swap_b32 v88, v89
    v_add_f32 v88, v88, v89
    v_mov_b32 v89, v88
    v_permlane32_swap_b32 v88, v89
    v_add_f32 v88, v88, v89
    v_fma_f32 v88, v88, s{sC1}, v15
    v_rsq_f32 v{vRS}, v88
    """)
    L = k.label("n8")
    k(f"s_lshl_b32 s{sT0}, s{sWV}, 1"); k(f"s_cmp_lg_u32 s{sT0}, s{sJ}"); k(f"s_cbranch_scc1 {L}")
    sv, sl = list(k.vq), list(k.lq)
    k(f"s_mov_b32 s{sT3}, 8")
    p = g.prof; g.prof = False
    reduce_block(g, sT3, range(8), False)
    g.prof = p
    k.vq, k.lq = sv, sl
    k(f"{L}:")
    reduce_block(g, sJ, (7, 6, 5, 4, 3, 2, 1), True)
```

```python
import sys
from kgen import *

NAME = "sequential_preLN__linear_attn_block__dense_activation_relu__prompt"
FK, FW, FO, FH, FP = 0, 4096, 5120, 9216, 13312
ZERO_BYTES = 53248
KVP, OB, HB, WOT, WT, PB, PROF = 0x10000, 0x200000, 0x480000, 0x700000, 0x800000, 0x1300000, 0x3000000
WS_SIZE = 0x4000000
AUX = 147456
ST, CS, KVX = AUX + 12288, AUX + 13312, AUX + 13312
SPIN = 20000
WS, XS, QS, W1S, W2S, T2S, DS, OS = 4, 8, 12, 16, 20, 24, 28, 32
sWO = 36
sX, sI, sWV, sR, sP, sDL = 38, 39, 40, 41, 42, 43
sT0, sT1, sT2, sT3, sT4, sT5 = 44, 45, 46, 47, 48, 49
sV3, sDK, sCNT, sV2 = 50, 51, 52, 53
sRL = 56
sDM = 72
sPE, sPO = 74, 75
sMK = 76
sC0, sC1, sC2, sC3 = 78, 79, 80, 81
sTS = 82
sBR, sBC = 84, 85
sA0, sA1, sA2, sA3 = 86, 87, 88, 89
sXB = 90
sJ, sRF = 94, 95
T3S, sXD = 96, 100
sPH, sWK = 54, 55
OPT = dict(touch=1, fmap=1, ptouch=0, rot=1, pre=3, rsq=2, np1=8, np2=8, np3=24, ring=60, lag=0, f1=6, f3=10, r4=5, claim=0, c0=1, fine=0, cpf=1, wpf=0, kl1=1, kl2=3, nt=1, rdy=3, nwo=8)
ONE2 = 0x3F803F80
def f2u(x):
    import struct
    return struct.unpack("<I", struct.pack("<f", x))[0]

class G:
    def __init__(self, stop=None, prof=False):
        self.k = Kern(); self.stop = stop; self.prof = prof; self.nts = 0; self.tsn = []; self.only = None; self.dbgwg = None
    def ts(self, name):
        if not self.prof: return
        if self.only is not None and name not in self.only: return
        k = self.k
        k(f"s_memtime s[{sTS}:{sTS+1}]"); k("s_waitcnt lgkmcnt(0)"); k.lq = []
        k(f"v_writelane_b32 v255, s{sTS}, {self.nts}")
        self.tsn.append(name); self.nts += 1
    def rt(self, lane):
        k = self.k
        k(f"s_memrealtime s[{sTS}:{sTS+1}]"); k("s_waitcnt lgkmcnt(0)"); k.lq = []
        k(f"v_writelane_b32 v255, s{sTS}, {lane}")
    def mfma(self, d, a, b, c=None, k16=False):
        op = "v_mfma_f32_16x16x16_bf16" if k16 else "v_mfma_f32_16x16x32_bf16"
        cc = "0" if c is None else c
        self.k(f"{op} {d}, {a}, {b}, {cc}")
    def setexec(self, m):
        k = self.k
        if m == -1: k("s_mov_b64 exec, -1")
        else:
            k(f"s_mov_b32 exec_lo, {hex(m & 0xffffffff)}"); k(f"s_mov_b32 exec_hi, {hex(m >> 32)}")
    def poll(self, vaddr, soff, vtmp, n=1, srd=WS):
        k = self.k; L = k.label("poll"); D = k.label("pdone")
        k(f"s_mov_b32 s{sCNT}, 0"); k(f"{L}:")
        sfx = {1: "dword", 2: "dwordx2", 4: "dwordx4"}[n]
        k(f"buffer_load_{sfx} {vr(vtmp, n)}, v{vaddr}, {sr(srd,4)}, {soff} offen sc1")
        k("s_waitcnt vmcnt(0)"); k.vq = []
        if n == 4:
            k(f"v_and_b32 v{vtmp}, v{vtmp}, v{vtmp+1}"); k(f"v_and_b32 v{vtmp+2}, v{vtmp+2}, v{vtmp+3}")
            k(f"v_and_b32 v{vtmp}, v{vtmp}, v{vtmp+2}")
        if n == 2: k(f"v_and_b32 v{vtmp}, v{vtmp}, v{vtmp+1}")
        k(f"v_cmp_ne_u32 vcc, 1, v{vtmp}")
        k(f"s_cbranch_vccz {D}")
        k(f"s_add_u32 s{sCNT}, s{sCNT}, 1"); k(f"s_cmp_lt_u32 s{sCNT}, {SPIN}"); k(f"s_cbranch_scc1 {L}")
        k(f"{D}:")
    def poll1(self, vaddr, soff, vtmp, wave=0):
        k = self.k; L = k.label("p1"); sv = list(k.vq)
        k(f"s_cmp_lg_u32 s{sWV}, {wave}"); k(f"s_cbranch_scc1 {L}")
        self.poll(vaddr, soff, vtmp)
        k(f"{L}:"); k("s_barrier"); k.vq = sv
    def check(self, vaddr, soff, vtmp, n, srd=WS):
        k = self.k; L = k.label("ok")
        if n == 4:
            k(f"v_and_b32 v{vtmp}, v{vtmp}, v{vtmp+1}"); k(f"v_and_b32 v{vtmp+2}, v{vtmp+2}, v{vtmp+3}")
            k(f"v_and_b32 v{vtmp}, v{vtmp}, v{vtmp+2}")
        if n == 2: k(f"v_and_b32 v{vtmp}, v{vtmp}, v{vtmp+1}")
        k(f"v_cmp_ne_u32 vcc, 1, v{vtmp}"); k(f"s_cbranch_vccz {L}")
        sv = list(k.vq); self.poll(vaddr, soff, vtmp, n=n, srd=srd); k.vq = sv
        k(f"{L}:")
    def flag(self, soff, vone, vzero, srd=WS):
        k = self.k
        k("s_mov_b64 exec, 1")
        k.vm(f"buffer_store_dword v{vone}, v{vzero}, {sr(srd,4)}, {soff} offen sc1")
        k("s_mov_b64 exec, -1")

    def prologue(self):
        k = self.k
        k(f"""
        s_cmp_ge_u32 s2, 256
        s_cbranch_scc1 L_end
        s_load_dwordx2 s[{XS}:{XS+1}], s[0:1], 0
        s_load_dwordx2 s[{QS}:{QS+1}], s[0:1], 8
        s_load_dwordx2 s[{WS}:{WS+1}], s[0:1], 64
        s_load_dwordx2 s[{sWO}:{sWO+1}], s[0:1], 16
        s_load_dwordx2 s[{W1S}:{W1S+1}], s[0:1], 32
        s_load_dwordx2 s[{W2S}:{W2S+1}], s[0:1], 40
        s_load_dwordx2 s[{OS}:{OS+1}], s[0:1], 48
        s_load_dwordx2 s[{DS}:{DS+1}], s[0:1], 56
        v_lshrrev_b32 v1, 6, v0
        v_lshlrev_b32 v15, 4, v0
        v_and_b32 v0, 63, v0
        v_readfirstlane_b32 s{sWV}, v1
        v_lshlrev_b32 v1, 4, v0
        v_and_b32 v2, 15, v0
        v_lshrrev_b32 v3, 4, v0
        s_and_b32 s{sX}, s2, 7
        s_lshr_b32 s{sI}, s2, 3
        s_and_b32 s{sT0}, s{sX}, 1
        s_lshl_b32 s{sT0}, s{sT0}, 3
        s_and_b32 s{sT1}, s{sI}, 7
        s_add_u32 s{sR}, s{sT0}, s{sT1}
        s_lshr_b32 s{sT0}, s{sX}, 1
        s_lshl_b32 s{sT0}, s{sT0}, 2
        s_lshr_b32 s{sT1}, s{sI}, 3
        s_add_u32 s{sP}, s{sT0}, s{sT1}
        s_and_b32 s{sDL}, s{sP}, 1
        s_lshl_b32 s{sDL}, s{sDL}, 3
        """)
        if OPT["cpf"]: self.code_touch()
        for srd, size in ((WS, WS_SIZE), (XS, 2359296), (QS, 1990656), (W1S, 5308416), (W2S, 5308416), (DS, 256), (OS, 2359296)):
            k(f"s_mov_b32 s{srd+2}, {size}"); k(f"s_mov_b32 s{srd+3}, 0x20000")
        k(f"""
        s_lshl_b32 s{sT0}, s{sR}, 7
        s_lshl_b32 s{sT1}, s{sWV}, 5
        s_add_u32 s{sT0}, s{sT0}, s{sT1}
        s_mul_i32 s{sXB}, s{sT0}, 1152
        s_lshr_b32 s{sT1}, s{sI}, 3
        s_lshl_b32 s{sT1}, s{sT1}, 1
        s_and_b32 s{sPH}, s{sI}, 7
        s_add_u32 s{sPH}, s{sPH}, s{sT1}
        s_sub_u32 s{sT1}, s{sPH}, 9
        s_cmp_ge_u32 s{sPH}, 9
        s_cselect_b32 s{sPH}, s{sT1}, s{sPH}
        s_mul_i32 s{sPH}, s{sPH}, {OPT["rot"]}
        s_mul_i32 s{sWK}, s{sPH}, 221184
        s_lshl_b32 s{sT1}, s{sPH}, 7
        s_add_u32 s{sXB}, s{sXB}, s{sT1}
        s_add_u32 s{sXB+1}, s{sXB}, 9216
        s_add_u32 s{sXB+2}, s{sXB}, {2*9216}
        s_add_u32 s{sXB+3}, s{sXB}, {3*9216}
        v_lshrrev_b32 v16, 3, v0
        v_and_b32 v17, 6, v16
        v_xor_b32 v17, v17, v0
        v_and_b32 v17, 7, v17
        s_movk_i32 s{sT1}, 1152
        v_mul_u32_u24 v12, s{sT1}, v16
        v_lshl_add_u32 v12, v17, 4, v12
        """)
        k(f"""
        s_and_b32 s{sT0}, s{sWV}, 1
        s_lshl_b32 s{sT0}, s{sT0}, 3
        v_lshl_add_u32 v16, v3, 1, s{sT0}
        v_sub_u32 v16, v2, v16
        v_and_b32 v16, 15, v16
        v_cmp_ne_u32 s[{sDM}:{sDM+1}], 15, v16
        v_mul_u32_u24 v17, 52, v16
        v_lshrrev_b32 v17, 8, v17
        s_movk_i32 s{sT1}, 1072
        v_mul_u32_u24 v17, s{sT1}, v17
        v_lshl_add_u32 v17, v16, 4, v17
        s_movk_i32 s{sT1}, 3456
        v_mul_u32_u24 v13, s{sT1}, v3
        s_mul_i32 s{sT0}, s{sWV}, 27648
        s_mul_i32 s{sT1}, s{sP}, 72
        s_add_u32 s{sT0}, s{sT0}, s{sT1}
        s_sub_u32 s{sT0}, s{sT0}, s{sDL}
        v_add3_u32 v13, v13, v17, s{sT0}
        s_lshl_b32 s{sDK}, s{sWV}, 11
        s_waitcnt lgkmcnt(0)
        """)
        if self.prof:
            k("v_mov_b32 v255, 0"); self.rt(62)
        self.ts("start")
        L = k.label("nz")
        k(f"s_cmp_lg_u32 s2, 0"); k(f"s_cbranch_scc1 {L}")
        for r in range(4): k(f"v_mov_b32 v{20+r}, 0")
        for n in range(ZERO_BYTES // 4096):
            k(f"s_movk_i32 s{sT0}, {n*4096}" if n * 4096 < 32768 else f"s_mov_b32 s{sT0}, {n*4096}")
            k(f"buffer_store_dwordx4 v[20:23], v15, {sr(WS,4)}, s{sT0} offen sc1")
        k(f"{L}:")

    def code_touch(self):
        k = self.k
        k(f"s_getpc_b64 s[{sT2}:{sT3}]"); k("L_pc:")
        k(f"""
        s_lshl_b32 s{sT0}, s{sI}, 2
        s_add_u32 s{sT0}, s{sT0}, s{sWV}
        s_and_b32 s{sT0}, s{sT0}, 7
        s_lshl_b32 s{sT0}, s{sT0}, 13
        v_lshl_add_u32 v146, v0, 7, s{sT0}
        v_min_u32 v146, L_end-L_pc, v146
        v_mov_b32 v147, s{sT3}
        v_add_co_u32 v146, vcc, s{sT2}, v146
        v_addc_co_u32 v147, vcc, 0, v147, vcc
        """)
        k.vm("global_load_dword v146, v[146:147], off", "code")

    def x_stage(self, s):
        k = self.k
        if s < 8:
            k(f"s_cmp_eq_u32 s{sPH}, 8"); k(f"s_cselect_b32 s{sXD}, -8, 1")
            k(f"s_cselect_b32 s{sPH}, -1, s{sPH}"); k(f"s_add_u32 s{sPH}, s{sPH}, 1")
            k(f"s_lshl_b32 s{sXD}, s{sXD}, 7")
        for j in range(4):
            k(f"s_add_u32 m0, s{sDK}, {(2*s + 2 + (j >> 1))*8192 + (j & 1)*1024}")
            k.vm(f"buffer_load_dwordx4 v12, {sr(XS,4)}, s{sXB+j} offen lds", ("x", s))
            if s < 8: k(f"s_add_u32 s{sXB+j}, s{sXB+j}, s{sXD}")
    def w_half(self, kk):
        k = self.k
        k(f"s_mov_b64 exec, s[{sDM}:{sDM+1}]")
        k(f"s_add_u32 m0, s{sDK}, {kk*8192}")
        k(f"s_add_u32 s{sXD}, s{sWK}, {13824-1024}")
        k.vm(f"buffer_load_dwordx4 v13, {sr(QS,4)}, s{sWK} offen lds", ("st", kk >> 1))
        k.vm(f"buffer_load_dwordx4 v13, {sr(QS,4)}, s{sXD} offen offset:1024 lds", ("st", kk >> 1))
        k(f"s_add_u32 s{sWK}, s{sWK}, 110592")
        if kk & 1: k(f"s_cmp_eq_u32 s{sWK}, {18*110592}"); k(f"s_cselect_b32 s{sWK}, 0, s{sWK}")
        k("s_mov_b64 exec, -1")
    def w_stage(self, s):
        self.w_half(2*s); self.w_half(2*s + 1)
    def w_touch(self):
        k = self.k
        k(f"""
        s_lshl_b32 s{sT0}, s{sI}, 2
        s_add_u32 s{sT0}, s{sT0}, s{sWV}
        s_mul_i32 s{sT0}, s{sT0}, 81
        s_lshr_b32 s{sT1}, s{sX}, 1
        s_lshl_b32 s{sT1}, s{sT1}, 8
        s_movk_i32 s{sT2}, 1152
        s_mov_b32 s{sT3}, 43691
        """)
        for h in range(2):
            k(f"""
            v_add_u32 v16, s{sT0}, v0
            v_mul_u32_u24 v17, s{sT3}, v16
            v_lshrrev_b32 v17, 18, v17
            v_mul_u32_u24 v18, 6, v17
            v_sub_u32 v18, v16, v18
            v_mul_u32_u24 v17, s{sT2}, v17
            v_lshl_add_u32 v17, v18, 6, v17
            """)
            if h: k("s_mov_b64 exec, 0x1ffff")
            k.vm(f"buffer_load_dword v{144+h}, v17, {sr(QS,4)}, s{sT1} offen", "touch")
            if h: k("s_mov_b64 exec, -1")
            else: k(f"s_add_u32 s{sT0}, s{sT0}, 64")
    def x_read(self, s):
        k = self.k
        if s in (4, 8):
            for a in (140, 141): k(f"v_add_u32 v{a}, 0x10000, v{a}")
        for h in range(2):
            for mt in range(2):
                k.ds(f"ds_read_b128 {ar(((2*s+h)*2+mt)*4,4)}, v{140+h} offset:{(s & 3)*16384 + mt*8192}", ("xr", s))
        if s < 8: self.ones()
    def ones(self):
        k = self.k
        k("s_mov_b64 exec, 0xffff")
        k.ds("ds_write_b128 v142, v[124:127]")
        k("s_mov_b64 exec, -1")
        k("v_add_u32 v142, 0x4000, v142")

    def setup_a(self):
        k = self.k
        for r in range(4): k(f"v_mov_b32 v{124+r}, {hex(ONE2)}")
        k(f"""
        s_and_b32 s{sT0}, s{sWV}, 1
        s_lshl_b32 s{sT0}, s{sT0}, 3
        s_add_u32 s{sT0}, s{sT0}, 15
        v_and_b32 v16, 3, v0
        v_lshl_add_u32 v16, v16, 1, s{sT0}
        v_and_b32 v16, 15, v16
        v_and_b32 v17, 7, v0
        v_lshlrev_b32 v18, 8, v17
        v_lshl_add_u32 v16, v16, 4, v18
        v_bfe_u32 v18, v0, 3, 1
        v_lshl_add_u32 v16, v18, 13, v16
        v_add_u32 v142, s{sDK}, v16
        v_and_b32 v16, 6, v0
        v_xor_b32 v16, v16, v3
        v_lshlrev_b32 v16, 4, v16
        v_lshl_add_u32 v16, v17, 7, v16
        v_lshl_add_u32 v143, v18, 10, v16
        s_add_u32 s{sT0}, s{sDK}, 16384
        v_add_u32 v140, s{sT0}, v143
        v_xor_b32 v141, 64, v140
        """)
        self.ones()
    def setup_b(self):
        k = self.k
        k(f"""
        v_lshrrev_b32 v16, 2, v2
        v_and_b32 v17, 3, v0
        v_and_b32 v18, 1, v3
        v_lshl_add_u32 v18, v18, 2, v16
        v_lshlrev_b32 v18, 5, v18
        v_add_u32 v18, s{sDL}, v18
        v_lshl_add_u32 v19, v3, 3, v16
        v_lshlrev_b32 v19, 8, v19
        v_lshl_add_u32 v20, v17, 3, v18
        s_movk_i32 s{sT0}, 255
        """)
        for reg, off in ((4, 80), (5, 120), (6, 160), (7, 200), (9, 0), (10, 40)):
            k(f"v_add_u32 v21, {off}, v20"); k(f"v_and_or_b32 v{reg}, v21, s{sT0}, v19")
        k(f"v_add_u32 v21, 32, v18"); k(f"v_and_or_b32 v11, v21, s{sT0}, v19")
        k(f"""
        v_mov_b32 v21, 112
        v_mov_b32 v22, 192
        v_cmp_eq_u32 vcc, 3, v17
        v_cndmask_b32 v21, v21, v22, vcc
        s_sub_u32 s{sT1}, 248, s{sDL}
        v_mov_b32 v22, s{sT1}
        v_cmp_eq_u32 vcc, 0, v17
        v_cndmask_b32 v21, v21, v22, vcc
        v_add_u32 v21, v21, v18
        v_and_or_b32 v8, v21, s{sT0}, v19
        """)
    def setup_c(self):
        k = self.k
        for reg, bits, one in ((248, 0x111, 1), (249, 0x3000, 0), (250, 0x222, 1), (251, 0xC000, 0),
                               (252, 0x30, 0), (253, 0xC00, 0), (254, 0x300, 0), (131, 0xC0, 0)):
            k(f"s_mov_b32 s{sT1}, {hex(bits)}"); k(f"v_bfe_i32 v{reg}, s{sT1}, v2, 1")
            if one: k(f"v_and_b32 v{reg}, {hex(ONE2)}, v{reg}")
        k(f"s_mov_b32 s{sPE}, 0x05040100"); k(f"s_mov_b32 s{sPO}, 0x07060302")

    def lane_off(self, t, c1, c2):
        k = self.k
        k(f"""
        v_and_b32 v16, 1, v3
        v_lshrrev_b32 v17, 1, v3
        v_mul_lo_u32 v16, v16, s{c1}
        v_mul_lo_u32 v17, v17, s{c2}
        v_lshlrev_b32 v18, 3, v2
        v_add3_u32 v{128+t}, v16, v17, v18
        """)
    def p_w1(self, t, n):
        k = self.k; b = sRL + 5*t; A, B, C, D = sT0, sT1, sT2, sT3
        k(f"""
        s_mul_i32 s{A}, s{n}, 205
        s_lshr_b32 s{A}, s{A}, 10
        s_mul_i32 s{B}, s{A}, 5
        s_sub_u32 s{B}, s{n}, s{B}
        s_cmp_eq_u32 s{B}, 4
        s_cselect_b32 s{B}, 8, s{B}
        s_sub_u32 s{C}, s{n}, 90
        s_and_b32 s{D}, s{C}, 3
        s_add_u32 s{D}, s{D}, 4
        s_lshr_b32 s{C}, s{C}, 2
        s_cmp_lt_u32 s{n}, 90
        s_cselect_b32 s{A}, s{A}, s{C}
        s_cselect_b32 s{B}, s{B}, s{D}
        s_lshr_b32 s{C}, s{A}, 1
        s_lshl_b32 s{C}, s{C}, 6
        s_and_b32 s{D}, s{A}, 1
        s_lshl_b32 s{D}, s{D}, 1
        s_add_u32 s{C}, s{C}, s{D}
        s_mul_i32 s{C}, s{C}, 9216
        s_lshl_b32 s{B}, s{B}, 7
        s_add_u32 s{C}, s{C}, s{B}
        s_mul_i32 s{D}, s{sX}, 1152
        s_add_u32 s{b}, s{C}, s{D}
        s_mov_b32 s{b+1}, {4*9216}
        s_mov_b32 s{b+2}, {16*9216 - 12*9216}
        s_mul_i32 s{C}, s{sX}, {4*324*1024}
        s_lshl_b32 s{D}, s{n}, 10
        s_add_u32 s{C}, s{C}, s{D}
        s_add_u32 s{b+3}, s{C}, {WT}
        s_mov_b32 s{b+4}, {324*1024}
        s_mov_b32 s{A}, {32*9216}
        s_mov_b32 s{B}, 9216
        """)
    def p_w2(self, t, n):
        k = self.k; b = sRL + 5*t; A, B, C, D, E = sT0, sT1, sT2, sT3, sT4
        k(f"""
        s_cmp_ge_u32 s{n}, 54
        s_cselect_b32 s{A}, 54, 0
        s_cselect_b32 s{B}, 3, 0
        s_sub_u32 s{A}, s{n}, s{A}
        s_mul_i32 s{C}, s{A}, 171
        s_lshr_b32 s{C}, s{C}, 9
        s_mul_i32 s{D}, s{C}, 3
        s_sub_u32 s{A}, s{A}, s{D}
        s_add_u32 s{B}, s{B}, s{A}
        s_sub_u32 s{A}, s{n}, 108
        s_and_b32 s{D}, s{A}, 1
        s_add_u32 s{D}, s{D}, 6
        s_lshr_b32 s{A}, s{A}, 1
        s_cmp_ge_u32 s{n}, 108
        s_cselect_b32 s{C}, s{A}, s{C}
        s_cselect_b32 s{B}, s{D}, s{B}
        s_sub_u32 s{A}, s{n}, 144
        s_cmp_ge_u32 s{n}, 144
        s_cselect_b32 s{C}, s{A}, s{C}
        s_cselect_b32 s{B}, 8, s{B}
        s_add_u32 s{A}, s{sX}, s{B}
        s_and_b32 s{A}, s{A}, 7
        s_cmp_eq_u32 s{B}, 0
        s_cselect_b32 s{A}, 8, s{A}
        s_lshl_b32 s{A}, s{A}, 7
        s_add_u32 s{B}, s{C}, 8
        s_sub_u32 s{D}, s{C}, 2
        s_cmp_lt_u32 s{C}, 10
        s_cselect_b32 s{B}, s{B}, s{D}
        s_cmp_lt_u32 s{C}, 8
        s_cselect_b32 s{C}, s{C}, s{B}
        s_lshr_b32 s{B}, s{C}, 2
        s_lshl_b32 s{B}, s{B}, 7
        s_and_b32 s{D}, s{C}, 3
        s_add_u32 s{B}, s{B}, s{D}
        s_lshl_b32 s{D}, s{C}, 1
        s_add_u32 s{D}, s{D}, 480
        s_mov_b32 s{E}, {1152 - 12*1152 + (1 << 32)}
        s_cmp_lt_u32 s{C}, 16
        s_cselect_b32 s{B}, s{B}, s{D}
        s_cselect_b32 s{b+2}, {64*1152 - 12*1152}, s{E}
        s_mul_i32 s{D}, s{sX}, 576
        s_add_u32 s{B}, s{B}, s{D}
        s_mul_i32 s{B}, s{B}, 1152
        s_add_u32 s{b}, s{B}, s{A}
        s_mov_b32 s{b+1}, {4*1152}
        s_mul_i32 s{C}, s{sX}, {4*324*1024}
        s_lshl_b32 s{D}, s{n}, 10
        s_add_u32 s{C}, s{C}, s{D}
        s_add_u32 s{b+3}, s{C}, {WT + 162*1024}
        s_mov_b32 s{b+4}, {324*1024}
        s_mov_b32 s{A}, {16*1152}
        s_mov_b32 s{B}, {32*1152}
        """)
    def p_wo(self, t, n):
        k = self.k; b = sRL + 5*t; A, B, C, D, E = sT0, sT1, sT2, sT3, sT4
        k(f"""
        s_mul_i32 s{A}, s{n}, 57
        s_lshr_b32 s{A}, s{A}, 10
        s_mul_i32 s{B}, s{A}, 18
        s_sub_u32 s{B}, s{n}, s{B}
        s_mul_i32 s{C}, s{A}, {4*18*1024}
        s_lshl_b32 s{D}, s{B}, 10
        s_add_u32 s{C}, s{C}, s{D}
        s_add_u32 s{b+3}, s{C}, {WOT}
        s_mov_b32 s{b+4}, {18*1024}
        s_mul_i32 s{C}, s{B}, 36
        s_mul_i32 s{D}, s{B}, 288
        s_sub_u32 s{D}, s{D}, {288*16 - 16}
        s_mov_b32 s{E}, {33*1152}
        s_cmp_lt_u32 s{B}, 16
        s_cselect_b32 s{C}, s{C}, s{D}
        s_cselect_b32 s{b+2}, {17*1152}, s{E}
        s_mov_b32 s{E}, {72*1152}
        s_cselect_b32 s{E}, {4*1152}, s{E}
        s_mul_i32 s{C}, s{C}, 1152
        s_lshl_b32 s{A}, s{A}, 7
        s_add_u32 s{b}, s{C}, s{A}
        s_mov_b32 s{b+1}, 1152
        s_mov_b32 s{A}, s{E}
        s_lshl_b32 s{B}, s{E}, 1
        """)
    def relay_params(self, early):
        k = self.k; n = sT5
        k(f"s_lshl_b32 s{n}, s{sI}, 2"); k(f"s_add_u32 s{n}, s{n}, s{sWV}")
        LB, LD = k.label("tb"), k.label("td")
        if early == 0:
            k(f"s_mov_b32 s{T2S+3}, 0x20000")
            k(f"""
            s_cmp_lt_u32 s{n}, 107
            s_cselect_b64 s[{T2S}:{T2S+1}], s[{W1S}:{W1S+1}], s[{sWO}:{sWO+1}]
            s_mov_b32 s{T2S+2}, 663552
            s_cselect_b32 s{T2S+2}, 5308416, s{T2S+2}
            s_mov_b32 s{sV2}, 1
            s_cbranch_scc0 {LB}
            """)
            self.p_w1(0, n); k(f"s_branch {LD}"); k(f"{LB}:")
            k(f"""
            s_sub_u32 s{n}, s{n}, 107
            s_lshl_b32 s{n}, s{n}, 3
            s_add_u32 s{n}, s{n}, s{sX}
            s_cmp_lt_u32 s{n}, 162
            s_cselect_b32 s{sV2}, 1, 0
            s_cselect_b32 s{n}, s{n}, 0
            """)
            self.p_wo(0, n); self.void(0, sV2); k(f"{LD}:")
            self.lane_off(0, sT0, sT1)
        elif early == 1:
            self.p_w2(1, n); self.lane_off(1, sT0, sT1)
        else:
            k(f"""
            s_mov_b32 s{T3S+3}, 0x20000
            s_cmp_lt_u32 s{n}, 89
            s_cselect_b32 s{sV3}, 1, 0
            s_cmp_lt_u32 s{n}, 55
            s_cselect_b64 s[{T3S}:{T3S+1}], s[{W1S}:{W1S+1}], s[{W2S}:{W2S+1}]
            s_mov_b32 s{T3S+2}, 5308416
            s_cbranch_scc0 {LB}
            s_add_u32 s{n}, s{n}, 107
            """)
            self.p_w1(2, n); k(f"s_branch {LD}"); k(f"{LB}:")
            k(f"s_add_u32 s{n}, s{n}, 73"); k(f"s_min_u32 s{n}, s{n}, 161")
            self.p_w2(2, n); self.void(2, sV3); k(f"{LD}:")
            self.lane_off(2, sT0, sT1)
    def void(self, t, valid):
        k = self.k; b = sRL + 5*t
        k(f"s_cmp_eq_u32 s{valid}, 0")
        k(f"s_cselect_b32 s{b}, 0x7f000000, s{b}"); k(f"s_cselect_b32 s{b+3}, 0x7f000000, s{b+3}")
    def relay_loads(self, t):
        k = self.k; b = sRL + 5*t; srd = (T2S, W2S, T3S)[t]
        k(f"s_mov_b32 s{sT2}, s{b}")
        for s in range(8):
            k.vm(f"buffer_load_dwordx2 {vr(200+16*t+2*s,2)}, v{128+t}, {sr(srd,4)}, s{sT2} offen" + (" nt" if OPT["nt"] else ""), ("rl", t))
            if s < 7: k(f"s_add_u32 s{sT2}, s{sT2}, s{b+2 if s == 3 else b+1}")
    def relay_store_ops(self, t, tmp):
        k = self.k; b = sRL + 5*t; ops = []
        for e in range(4):
            o = tmp + 4*e
            for d in range(4):
                lo = 200+16*t+2*(2*d)+(e >> 1); hi = lo + 2
                ops.append(lambda o=o, d=d, lo=lo, hi=hi, e=e: k(f"v_perm_b32 v{o+d}, v{hi}, v{lo}, s{sPO if e & 1 else sPE}"))
            ops.append(lambda o=o: (k.vm(f"buffer_store_dwordx4 {vr(o,4)}, v1, {sr(WS,4)}, s{b+3} offen sc1", ("rs", t)),
                                    k(f"s_add_u32 s{b+3}, s{b+3}, s{b+4}")))
        return ops
    def relay_stores(self, t, tmp):
        for f in self.relay_store_ops(t, tmp): f()

    def tr_reads(self, kk, addrs, buf):
        k = self.k; out = []
        for T, a in enumerate(addrs):
            for h in range(2):
                off = (kk & 7) * 8192 + 1024 * h
                out.append(lambda T=T, a=a, h=h, off=off: k.ds(
                    f"ds_read_b64_tr_b16 {vr(buf+4*T+2*h,2)}, v{a} offset:{off}", ("b", kk)))
        return out
    def bump(self, addrs):
        for a in addrs: self.k(f"v_add_u32 v{a}, 0x10000, v{a}")

    def phase_a(self):
        k = self.k
        if OPT["touch"]: self.w_touch()
        self.w_stage(0)
        chunks = [self.setup_a, lambda: self.relay_params(0), self.setup_b, self.setup_c,
                  lambda: self.relay_params(1), lambda: self.relay_params(2)]
        for s in range(9):
            self.x_stage(s)
            if s >= 1 and chunks: chunks.pop(0)()
        self.relay_loads(0)
        self.ts("issued")
        KA = [4, 5, 6, 7, 8]
        PRE = OPT["pre"]
        for s in range(PRE):
            k.wait(vm=("x", s))
            if s == 0:
                self.ts("x0")
                L = k.label("ng")
                k("s_cmp_lg_u32 s2, 0"); k(f"s_cbranch_scc1 {L}"); k("s_barrier")
                k("v_mov_b32 v16, 1"); k("v_mov_b32 v17, 0"); k("s_mov_b64 exec, 1")
                k(f"buffer_store_dword v16, v17, {sr(DS,4)}, 0 offen sc1"); k("s_mov_b64 exec, -1"); k(f"{L}:")
            self.x_read(s)
            if s > 0: k.wait(ds=[("xr", s - 1)]); self.w_stage(s)
        k("s_barrier")
        self.ts("A.first")
        for f in self.tr_reads(0, KA, 64): f()
        rs0 = None
        for kk in range(18):
            buf = 64 + 20 * (kk & 1)
            fill = []; nx = (kk >> 1) + PRE
            if nx < 9 and kk & 1 == 0:
                fill.append(lambda s=nx: (k.wait(vm=("x", s)), self.x_read(s)))
            if kk + 1 < 18:
                if (kk + 1) % 2 == 0:
                    fill.append(lambda s=(kk+1)//2: (k.wait(vm=("st", s)), k("s_barrier")))
                if (kk + 1) % 8 == 0: fill.append(lambda: self.bump(KA))
                fill += self.tr_reads(kk + 1, KA, 64 + 20 * ((kk + 1) & 1))
            if nx < 9:
                fill.insert(3, lambda h=2*nx + (kk & 1): (k.wait(ds=[("xr", (h >> 1) - 1)]), self.w_half(h)))
            KR = 2 * (9 - PRE)
            if kk == KR:
                rs0 = self.relay_store_ops(0, 184); fill.append(lambda: k.wait(vm=("rl", 0)))
            if kk in (KR, KR + 1):
                for _ in range(10): fill.append(rs0.pop(0))
            if kk == KR + 1:
                fill.append(lambda: (k("v_mov_b32 v14, 0"), k.vm(f"buffer_load_dword v14, v14, {sr(DS,4)}, 0 offen sc1", "gate")))
            if OPT["rsq"] >= 0:
                if kk in (KR + 2, KR + 3): fill.append(lambda t=kk-KR-1: self.relay_loads(t))
            else:
                for t in (1, 2):
                    if kk == OPT[f"kl{t}"]: fill.append(lambda t=t: self.relay_loads(t))
                    if kk == KR + 2*t:
                        rs0 = self.relay_store_ops(t, 184); fill.append(lambda t=t: k.wait(vm=("rl", t)))
                    if kk in (KR + 2*t, KR + 2*t + 1):
                        for _ in range(10): fill.append(rs0.pop(0))
            k.wait(ds=[("b", kk)])
            ms = []
            for T in range(5):
                for mt in range(2):
                    d = vr(16 + 8*T + 4*mt, 4)
                    ms.append((d, ar((kk*2+mt)*4, 4), vr(buf + 4*T, 4), d if kk else None))
            for mt in range(2):
                d = vr(56 + 4*mt, 4); xa = ar((kk*2+mt)*4, 4)
                ms.append((d, xa, xa, d if kk else None))
            for m in ms:
                self.mfma(*m)
                if fill: fill.pop(0)()
            L = k.label("cs")
            k(f"s_cmp_lg_u32 s{sWV}, {kk & 3}"); k(f"s_cbranch_scc1 {L}")
            for T in range(5):
                d = vr(104 + 4*T, 4); self.mfma(d, "v[124:127]", vr(buf + 4*T, 4), d if kk >= 4 else None)
            k(f"{L}:")
            while fill: fill.pop(0)()
        self.ts("A.kloop")
        k(f"""
        s_lshl_b32 s{sT0}, s{sWV}, 8
        s_add_u32 s{sT0}, s{sT0}, {ST}
        v_lshl_add_u32 v132, v3, 4, s{sT0}
        v_lshl_add_u32 v133, v2, 2, s{sT0}
        s_lshl_b32 s{sT0}, s{sWV}, 2
        s_add_u32 s{sT0}, s{sT0}, {CS}
        v_lshl_add_u32 v134, v2, 4, s{sT0}
        v_lshlrev_b32 v135, 4, v2
        v_add_u32 v135, {CS}, v135
        """)
        self.setexec(0x0001000100010001)
        for mt in range(2): k.ds(f"ds_write_b128 v132, {vr(48+4*mt,4)} offset:{128*mt}")
        for r in range(4):
            self.setexec(0x1000010000100001 << r)
            for mt in range(2): k.ds(f"ds_write_b32 v133, v{56+4*mt+r} offset:{64+128*mt}")
        self.setexec(0xffff)
        for T in range(5): k.ds(f"ds_write_b32 v134, v{104+4*T} offset:{256*T}")
        self.setexec(-1)
        k.wait(ds="all"); k("s_barrier")
        for mt in range(2):
            k.ds(f"ds_read_b128 {vr(136+8*mt,4)}, v132 offset:{128*mt}", ("s", mt))
            k.ds(f"ds_read_b128 {vr(140+8*mt,4)}, v132 offset:{128*mt+64}", ("s", mt))
        for T in range(5): k.ds(f"ds_read_b128 {vr(104+4*T,4)}, v135 offset:{256*T}", ("c", T))
        k(f"s_mov_b32 s{sC0}, {hex(f2u(-1/576))}"); k(f"s_mov_b32 s{sC1}, {hex(f2u(1/576))}")
        k(f"s_mov_b32 s{sC2}, {hex(f2u(1.4426950408889634))}"); k(f"s_mov_b32 s{sC3}, {hex(f2u(1e-6))}")
        k(f"v_mov_b32 v15, {hex(f2u(1e-5))}")
        NM = lambda mt, r: 136 + 8*mt + r
        RS = lambda mt, r: 140 + 8*mt + r
        RLg = lambda mt, r: 152 + 4*mt + r
        for mt in range(2):
            k.wait(ds=[("s", mt)])
            self.stats([(NM(mt, r), RS(mt, r), RLg(mt, r)) for r in range(4)])
        for T in range(5):
            k.wait(ds=[("c", T)]); c = 104 + 4*T
            k(f"v_add_f32 v{c}, v{c}, v{c+1}"); k(f"v_add_f32 v{c+2}, v{c+2}, v{c+3}"); k(f"v_add_f32 v{c}, v{c}, v{c+2}")
        k(f"s_mov_b32 s{sMK}, 0xf000f000"); k(f"s_mov_b32 s{sMK+1}, 0xf000f000")
        PK = lambda T: 160 + 4*T
        for T in (0, 2, 1, 3, 4):
            for mt in range(2):
                el = [(16 + 8*T + 4*mt + r, NM(mt, r), 104 + 4*T, RS(mt, r), RLg(mt, r)) for r in range(4)]
                self.affine(el, phi=T in (0, 1, 4), keep=(T == 4), tmp=64)
                for h in range(2):
                    a = 16 + 8*T + 4*mt + 2*h
                    k(f"v_cvt_pk_bf16_f32 v{PK(T)+2*mt+h}, v{a}, v{a+1}")
            if T == 2: self.mfma("v[16:19]", vr(PK(0), 4), vr(PK(2), 4))
            if T == 3: self.mfma("v[20:23]", vr(PK(1), 4), vr(PK(3), 4))
        X = PK(4); BA, BB, AC, AD, AEA, AEB = 72, 76, 80, 84, 88, 92
        for d in range(4): k(f"v_and_or_b32 v{BA+d}, v{X+d}, v249, v248")
        for d in range(4): k(f"v_and_b32 v{AC+d}, v{X+d}, v252")
        self.mfma("v[24:27]", vr(PK(0), 4), vr(BA, 4))
        for d in range(4): k(f"v_and_or_b32 v{BB+d}, v{X+d}, v251, v250")
        self.mfma("v[28:31]", vr(AC, 4), vr(PK(2), 4))
        for d in range(4): k(f"v_and_b32 v{AD+d}, v{X+d}, v253")
        self.mfma("v[24:27]", vr(PK(1), 4), vr(BB, 4), "v[24:27]")
        for d in range(4): k(f"v_and_b32 v{AEA+d}, v{X+d}, v254")
        self.mfma("v[28:31]", vr(AD, 4), vr(PK(3), 4), "v[28:31]")
        for d in range(4): k(f"v_and_b32 v{AEB+d}, v{X+d}, v131")
        self.mfma("v[28:31]", vr(AEA, 4), vr(BA, 4), "v[28:31]")
        self.mfma("v[28:31]", vr(AEB, 4), vr(BB, 4), "v[28:31]")
        self.ts("A.epi")
        k(f"v_add_u32 v134, {AUX}, v1")
        LD = k.label("kvd"); labs = [k.label("kv") for _ in range(4)]
        for w in range(4):
            k(f"{labs[w]}:")
            if w < 3: k(f"s_cmp_lg_u32 s{sWV}, {w}"); k(f"s_cbranch_scc1 {labs[w+1]}")
            for T in range(4):
                if T != w: k(f"ds_write_b128 v134, {vr(16+4*T,4)} offset:{T*3072 + ((w-T-1) & 3)*1024}")
            for r in range(4): k(f"v_mov_b32 v{32+r}, v{16+4*w+r}")
            if w < 3: k(f"s_branch {LD}")
        k(f"{LD}:")
        k(f"s_mul_i32 s{sT0}, s{sWV}, 3072"); k(f"v_add_u32 v134, s{sT0}, v134")
        k("s_waitcnt lgkmcnt(0)"); k.lq = []; k("s_barrier")
        for q in range(3): k.ds(f"ds_read_b128 {vr(16+4*q,4)}, v134 offset:{q*1024}", ("r", q))
        k(f"""
        s_lshl_b32 s{sT0}, s{sP}, 4
        s_add_u32 s{sT0}, s{sT0}, s{sR}
        s_lshl_b32 s{sT0}, s{sT0}, 2
        s_add_u32 s{sT0}, s{sT0}, s{sWV}
        s_lshl_b32 s{sT0}, s{sT0}, 10
        s_add_u32 s{sT0}, s{sT0}, {KVP}
        """)
        for q in range(3):
            k.wait(ds=[("r", q)])
            for r in range(4): k(f"v_add_f32 v{32+r}, v{32+r}, v{16+4*q+r}")
        k.vm(f"buffer_store_dwordx4 v[32:35], v1, {sr(WS,4)}, s{sT0} offen sc1", "kvp")
        self.ts("A.kvst")

    def stats(self, L):
        k = self.k
        for a, b, c in L: k(f"v_mul_f32 v{a}, s{sC0}, v{a}")
        for a, b, c in L: k(f"v_fma_f32 v{b}, v{b}, s{sC1}, v15")
        for a, b, c in L: k(f"v_fma_f32 v{b}, -v{a}, v{a}, v{b}")
        for a, b, c in L: k(f"v_max_f32 v{b}, v{b}, v15")
        for a, b, c in L: k(f"v_rsq_f32 v{b}, v{b}")
        for a, b, c in L:
            if c is not None: k(f"v_mul_f32 v{c}, s{sC2}, v{b}")
    def affine(self, el, phi, keep, tmp):
        k = self.k
        for a, nm, cs, rs, rl in el: k(f"v_fma_f32 v{a}, v{nm}, v{cs}, v{a}")
        if not phi:
            for a, nm, cs, rs, rl in el: k(f"v_mul_f32 v{a}, v{a}, v{rs}")
            return
        for n, (a, nm, cs, rs, rl) in enumerate(el): k(f"v_mul_f32 v{tmp+n}, v{a}, v{rl}")
        if keep:
            for n, (a, nm, cs, rs, rl) in enumerate(el): k(f"v_mul_f32 v{tmp+4+n}, v{a}, v{rs}")
        for n, (a, nm, cs, rs, rl) in enumerate(el): k(f"v_exp_f32 v{tmp+n}, v{tmp+n} clamp")
        for a, nm, cs, rs, rl in el: k(f"v_fma_f32 v{a}, v{a}, v{rs}, s{sC3}")
        for a, nm, cs, rs, rl in el: k(f"v_max_f32 v{a}, s{sC3}, v{a}")
        for n, (a, nm, cs, rs, rl) in enumerate(el): k(f"v_add_f32 v{a}, v{a}, v{tmp+n}")
        if keep:
            for n, (a, nm, cs, rs, rl) in enumerate(el):
                k(f"v_cndmask_b32 v{a}, v{a}, v{tmp+4+n}, s[{sMK}:{sMK+1}]")

    def finish(self):
        k = self.k
        if self.prof:
            self.ts("end"); self.rt(63)
            k(f"""
            s_lshl_b32 s{sT0}, s2, 2
            s_add_u32 s{sT0}, s{sT0}, s{sWV}
            s_lshl_b32 s{sT0}, s{sT0}, 8
            s_add_u32 s{sT0}, s{sT0}, {PROF}
            v_lshlrev_b32 v4, 2, v0
            buffer_store_dword v255, v4, {sr(WS,4)}, s{sT0} offen
            """)
            if self.dbgwg is not None:
                k(f"s_cmp_lg_u32 s2, {self.dbgwg}"); k("s_cbranch_scc1 L_nd")
                k(f"s_cmp_lg_u32 s{sWV}, 0"); k("s_cbranch_scc1 L_nd")
                k("v_readlane_b32 s3, v255, 0"); k("v_subrev_u32 v255, s3, v255")
                k("s_mov_b64 exec, 0xfffe")
                k(f"buffer_store_dword v255, v4, {sr(DS,4)}, 0 offen"); k("L_nd:")
        k("s_waitcnt vmcnt(0)"); k("L_end:"); k("s_endpgm")


def build(stop=None, prof=False, only=None, dbgwg=None):
    from gen2 import hop1, phase_b, phase_f
    g = G(stop, prof); g.only = only; g.dbgwg = dbgwg
    g.prologue(); g.phase_a()
    for name, fn in (("q", hop1), ("b", phase_b), ("f", phase_f)):
        if stop == "pre" + name: break
        fn(g)
    g.finish()
    hdr = "".join(open("cdna_kernels/" + NAME + ".s.ref").readlines()[:12]) if True else ""
    txt = g.k.text(hdr, NAME + "_kernel", 256, 256, 102, (256, 1, 1), (256, 1, 1), 163840)
    return txt, g

if __name__ == "__main__":
    out = sys.argv[1]; stop = sys.argv[2] if len(sys.argv) > 2 and sys.argv[2] != "-" else None
    prof = len(sys.argv) > 3
    txt, g = build(stop, prof)
    open(out, "w").write(txt)
    import json; json.dump(g.tsn, open(out + ".ts.json", "w"))
    print("lines", txt.count("\n"), "bytes", len(txt), "nop states", g.k.nops)
```

```python
from kgen import *
import gen as _g
from gen import *

NP1, NP2A = OPT['np1'], OPT['np2']
RING = 60
XRB = 81920
WOA = 96

def ring_load(g, seq):
    k = g.k
    if seq % 4 == 0:
        k(f"s_add_u32 s{sA0}, s{sA1}, {seq*1024}")
    k.vm(f"buffer_load_dwordx4 {ar(4*(seq % RING),4)}, v1, {sr(WS,4)}, s{sA0} offen offset:{(seq % 4)*1024} sc1", ("w", seq))

def p_touch(g):
    k = g.k
    k("v_lshlrev_b32 v158, 7, v0")
    for h in range(2):
        k(f"""
        s_lshl_b32 s{sT0}, s{sWV}, 1
        s_add_u32 s{sT0}, s{sT0}, s{sJ}
        s_add_u32 s{sT0}, s{sT0}, {h}
        s_and_b32 s{sT0}, s{sT0}, 7
        s_cmp_eq_u32 s{sT0}, s{sJ}
        s_cselect_b32 s{sT0}, 8, s{sT0}
        s_mul_i32 s{sT1}, s{sRF}, 9
        s_add_u32 s{sT0}, s{sT0}, s{sT1}
        s_lshl_b32 s{sT0}, s{sT0}, 3
        s_add_u32 s{sT0}, s{sT0}, s{sJ}
        s_lshl_b32 s{sT0}, s{sT0}, 13
        s_add_u32 s{sT0}, s{sT0}, {PB}
        """)
        k.vm(f"buffer_load_dword v{156+h}, v158, {sr(WS,4)}, s{sT0} offen sc1", "pt")

def hop1(g):
    k = g.k
    QA = [9, 10, 11]
    for f in g.tr_reads(0, QA, 64): f()
    k(f"""
    s_lshr_b32 s{sT0}, s{sI}, 3
    s_lshl_b32 s{sBR}, s{sX}, 2
    s_add_u32 s{sBR}, s{sBR}, s{sT0}
    s_and_b32 s{sBC}, s{sI}, 7
    v_mov_b32 v6, 0
    """)
    if OPT["fmap"]:
        k(f"""
        s_and_b32 s{sJ}, s{sX}, 6
        s_and_b32 s{sT0}, s{sI}, 1
        s_add_u32 s{sJ}, s{sJ}, s{sT0}
        s_and_b32 s{sRF}, s{sX}, 1
        s_lshl_b32 s{sRF}, s{sRF}, 4
        s_lshr_b32 s{sT0}, s{sI}, 1
        s_add_u32 s{sRF}, s{sRF}, s{sT0}
        """)
    else:
        k(f"s_mov_b32 s{sJ}, s{sX}"); k(f"s_mov_b32 s{sRF}, s{sI}")
    k(f"""
    s_lshl_b32 s{sT3}, s{sP}, 8
    s_lshl_b32 s{sT0}, s{sWV}, 6
    s_add_u32 s{sT3}, s{sT3}, s{sT0}
    s_lshl_b32 s{sT0}, s{sR}, 2
    s_add_u32 s{sT4}, s{sT3}, s{sT0}
    """)
    rsq = []
    for t in (1, 2)[:max(OPT["rsq"], 0)]: rsq += g.relay_store_ops(t, 176 + 8*0)
    def ready_loads():
        k(f"""
        v_lshlrev_b32 v135, 10, v3
        v_lshl_add_u32 v135, v2, 4, v135
        s_movk_i32 s{sA0}, {FK + 768}
        s_lshr_b32 s{sA1}, s{sJ}, 1
        s_lshl_b32 s{sA1}, s{sA1}, 10
        """)
        k.vm(f"buffer_load_dwordx4 v[168:171], v135, {sr(WS,4)}, s{sA0} offen sc1", "fw")
        k.vm(f"buffer_load_dwordx4 v[172:175], v1, {sr(WS,4)}, s{sA1} offen sc1", "fw")
    g.ts("Q.start")
    for kk in range(18):
        buf = 64 + 12 * (kk & 1); fill = []
        if kk + 1 < 18:
            if (kk + 1) % 8 == 0: fill.append(lambda: g.bump(QA))
            fill += g.tr_reads(kk + 1, QA, 64 + 12 * ((kk + 1) & 1))
        else:
            for mt in range(2):
                fill.append(lambda mt=mt: k.ds(f"ds_read_b32 v{136+mt}, v133 offset:{128*mt}", "qs"))
                fill.append(lambda mt=mt: k.ds(f"ds_read_b32 v{138+mt}, v133 offset:{128*mt+64}", "qs"))
        if kk == 3:
            fill.append(lambda: (k.wait(vm="kvp"), g.check(6, "0", 14, 1, srd=DS), k("v_mov_b32 v14, 1"), g.flag(f"s{sT4}", 14, 6)))
        if 4 <= kk < 9:
            for _ in range(8):
                if rsq: fill.append(rsq.pop(0))
        if kk == 12 and not OPT["rdy"]: fill.append(ready_loads)
        if kk == 5 and OPT["ptouch"]: fill.append(lambda: p_touch(g))
        if OPT["fine"] and kk in (3, 4, 9, 12): g.ts(f"q.{kk}")
        k.wait(ds=[("b", kk)])
        ms = []
        for T in range(3):
            for mt in range(2):
                d = vr(16 + 8*T + 4*mt, 4)
                ms.append((d, vr(buf + 4*T, 4), ar((kk*2+mt)*4, 4), d if kk else None))
            d = vr(40 + 4*T, 4); ms.append((d, vr(buf + 4*T, 4), "v[124:127]", d if kk else None))
        for m in ms:
            g.mfma(*m)
            if fill: fill.pop(0)()
        while fill: fill.pop(0)()
    k.wait(ds=["qs"])
    g.stats([(136 + mt, 138 + mt, 140 + mt) for mt in range(2)])
    for T in range(3):
        for mt in range(2):
            el = [(16 + 8*T + 4*mt + r, 136 + mt, 40 + 4*T + r, 138 + mt, 140 + mt) for r in range(4)]
            g.affine(el, phi=True, keep=False, tmp=64)
            dst = 144 + 4*mt + 2*T if T < 2 else 152 + 2*mt
            for h in range(2):
                a = 16 + 8*T + 4*mt + 2*h
                k(f"v_cvt_pk_bf16_f32 v{dst+h}, v{a}, v{a+1}")
    for reg, bits in ((248, 0x3111), (249, 0xC222)):
        k(f"s_mov_b32 s{sT1}, {hex(bits)}"); k(f"v_bfe_i32 v{reg}, s{sT1}, v2, 1")
    k("v_bfe_i32 v250, 2, v3, 1"); k("v_bfe_i32 v251, 4, v3, 1")
    k(f"""
    v_lshlrev_b32 v134, 2, v2
    s_lshl_b32 s{sT0}, s{sP}, 16
    s_lshl_b32 s{sT1}, s{sWV}, 10
    s_add_u32 s{sT0}, s{sT0}, s{sT1}
    s_add_u32 s{sT0}, s{sT0}, {KVP}
    s_lshl_b32 s{sT1}, s{sWV}, 9
    s_add_u32 s{sT1}, s{sT1}, {KVX}
    v_lshl_add_u32 v132, v0, 3, s{sT1}
    v_lshlrev_b32 v133, 3, v0
    v_add_u32 v133, {KVX}, v133
    """)
    g.ts("Q.end")
    g.poll(134, f"s{sT3}", 136)
    ready_check = lambda: (k.wait(vm="fw"), g.check(135, f"s{sA0}", 168, 4), g.check(1, f"s{sA1}", 172, 4))
    if not OPT["rdy"]: ready_check()
    g.ts("FK.seen")
    for q in range(16):
        k.vm(f"buffer_load_dwordx4 {vr(64+4*q,4)}, v1, {sr(WS,4)}, s{sT0} offen sc1", ("kv", q))
        if q < 15: k(f"s_add_u32 s{sT0}, s{sT0}, 4096")
    def wo_loads(lo=0, hi=18):
        if lo == 0:
            k(f"""
            s_lshl_b32 s{sA2}, s{sBC}, 2
            s_add_u32 s{sA2}, s{sA2}, s{sWV}
            s_mul_i32 s{sA2}, s{sA2}, 18432
            s_add_u32 s{sA2}, s{sA2}, {WOT}
            """)
        for kk in range(lo, hi):
            k.vm(f"buffer_load_dwordx4 {ar(WOA+4*kk,4)}, v1, {sr(WS,4)}, s{sA2} offen offset:{(kk & 3)*1024} sc1", "wo")
            if kk & 3 == 3: k(f"s_add_u32 s{sA2}, s{sA2}, 4096")
    g.wo_loads = wo_loads
    if OPT["rdy"] in (1, 2): ready_loads()
    if OPT["rdy"] == 0: wo_loads()
    k(f"""
    s_lshl_b32 s{sT0}, s{sBR}, 6
    s_lshl_b32 s{sT1}, s{sWV}, 4
    s_add_u32 s{sT1}, s{sT1}, s{sT0}
    s_mul_i32 s{sT1}, s{sT1}, 1152
    s_lshl_b32 s{sT2}, s{sBC}, 7
    s_add_u32 s{sXB}, s{sT1}, s{sT2}
    s_add_u32 s{sXB+1}, s{sXB}, 9216
    s_lshr_b32 s{sT1}, s{sBC}, 1
    s_lshl_b32 s{sT1}, s{sT1}, 4
    s_add_u32 s{sT0}, s{sT0}, s{sT1}
    s_lshl_b32 s{sT1}, s{sWV}, 3
    s_add_u32 s{sT0}, s{sT0}, s{sT1}
    s_mul_i32 s{sT0}, s{sT0}, 1152
    s_add_u32 s{sXB+2}, s{sT0}, 1024
    s_cmp_lt_u32 s{sWV}, 2
    s_cselect_b32 s{sXB+2}, s{sXB+2}, 0x7f000000
    """)
    for q in range(1, 16):
        k.wait(vm=("kv", q)); d = 64 + 4*(q & 1 if q > 1 else 0)
        if q == 1: continue
        for h in range(2): k(f"v_pk_add_f32 {vr(d+2*h,2)}, {vr(d+2*h,2)}, {vr(64+4*q+2*h,2)}")
    for h in range(2): k(f"v_pk_add_f32 {vr(64+2*h,2)}, {vr(64+2*h,2)}, {vr(68+2*h,2)}")
    k("v_cvt_pk_bf16_f32 v160, v64, v65"); k("v_cvt_pk_bf16_f32 v161, v66, v67")
    k.ds("ds_write_b64 v132, v[160:161]")
    if OPT["rdy"] == 1: ready_check(); wo_loads()
    k.wait(ds="all"); k("s_barrier")
    for T in range(4): k.ds(f"ds_read_b64 {vr(160+2*T,2)}, v133 offset:{512*T}", ("x", T))
    if OPT["rdy"] == 3: ready_loads()
    for j in range(3):
        k(f"s_add_u32 m0, s{sDK}, {XRB + 1024*j}" if j < 2 else f"s_lshr_b32 s{sT0}, s{sDK}, 1")
        if j == 2: k(f"s_add_u32 m0, s{sT0}, {XRB + 8192}")
        k.vm(f"buffer_load_dwordx4 v12, {sr(XS,4)}, s{sXB+j} offen lds", "xr")
    k(f"""
    s_lshl_b32 s{sT0}, s{sR}, 1
    s_lshr_b32 s{sT1}, s{sWV}, 1
    s_add_u32 s{sT0}, s{sT0}, s{sT1}
    s_lshl_b32 s{sT4}, s{sT0}, 7
    s_mul_i32 s{sT0}, s{sT0}, 73728
    s_and_b32 s{sT1}, s{sWV}, 1
    s_lshl_b32 s{sT2}, s{sT1}, 11
    s_add_u32 s{sT0}, s{sT0}, s{sT2}
    s_add_u32 s{sT0}, s{sT0}, {OB}
    s_lshl_b32 s{sT1}, s{sT1}, 2
    s_add_u32 s{sT4}, s{sT4}, s{sT1}
    s_lshl_b32 s{sT1}, s{sP}, 3
    s_add_u32 s{sT4}, s{sT4}, s{sT1}
    s_add_u32 s{sT4}, s{sT4}, {FO}
    s_lshr_b32 s{sT1}, s{sP}, 3
    s_add_u32 s{sT1}, s{sT1}, 16
    s_lshl_b32 s{sT1}, s{sT1}, 12
    s_and_b32 s{sT2}, s{sP}, 6
    s_lshl_b32 s{sT2}, s{sT2}, 7
    s_add_u32 s{sT1}, s{sT1}, s{sT2}
    s_add_u32 s{sT1}, s{sT1}, s{sDL}
    s_add_u32 s{sT1}, s{sT1}, s{sT0}
    s_lshl_b32 s{sT2}, s{sP}, 12
    s_add_u32 s{sT0}, s{sT0}, s{sT2}
    v_lshlrev_b32 v134, 4, v2
    """)
    T0, T1, O1, O2 = 160, 162, 164, 166
    AF, A0L, A1L, AFL = 56, 60, 62, 64
    E = lambda q, mt: 16 + 12*mt + 4*q
    k.wait(ds=[("x", 1)])
    for mt in range(2):
        g.mfma(vr(E(0, mt), 4), vr(T0, 2), vr(144 + 4*mt, 2), k16=True)
        g.mfma(vr(E(1, mt), 4), vr(T1, 2), vr(146 + 4*mt, 2), k16=True)
    k.wait(ds=[("x", 3)])
    k(f"""
    v_mov_b32 v61, 0
    v_mov_b32 v62, 0
    v_and_b32 v{AF}, v{O1}, v248
    v_and_b32 v{AF+1}, v{O1+1}, v248
    v_and_b32 v{AF+2}, v{O1}, v249
    v_and_b32 v{AF+3}, v{O1+1}, v249
    v_and_b32 v{AFL}, v{O2}, v251
    v_and_b32 v{AFL+1}, v{O2+1}, v250
    v_and_b32 v{A0L}, v{O2}, v250
    v_and_b32 v{A1L+1}, v{O2+1}, v251
    """)
    for mt in range(2): g.mfma(vr(E(2, mt), 4), vr(AF, 4), vr(144 + 4*mt, 4))
    for mt in range(2): g.mfma(vr(E(2, mt), 4), vr(AFL, 2), vr(152 + 2*mt, 2), vr(E(2, mt), 4), k16=True)
    for mt in range(2):
        g.mfma(vr(E(0, mt), 4), vr(A0L, 2), vr(152 + 2*mt, 2), vr(E(0, mt), 4), k16=True)
        g.mfma(vr(E(1, mt), 4), vr(A1L, 2), vr(152 + 2*mt, 2), vr(E(1, mt), 4), k16=True)
    for mt in range(2):
        F = E(2, mt); c = 68 + 4*mt
        for q in range(2):
            k(f"v_add_f32 v{c+2*q}, s{sC3}, v{F+q}"); k(f"v_add_f32 v{c+2*q+1}, s{sC3}, v{F+q}")
    for mt in range(2):
        c = 68 + 4*mt
        for q in range(2): k(f"v_permlane16_swap_b32 v{c+2*q}, v{c+2*q+1}")
    for mt in range(2):
        c = 68 + 4*mt
        for q in range(2): k(f"v_rcp_f32 v{c+2*q}, v{c+2*q}")
    for mt in range(2):
        c = 68 + 4*mt; o = 80 + 8*mt
        for q in range(2):
            for r in range(4): k(f"v_mul_f32 v{E(q,mt)+r}, v{E(q,mt)+r}, v{c+2*q}")
            for h in range(2): k(f"v_cvt_pk_bf16_f32 v{o+2*q+h}, v{E(q,mt)+2*h}, v{E(q,mt)+2*h+1}")
        k.vm(f"buffer_store_dwordx4 {vr(o,4)}, v1, {sr(WS,4)}, s{sT0} offen offset:{1024*mt} sc1", "o")
    for mt in range(2):
        c = 68 + 4*mt; o = 84 + 8*mt; F = E(2, mt)
        for r in range(4): k(f"v_mul_f32 v{F+r}, v{F+r}, v{c+2*(r>>1)}")
        for h in range(2): k(f"v_cvt_pk_bf16_f32 v{o+h}, v{F+2*h}, v{F+2*h+1}")
    g.setexec(0xffff << 48)
    for mt in range(2):
        k.vm(f"buffer_store_dwordx2 {vr(84+8*mt,2)}, v134, {sr(WS,4)}, s{sT1} offen offset:{1024*mt} sc1", "o")
    g.setexec(-1)
    g.ts("O.st")
    if OPT["rdy"] == 2: ready_check(); wo_loads()
    if OPT["rdy"] == 3: ready_check(); wo_loads(0, OPT["nwo"])

def sel(g, dst, se, h, tmp):
    k = g.k
    k(f"v_lshl_add_u32 v{tmp}, v2, 2, s{se}")
    k(f"v_lshlrev_b32 v{tmp+1}, 3, v3")
    k(f"v_sub_u32 v{tmp}, v{tmp}, v{tmp+1}")
    if h: k(f"v_subrev_u32 v{tmp}, 32, v{tmp}")
    k(f"v_and_b32 v{tmp+1}, 1, v{tmp}")
    k(f"v_lshlrev_b32 v{tmp+1}, 4, v{tmp+1}")
    k(f"v_mov_b32 v{tmp+2}, 0x3f80")
    k(f"v_lshlrev_b32 v{tmp+1}, v{tmp+1}, v{tmp+2}")
    k(f"v_lshrrev_b32 v{tmp}, 1, v{tmp}")
    for d in range(4):
        k(f"v_cmp_eq_u32 vcc, {d}, v{tmp}"); k(f"v_cndmask_b32 v{dst+d}, 0, v{tmp+1}, vcc")

def phase_b(g):
    k = g.k
    k(f"""
    s_and_b32 s{sT0}, s{sBC}, 1
    s_lshl_b32 s{sT0}, s{sT0}, 1
    s_add_u32 s{sT5}, s{sT0}, s{sWV}
    s_add_u32 s{sT3}, s{sT5}, 32
    s_mul_i32 s{sT3}, s{sT3}, 18432
    s_add_u32 s{sT3}, s{sT3}, {WOT}
    s_lshl_b32 s{sA1}, s{sJ}, 2
    s_add_u32 s{sA1}, s{sA1}, s{sWV}
    s_mul_i32 s{sA1}, s{sA1}, {324*1024}
    s_add_u32 s{sA1}, s{sA1}, {WT}
    """)
    for h in range(2):
        sel(g, 40 + 4*h, sWV, h, 100); sel(g, 48 + 4*h, sT5, h, 100)
    k(f"""
    v_and_b32 v56, 31, v0
    v_lshlrev_b32 v56, 2, v56
    s_lshl_b32 s{sT0}, s{sBR}, 7
    s_add_u32 s{sT0}, s{sT0}, {FO}
    s_mul_i32 s{sT1}, s{sBR}, 73728
    s_add_u32 s{sT1}, s{sT1}, {OB}
    s_lshr_b32 s{sT2}, s{sBC}, 1
    s_lshl_b32 s{sT2}, s{sT2}, 10
    v_add_u32 v57, s{sT2}, v1
    v_add_u32 v58, 0x10000, v1
    v_add_u32 v59, 0x10000, v57
    v_and_b32 v100, 6, v0
    v_xor_b32 v100, v100, v3
    v_lshlrev_b32 v100, 4, v100
    v_and_b32 v101, 7, v0
    v_lshl_add_u32 v100, v101, 7, v100
    v_bfe_u32 v101, v0, 3, 1
    v_lshl_add_u32 v100, v101, 10, v100
    v_add_u32 v62, {XRB}, v100
    v_xor_b32 v63, 64, v62
    """)
    k.wait(vm="o"); g.flag(f"s{sT4}", 14, 6)
    g.ts("FO.set")
    if OPT["rdy"] == 3 and OPT["nwo"] < 18: g.wo_loads(OPT["nwo"], 18)
    L = k.label("nx")
    k(f"s_cmp_ge_u32 s{sWV}, 2"); k(f"s_cbranch_scc1 {L}")
    for kk in range(18):
        k.vm(f"buffer_load_dwordx4 {ar(WOA+72+4*kk,4)}, v1, {sr(WS,4)}, s{sT3} offen offset:{(kk & 3)*1024} sc1", None, count=False)
        if kk & 3 == 3: k(f"s_add_u32 s{sT3}, s{sT3}, 4096")
    k(f"{L}:")
    g.poll1(56, f"s{sT0}", 60, wave=3)
    g.ts("FO.seen")
    for s in range(5):
        if s < 4:
            k(f"s_lshl_b32 s{sT2}, s{sWV}, 12"); k(f"s_add_u32 s{sT2}, s{sT2}, {s*16384}")
        else:
            k(f"s_lshl_b32 s{sT2}, s{sWV}, 11"); k(f"s_add_u32 s{sT2}, s{sT2}, 65536")
        k(f"s_mov_b32 m0, s{sT2}"); k(f"s_add_u32 s{sT2}, s{sT2}, s{sT1}")
        for q in range(4 if s < 4 else 2):
            k.vm(f"buffer_load_dwordx4 v1, {sr(WS,4)}, s{sT2} offen offset:{q*1024} sc1 lds", ("os", s))
    for h in range(2):
        for mt in range(5): k.ds(f"ds_read_b128 {vr(104+8*mt+4*h,4)}, v{62+h} offset:{2048*mt}", ("xr", h))
    later = []
    for t in (1, 2)[OPT["rsq"] if OPT["rsq"] >= 0 else 2:]: later += g.relay_store_ops(t, 168 + 16*(t - 1))
    later += [lambda seq=seq: ring_load(g, seq) for seq in range(NP1)]
    for h in range(2):
        k.wait(ds=[("xr", h)])
        for mt in range(5):
            d = vr(16 + 4*mt, 4); g.mfma(d, vr((40 if mt < 4 else 48) + 4*h, 4), vr(104 + 8*mt + 4*h, 4), d if h else None)
    def reads(kk):
        buf = 64 + 20 * (kk & 1); out = []
        for q in range(5):
            a = (1, 57)[q == 4] if kk < 16 else (58, 59)[q == 4]
            off = (kk & 15) * 4096 + (q & 3) * 1024
            out.append(lambda q=q, a=a, off=off: k.ds(f"ds_read_b128 {vr(buf+4*q,4)}, v{a} offset:{off}", ("ob", kk)))
        return out
    k.wait(vm=("os", 0)); k("s_barrier")
    g.ts("O.first")
    for f in reads(0): f()
    for kk in range(18):
        buf = 64 + 20 * (kk & 1); fill = []
        if kk + 1 < 18:
            if (kk + 1) % 4 == 0: fill.append(lambda s=(kk+1)//4: (k.wait(vm=("os", s)), k("s_barrier")))
            fill += reads(kk + 1)
        k.wait(ds=[("ob", kk)])
        for q in range(5):
            d = vr(16 + 4*q, 4)
            g.mfma(d, ar(WOA + (0 if q < 4 else 72) + 4*kk, 4), vr(buf + 4*q, 4), d)
            if fill: fill.pop(0)()
            if later: later.pop(0)()
        while fill: fill.pop(0)()
    while later: later.pop(0)()
    k(f"""
    s_mul_i32 s{sT0}, s{sBR}, 73728
    s_add_u32 s{sT0}, s{sT0}, {HB}
    s_and_b32 s{sT2}, s{sBC}, 1
    s_add_u32 s{sT2}, s{sT2}, 16
    s_lshl_b32 s{sT2}, s{sT2}, 2
    s_lshr_b32 s{sT3}, s{sBC}, 1
    s_add_u32 s{sT2}, s{sT2}, s{sT3}
    s_lshl_b32 s{sT2}, s{sT2}, 10
    s_lshl_b32 s{sT3}, s{sWV}, 9
    s_add_u32 s{sT2}, s{sT2}, s{sT3}
    s_add_u32 s{sT1}, s{sT2}, s{sT0}
    s_lshl_b32 s{sT2}, s{sBC}, 1
    s_lshr_b32 s{sT3}, s{sWV}, 1
    s_add_u32 s{sT2}, s{sT2}, s{sT3}
    s_lshl_b32 s{sT2}, s{sT2}, 12
    s_and_b32 s{sT3}, s{sWV}, 1
    s_lshl_b32 s{sT3}, s{sT3}, 9
    s_add_u32 s{sT2}, s{sT2}, s{sT3}
    s_add_u32 s{sT0}, s{sT0}, s{sT2}
    v_lshrrev_b32 v56, 1, v3
    v_lshlrev_b32 v56, 8, v56
    v_lshl_add_u32 v56, v2, 4, v56
    v_and_b32 v57, 1, v3
    v_lshl_add_u32 v4, v57, 10, v56
    v_lshl_add_u32 v5, v57, 3, v56
    s_lshl_b32 s{sT4}, s{sBR}, 3
    s_add_u32 s{sT4}, s{sT4}, s{sBC}
    s_lshl_b32 s{sT4}, s{sT4}, 2
    s_add_u32 s{sT4}, s{sT4}, s{sWV}
    s_lshl_b32 s{sT4}, s{sT4}, 2
    s_add_u32 s{sT4}, s{sT4}, {FH}
    """)
    for pb in range(2):
        o = 40 + 4*pb
        for q in range(4):
            a = 16 + 8*pb + 2*q; k(f"v_cvt_pk_bf16_f32 v{o+q}, v{a}, v{a+1}")
        k(f"v_permlane16_swap_b32 v{o}, v{o+2}"); k(f"v_permlane16_swap_b32 v{o+1}, v{o+3}")
        k.vm(f"buffer_store_dwordx4 {vr(o,4)}, v4, {sr(WS,4)}, s{sT0} offen offset:{2048*pb} sc1", "h")
    k("v_cvt_pk_bf16_f32 v48, v32, v33"); k("v_cvt_pk_bf16_f32 v49, v34, v35")
    L = k.label("nx")
    k(f"s_cmp_ge_u32 s{sWV}, 2"); k(f"s_cbranch_scc1 {L}")
    k.vm(f"buffer_store_dwordx2 v[48:49], v5, {sr(WS,4)}, s{sT1} offen sc1", "h", count=False)
    k(f"{L}:")
    g.ts("H.st")
    for seq in range(NP1, NP1 + NP2A): ring_load(g, seq)
    k.wait(vm="h"); g.flag(f"s{sT4}", 14, 6)
    g.ts("FH.set")

from gen3 import phase_f
```

```python
from kgen import *
from gen import *
import gen2

HP = 73728
ID = 208
vG1B, vG2A, vG2B, vHP, vHP8, vP0, vP1, vOWN, vRS = 210, 211, 212, 213, 214, 215, 216, 217, 218
SQA, SQB, vFE, vFL = 220, 224, 232, 233
ORDER = list(range(8)) + [16, 17] + list(range(8, 16))
NSEQ = 324

def b_reads(g, src, kp, buf):
    k = g.k
    a = ((1, vG1B), (vG2A, vG2B))[src][kp >= 16]
    return [lambda mt=mt: k.ds(f"ds_read_b128 {vr(buf+4*mt,4)}, v{a} offset:{(kp & 15)*4096 + mt*1024}", ("fb", src, kp, buf))
            for mt in range(4)]

class Stream:
    def __init__(self): self.seq = 0; self.step = 0

def gpass(g, st, src, nblk, acc, nxt, fill, hooks={}, paced={}, rate=2, name=None):
    k = g.k
    order = list(range(18)) if src == 0 else ORDER
    for pos, kp in enumerate(order):
        buf = 160 + 16 * (st.step & 1); nb = 160 + 16 * ((st.step + 1) & 1)
        pre = [hooks[pos]] if pos in hooks else []
        if pos + 1 < 18: pre += b_reads(g, src, order[pos + 1], nb)
        elif nxt is not None: pre += b_reads(g, nxt, 0, nb)
        pre += paced.get(pos, [])
        if name and OPT["fine"] and pos % OPT["fine"] == 0 and pos: g.ts(f"{name}.{pos}")
        k.wait(ds=[("fb", src, kp, buf)])
        for b in range(nblk):
            k.wait(vm=("w", st.seq))
            for mt in range(4):
                d = vr(acc + 16*b + 4*mt, 4)
                g.mfma(d, ar(4 * (st.seq % gen2.RING), 4), vr(buf + 4*mt, 4), d if pos else None)
                n = 0
                if pre: pre.pop(0)(); n += 1
                if mt == 3 and st.seq + gen2.RING < NSEQ: gen2.ring_load(g, st.seq + gen2.RING); n += 1
                while fill and n < (rate - 1 if mt == 3 else rate): fill.pop(0)(); n += 1
            st.seq += 1
        while pre: pre.pop(0)()
        st.step += 1

def relu_ops(g, acc, pis, blk8):
    k = g.k; ops = []; n = 0
    for q, pi in enumerate(pis):
        for mt in range(4):
            t = 192 + 4 * (n & 3); n += 1
            for d in range(4):
                a = acc + 16 * (2*q + (d >> 1)) + 4*mt + 2*(d & 1)
                ops.append(lambda t=t, d=d, a=a: k(f"v_cvt_pk_bf16_f32 v{t+d}, v{a}, v{a+1}"))
            for d in range(4): ops.append(lambda t=t, d=d: k(f"v_pk_max_i16 v{t+d}, v{t+d}, 0"))
            ops.append(lambda t=t, pi=pi, mt=mt: k.ds(f"ds_write_b128 v{vHP}, {vr(t,4)} offset:{pi*16384 + mt*1024}", "hp"))
    if blk8 is not None:
        for mt in range(4):
            t = 192 + 4 * (n & 3); n += 1
            for d in range(2):
                a = acc + 16*blk8 + 4*mt + 2*d
                ops.append(lambda t=t, d=d, a=a: k(f"v_cvt_pk_bf16_f32 v{t+d}, v{a}, v{a+1}"))
            for d in range(2): ops.append(lambda t=t, d=d: k(f"v_pk_max_i16 v{t+d}, v{t+d}, 0"))
            ops.append(lambda t=t, mt=mt: k.ds(f"ds_write_b64 v{vHP8}, {vr(t,2)} offset:{mt*1024}", "hp"))
    return ops

def blk_index(g, dst, rel):
    k = g.k
    if rel == 0: k(f"s_add_u32 s{dst}, s{sA2}, 8")
    else:
        k(f"s_add_u32 s{dst}, s{sJ}, {rel}"); k(f"s_and_b32 s{dst}, s{dst}, 7"); k(f"s_add_u32 s{dst}, s{dst}, s{sA2}")

def part_ops(g, acc, rels, tag):
    k = g.k; ops = []; n = 0
    for b, rel in enumerate(rels):
        ops.append(lambda rel=rel: (blk_index(g, sT0, rel), k(f"s_lshl_b32 s{sT0}, s{sT0}, 16"), k(f"s_add_u32 s{sT0}, s{sT0}, s{sA3}")))
        for pb in range(2):
            t = 192 + 4 * (n & 3); n += 1
            for q in range(4):
                a = acc + 16*b + 8*pb + 2*q
                ops.append(lambda t=t, q=q, a=a: k(f"v_cvt_pk_bf16_f32 v{t+q}, v{a}, v{a+1}"))
            for q in range(2): ops.append(lambda t=t, q=q: k(f"v_permlane16_swap_b32 v{t+q}, v{t+q+2}"))
            ops.append(lambda t=t, pb=pb: k.vm(f"buffer_store_dwordx4 {vr(t,4)}, v{vP0+pb}, {sr(WS,4)}, s{sT0} offen sc1", tag))
    return ops

def part_flags(g, rels, tag):
    k = g.k
    k.wait(vm=tag); k("s_mov_b64 exec, 1")
    for rel in rels:
        blk_index(g, sT1, rel); k(f"s_lshl_b32 s{sT1}, s{sT1}, 7"); k(f"s_add_u32 s{sT1}, s{sT1}, s{sT5}")
        k.vm(f"buffer_store_dword v14, v6, {sr(WS,4)}, s{sT1} offen sc1")
    k("s_mov_b64 exec, -1")

def h_pieces(g, sblk, dst, tag, count=True):
    k = g.k
    k(f"s_lshl_b32 s{sT0}, s{sblk}, 13"); k(f"s_add_u32 s{sT0}, s{sT0}, s{sT4}"); k(f"s_add_u32 s{sT1}, s{sT0}, 4096")
    for e in range(4):
        k.vm(f"buffer_load_dwordx2 {vr(dst+2*e,2)}, v5, {sr(WS,4)}, s{sT0 if e < 2 else sT1} offen offset:{(e & 1)*512} sc1", tag, count)

def part_base(g, sblk):
    k = g.k
    k(f"""
    s_add_u32 s{sT2}, s{sA2}, s{sblk}
    s_lshl_b32 s{sT2}, s{sT2}, 16
    s_lshl_b32 s{sT1}, s{sWV}, 11
    s_add_u32 s{sT2}, s{sT2}, s{sT1}
    s_add_u32 s{sT2}, s{sT2}, {PB}
    """)

def part_loads(g, qs, regs, tag, count=True):
    k = g.k
    for q, rg in zip(qs, regs):
        k(f"s_add_u32 s{sT0}, s{sJ}, {q}"); k(f"s_and_b32 s{sT0}, s{sT0}, 7"); k(f"s_lshl_b32 s{sT0}, s{sT0}, 13")
        k(f"s_add_u32 s{sT0}, s{sT0}, s{sT2}")
        for c in range(2):
            k.vm(f"buffer_load_dwordx4 {rg(4*c,4)}, v1, {sr(WS,4)}, s{sT0} offen offset:{1024*c} sc1", (tag, q, c), count)

def part_sum(g, acc, qs, regs, tag, first):
    k = g.k
    for n, (q, rg) in enumerate(zip(qs, regs)):
        for c in range(2):
            k.wait(vm=(tag, q, c))
            for h in range(2):
                d = vr(acc + 8*c + 4*h, 4); g.mfma(d, vr(ID, 2), rg(4*c + 2*h, 2), None if first and n == 0 else d, k16=True)

def out_store(g, tmp, sblk, r):
    k = g.k
    if r == 1: k(f"s_lshl_b32 s{sT0}, s{sblk}, 7")
    k.vm(f"buffer_store_dwordx4 {vr(tmp+2*(r-1),4)}, v7, {sr(OS,4)}, s{sT0} offen offset:{8*(r-1)}")

def finish(g, acc, res, tmp, sblk):
    k = g.k
    for c in range(2):
        for r in range(4): k(f"v_permlane16_swap_b32 v{acc+8*c+r}, v{acc+4+8*c+r}")
    for e in range(4):
        for r in range(4): k(f"v_fma_f32 v{acc+4*e+r}, v{acc+4*e+r}, v{vRS}, v{res+4*e+r}")
    for r in range(4):
        for c in range(2): k(f"v_cvt_pk_bf16_f32 v{tmp+2*r+c}, v{acc+8*c+r}, v{acc+4+8*c+r}")
        if r & 1 and sblk is not None: out_store(g, tmp, sblk, r)

def stat_ops(g):
    k = g.k; a = SQA
    txt = [f"v_and_b32 v{a+4}, 3, v0", f"v_lshrrev_b32 v{a+5}, 2, v2"]
    for r in range(1, 4):
        txt += [f"v_cmp_eq_u32 vcc, {r}, v{a+4}", f"v_cndmask_b32 v{a}, v{a}, v{a+r}, vcc"]
    txt += [f"v_cmp_eq_u32 vcc, v{a+5}, v3", f"v_cndmask_b32 v{a}, 0, v{a}, vcc",
            f"v_mov_b32 v{a+1}, v{a}", f"v_permlane16_swap_b32 v{a}, v{a+1}", f"v_add_f32 v{a}, v{a}, v{a+1}",
            f"v_mov_b32 v{a+1}, v{a}", f"v_permlane32_swap_b32 v{a}, v{a+1}", f"v_add_f32 v{a}, v{a}, v{a+1}",
            f"v_fma_f32 v{a}, v{a}, s{sC1}, v15", f"v_rsq_f32 v{vRS}, v{a}"]
    return [lambda t=t: k(t) for t in txt]

def claim_ops(g):
    k = g.k; ops = []
    for rel in range(8):
        for pb in range(2):
            def f(rel=rel, pb=pb):
                blk_index(g, sT2, rel); k(f"s_lshl_b32 s{sT2}, s{sT2}, 16"); k(f"s_add_u32 s{sT2}, s{sT2}, s{sA3}")
                k.vm(f"buffer_store_dwordx4 v[228:231], v{vP0+pb}, {sr(WS,4)}, s{sT2} offen sc1", "claim")
            ops.append(f)
    return ops

def phase_f(g):
    k = g.k
    k(f"""
    s_lshl_b32 s{sT0}, s{sRF}, 7
    s_add_u32 s{sT0}, s{sT0}, {FH}
    s_mul_i32 s{sT4}, s{sRF}, 73728
    s_lshl_b32 s{sT1}, s{sWV}, 10
    s_add_u32 s{sT4}, s{sT4}, s{sT1}
    s_add_u32 s{sT4}, s{sT4}, {HB}
    v_and_b32 v56, 31, v0
    v_lshlrev_b32 v56, 2, v56
    v_lshlrev_b32 v57, 2, v3
    v_sub_u32 v57, v2, v57
    v_and_b32 v58, 1, v57
    v_lshlrev_b32 v58, 4, v58
    v_mov_b32 v59, 0x3f80
    v_lshlrev_b32 v58, v58, v59
    v_lshrrev_b32 v57, 1, v57
    v_cmp_eq_u32 vcc, 0, v57
    v_cndmask_b32 v{ID}, 0, v58, vcc
    v_cmp_eq_u32 vcc, 1, v57
    v_cndmask_b32 v{ID+1}, 0, v58, vcc
    v_add_u32 v{vG1B}, 0x10000, v1
    v_add_u32 v{vG2A}, {HP}, v1
    v_add_u32 v{vG2B}, {HP + 65536}, v1
    s_lshl_b32 s{sT2}, s{sWV}, 12
    v_add_u32 v{vHP}, s{sT2}, v{vG2A}
    s_lshr_b32 s{sT2}, s{sWV}, 1
    s_lshl_b32 s{sT3}, s{sT2}, 12
    s_and_b32 s{sA3}, s{sWV}, 1
    s_lshl_b32 s{sT5}, s{sA3}, 3
    s_add_u32 s{sT3}, s{sT3}, s{sT5}
    v_add_u32 v{vHP8}, s{sT3}, v{vG2B}
    s_lshl_b32 s{sT2}, s{sT2}, 10
    s_lshl_b32 s{sA3}, s{sA3}, 8
    s_add_u32 s{sA3}, s{sA3}, s{sT2}
    s_lshl_b32 s{sT2}, s{sJ}, 13
    s_add_u32 s{sA3}, s{sA3}, s{sT2}
    s_add_u32 s{sA3}, s{sA3}, {PB}
    s_mul_i32 s{sA2}, s{sRF}, 9
    s_lshl_b32 s{sT5}, s{sJ}, 2
    s_add_u32 s{sT5}, s{sT5}, s{sWV}
    s_lshl_b32 s{sT5}, s{sT5}, 2
    s_add_u32 s{sT5}, s{sT5}, {FP}
    v_and_b32 v57, 1, v3
    v_lshrrev_b32 v58, 1, v3
    v_lshlrev_b32 v58, 9, v58
    v_lshl_add_u32 v58, v57, 11, v58
    v_lshl_add_u32 v{vP0}, v2, 4, v58
    v_add_u32 v{vP1}, 0x1000, v{vP0}
    v_add_u32 v8, s{sT1}, v1
    v_add_u32 v9, 0x10000, v8
    v_add_u32 v{vOWN}, {AUX}, v8
    s_lshl_b32 s{sT2}, s{sRF}, 6
    s_lshl_b32 s{sT3}, s{sWV}, 4
    s_add_u32 s{sT2}, s{sT2}, s{sT3}
    v_add_u32 v7, s{sT2}, v2
    s_movk_i32 s{sT2}, 1152
    v_mul_u32_u24 v7, s{sT2}, v7
    v_lshl_add_u32 v7, v3, 5, v7
    """)
    for r in range(4): k(f"v_mov_b32 v{92+r}, {hex(ONE2)}")
    g.poll1(56, f"s{sT0}", 60)
    g.ts("FH.seen")
    k(f"s_mov_b32 s{sT0}, s{sT4}")
    for kk in range(18):
        k.vm(f"buffer_load_dwordx4 {vr(16+4*kk,4)}, v1, {sr(WS,4)}, s{sT0} offen sc1", ("h", kk))
        if kk < 17: k(f"s_add_u32 s{sT0}, s{sT0}, 4096")
    for seq in range(gen2.NP1 + gen2.NP2A, gen2.RING): gen2.ring_load(g, seq)
    for kk in range(18):
        k.wait(vm=("h", kk)); g.mfma("v[88:91]", "v[92:95]", vr(16 + 4*kk, 4), "v[88:91]" if kk else None)
    g.ts("H.in")
    for r in range(4): k(f"v_mul_f32 v{88+r}, s{sC0}, v{88+r}")
    def cvt(kk):
        t = 96 + 8 * (kk % 3); o = 128 + 4 * (kk & 3)
        for d in range(4): k(f"v_cvt_pk_bf16_f32 v{o+d}, v{t+2*d}, v{t+2*d+1}")
        k.ds(f"ds_write_b128 v{8 if kk < 16 else 9}, {vr(o,4)} offset:{(kk & 15)*4096}")
    def gram(kk):
        o = vr(128 + 4 * (kk & 3), 4); g.mfma(vr(SQA, 4), o, o, vr(SQA, 4) if kk else None)
    for kk in range(18):
        t = 96 + 8 * (kk % 3)
        for h in range(2): g.mfma(vr(t + 4*h, 4), vr(ID, 2), vr(16 + 4*kk + 2*h, 2), "v[88:91]", k16=True)
        if kk >= 2: gram(kk - 2)
        if kk >= 1: cvt(kk - 1)
    cvt(17); gram(16); gram(17)
    k.wait(ds="all"); k("s_barrier")
    g.ts("F.start")
    st = Stream()
    for f in b_reads(g, 0, 0, 160): f()
    bar = lambda: (k.wait(ds=["hp"]), k("s_barrier"))
    def late_load():
        k(f"s_lshl_b32 s{sT0}, s{sJ}, 9"); k(f"s_add_u32 s{sT0}, s{sT0}, {FH}"); k("v_lshlrev_b32 v98, 3, v0")
        k.vm(f"buffer_load_dwordx2 v[96:97], v98, {sr(WS,4)}, s{sT0} offen sc1", "late")
    def late_check():
        k.wait(vm="late"); g.check(98, f"s{sT0}", 96, 2)
    sops = stat_ops(g); cl = claim_ops(g) if OPT["claim"] else []
    pa = {4: sops[:9], 5: sops[9:]}; pb_ = {}
    def w_touch(h):
        n0 = OPT["wpf"]; per = (NSEQ - n0) * 8 // 16
        k(f"s_lshr_b32 s{sT2}, s{sI}, 1"); k(f"s_mul_i32 s{sT2}, s{sT2}, {per*128}")
        k(f"s_add_u32 s{sT2}, s{sT2}, {n0*1024 + h*8192}"); k(f"s_add_u32 s{sT2}, s{sT2}, s{sA1}")
        k("v_lshlrev_b32 v228, 7, v0")
        m = min(per - 64*h, 64)
        if m < 64: g.setexec((1 << m) - 1)
        k.vm(f"buffer_load_dword v{229+h}, v228, {sr(WS,4)}, s{sT2} offen sc1", "wt")
        if m < 64: g.setexec(-1)
    if OPT["wpf"]:
        for h in range(((NSEQ - OPT["wpf"]) * 8 // 16 + 63) // 64): pa[10 + h] = [lambda h=h: w_touch(h)]
    for n, f in enumerate(cl):
        pos = OPT["c0"] + n * OPT["claim"]
        (pa if pos < 18 else pb_).setdefault(pos % 18, []).append(f); assert pos < 36
    gpass(g, st, 0, 5, 16, 0, [], {2: late_load, 9: late_check} if OPT['rsq'] >= 0 else {}, pa)
    g.ts("G1a")
    fill = relu_ops(g, 16, (0, 1), 4)
    gpass(g, st, 0, 4, 96, 1, fill, {17: bar}, pb_); assert not fill
    g.ts("G1b")
    fill = relu_ops(g, 96, (2, 3), None)
    def chk9():
        assert not fill
        bar()
    gpass(g, st, 1, 3, 16, 1, fill, {9: chk9})
    g.ts("P1")
    def flag_addr():
        k(f"""
        v_and_b32 v{vFL}, 31, v0
        v_lshrrev_b32 v48, 2, v{vFL}
        v_add_u32 v49, 4, v{vFL}
        v_and_b32 v49, 31, v49
        v_cmp_eq_u32 vcc, s{sJ}, v48
        v_cndmask_b32 v{vFL}, v{vFL}, v49, vcc
        v_lshlrev_b32 v{vFL}, 2, v{vFL}
        s_add_u32 s{sT0}, s{sJ}, 7
        v_bfe_u32 v48, v0, 2, 1
        v_sub_u32 v48, s{sT0}, v48
        v_and_b32 v48, 7, v48
        v_and_b32 v49, 3, v0
        v_lshl_add_u32 v48, v48, 2, v49
        s_lshl_b32 s{sT0}, s{sJ}, 5
        v_add_u32 v48, s{sT0}, v48
        v_add_u32 v49, 256, v0
        v_cmp_gt_u32 vcc, 32, v0
        v_cndmask_b32 v{vFE}, v48, v49, vcc
        v_lshlrev_b32 v{vFE}, 2, v{vFE}
        s_lshl_b32 s{sXB}, s{sA2}, 7
        s_add_u32 s{sXB}, s{sXB}, {FP}
        s_lshl_b32 s{sXB+1}, s{sJ}, 7
        s_add_u32 s{sXB+1}, s{sXB+1}, s{sXB}
        s_movk_i32 s{sXB+2}, 8
        """)
    fill = part_ops(g, 16, (0, 1, 2), "p1")
    gpass(g, st, 1, 3, 96, 1, fill, {12: flag_addr}, name="p2"); assert not fill
    g.ts("P2")
    fill = part_ops(g, 96, (3, 4, 5), "p2")
    gpass(g, st, 1, 2, 16, 1, fill, {OPT["f1"]: lambda: part_flags(g, (0, 1, 2), "p1"),
                                     14: lambda: h_pieces(g, sJ, 144, "hp")}, name="p3"); assert not fill
    g.ts("P3")
    V = lambda b: (lambda o, n: vr(b + o, n))
    A = lambda b: (lambda o, n: ar(b + o, n))
    R8 = [A(96 + 8*n) for n in range(8)]
    def owner(body):
        L = k.label("n8")
        k(f"s_lshl_b32 s{sT0}, s{sWV}, 1"); k(f"s_cmp_lg_u32 s{sT0}, s{sJ}"); k(f"s_cbranch_scc1 {L}")
        body(); k(f"{L}:")
    fill = part_ops(g, 16, (6, 7), "p3")
    def early_load():
        assert not fill
        k.vm(f"buffer_load_dword v60, v{vFE}, {sr(WS,4)}, s{sXB} offen sc1", "fe")
    def publish():
        part_flags(g, (3, 4, 5, 6, 7), "p3")
        g.ts("P4f")
        k.wait(vm="fe"); g.check(vFE, f"s{sXB}", 60, 1)
        part_base(g, sJ); part_loads(g, (7, 6), (V(48), V(56)), "pl")
        owner(lambda: (h_pieces(g, sXB + 2, 152, "h8", False), part_base(g, sXB + 2), part_loads(g, range(8), R8, "p8", False)))
    gpass(g, st, 1, 1, 96, None, fill, {OPT["f3"] - 1: early_load, OPT["f3"]: publish}, rate=OPT["r4"], name="p4")
    g.ts("P4")
    for mt in range(4): k.ds(f"ds_write_b128 v{vOWN}, {vr(96+4*mt,4)} offset:{mt*4096}")
    for e in range(4): g.mfma(vr(32 + 4*e, 4), vr(ID, 2), vr(144 + 2*e, 2), k16=True)
    k(f"s_mul_i32 s{sT0}, s{sWV}, 3072"); k(f"v_add_u32 v{vOWN}, s{sT0}, v{vOWN}")
    k.wait(ds="all"); k("s_barrier")
    for e in range(4): k.ds(f"ds_read_b128 {vr(160+4*e,4)}, v{vOWN} offset:{e*1024}", "own")
    part_sum(g, 16, (7, 6), (V(48), V(56)), "pl", True)
    k.wait(ds=["own"])
    for n in range(16): k(f"v_fma_f32 v{32+n}, v{160+n}, v{vRS}, v{32+n}")
    def block8():
        sv = list(k.vq)
        k.wait(vm="all")
        for e in range(4): g.mfma(vr(176 + 4*e, 4), vr(ID, 2), vr(152 + 2*e, 2), k16=True)
        part_sum(g, 112, range(8), R8, "p8", True)
        finish(g, 112, 176, 128, None)
        k.vq = sv
    owner(block8)
    part_base(g, sJ)
    g.ts("T.poll")
    g.poll(vFL, f"s{sXB+1}", 60)
    g.ts("T.seen")
    RL = [V(64 + 8*n) for n in range(5)]
    part_loads(g, (5, 4, 3, 2, 1), RL, "pl")
    part_sum(g, 16, (5, 4, 3, 2, 1), RL, "pl", False)
    finish(g, 16, 32, 140, sJ)
    owner(lambda: [out_store(g, 128, sXB + 2, r) for r in (1, 3)])
```

```python
import sys
from kgen import *

NAME = "sequential_preLN__linear_attn_block__dense_activation_relu__prompt"
FK, FW, FO, FH, FP = 0, 4096, 5120, 9216, 13312
ZERO_BYTES = 53248
KVP, OB, HB, WOT, WT, PB, PROF = 0x10000, 0x200000, 0x480000, 0x700000, 0x800000, 0x1300000, 0x3000000
WS_SIZE = 0x4000000
AUX = 147456
ST, CS, KVX = AUX + 12288, AUX + 13312, AUX + 13312
SPIN = 20000
WS, XS, QS, W1S, W2S, T2S, DS, OS = 4, 8, 12, 16, 20, 24, 28, 32
sWO = 36
sX, sI, sWV, sR, sP, sDL = 38, 39, 40, 41, 42, 43
sT0, sT1, sT2, sT3, sT4, sT5 = 44, 45, 46, 47, 48, 49
sV3, sDK, sCNT, sV2 = 50, 51, 52, 53
sRL = 56
sDM = 72
sPE, sPO = 74, 75
sMK = 76
sC0, sC1, sC2, sC3 = 78, 79, 80, 81
sTS = 82
sBR, sBC = 84, 85
sA0, sA1, sA2, sA3 = 86, 87, 88, 89
sXB = 90
sJ, sRF = 94, 95
T3S, sXD = 96, 100
sPH, sWK = 54, 55
OPT = dict(touch=1, fmap=1, ptouch=0, rot=1, pre=3, rsq=2, np1=8, np2=32, f1=6, f3=10, r4=5, claim=0, c0=1, fine=0, cpf=1, wpf=0, kl1=1, kl2=3, nt=1, rdy=3, nwo=8)
ONE2 = 0x3F803F80
def f2u(x):
    import struct
    return struct.unpack("<I", struct.pack("<f", x))[0]

class G:
    def __init__(self, stop=None, prof=False):
        self.k = Kern(); self.stop = stop; self.prof = prof; self.nts = 0; self.tsn = []; self.only = None; self.dbgwg = None
    def ts(self, name):
        if not self.prof: return
        if self.only is not None and name not in self.only: return
        k = self.k
        k(f"s_memtime s[{sTS}:{sTS+1}]"); k("s_waitcnt lgkmcnt(0)"); k.lq = []
        k(f"v_writelane_b32 v255, s{sTS}, {self.nts}")
        self.tsn.append(name); self.nts += 1
    def rt(self, lane):
        k = self.k
        k(f"s_memrealtime s[{sTS}:{sTS+1}]"); k("s_waitcnt lgkmcnt(0)"); k.lq = []
        k(f"v_writelane_b32 v255, s{sTS}, {lane}")
    def mfma(self, d, a, b, c=None, k16=False):
        op = "v_mfma_f32_16x16x16_bf16" if k16 else "v_mfma_f32_16x16x32_bf16"
        cc = "0" if c is None else c
        self.k(f"{op} {d}, {a}, {b}, {cc}")
    def setexec(self, m):
        k = self.k
        if m == -1: k("s_mov_b64 exec, -1")
        else:
            k(f"s_mov_b32 exec_lo, {hex(m & 0xffffffff)}"); k(f"s_mov_b32 exec_hi, {hex(m >> 32)}")
    def poll(self, vaddr, soff, vtmp, n=1, srd=WS):
        k = self.k; L = k.label("poll"); D = k.label("pdone")
        k(f"s_mov_b32 s{sCNT}, 0"); k(f"{L}:")
        sfx = {1: "dword", 2: "dwordx2", 4: "dwordx4"}[n]
        k(f"buffer_load_{sfx} {vr(vtmp, n)}, v{vaddr}, {sr(srd,4)}, {soff} offen sc1")
        k("s_waitcnt vmcnt(0)"); k.vq = []
        if n == 4:
            k(f"v_and_b32 v{vtmp}, v{vtmp}, v{vtmp+1}"); k(f"v_and_b32 v{vtmp+2}, v{vtmp+2}, v{vtmp+3}")
            k(f"v_and_b32 v{vtmp}, v{vtmp}, v{vtmp+2}")
        if n == 2: k(f"v_and_b32 v{vtmp}, v{vtmp}, v{vtmp+1}")
        k(f"v_cmp_ne_u32 vcc, 1, v{vtmp}")
        k(f"s_cbranch_vccz {D}")
        k(f"s_add_u32 s{sCNT}, s{sCNT}, 1"); k(f"s_cmp_lt_u32 s{sCNT}, {SPIN}"); k(f"s_cbranch_scc1 {L}")
        k(f"{D}:")
    def poll1(self, vaddr, soff, vtmp, wave=0):
        k = self.k; L = k.label("p1"); sv = list(k.vq)
        k(f"s_cmp_lg_u32 s{sWV}, {wave}"); k(f"s_cbranch_scc1 {L}")
        self.poll(vaddr, soff, vtmp)
        k(f"{L}:"); k("s_barrier"); k.vq = sv
    def check(self, vaddr, soff, vtmp, n, srd=WS):
        k = self.k; L = k.label("ok")
        if n == 4:
            k(f"v_and_b32 v{vtmp}, v{vtmp}, v{vtmp+1}"); k(f"v_and_b32 v{vtmp+2}, v{vtmp+2}, v{vtmp+3}")
            k(f"v_and_b32 v{vtmp}, v{vtmp}, v{vtmp+2}")
        if n == 2: k(f"v_and_b32 v{vtmp}, v{vtmp}, v{vtmp+1}")
        k(f"v_cmp_ne_u32 vcc, 1, v{vtmp}"); k(f"s_cbranch_vccz {L}")
        sv = list(k.vq); self.poll(vaddr, soff, vtmp, n=n, srd=srd); k.vq = sv
        k(f"{L}:")
    def flag(self, soff, vone, vzero, srd=WS):
        k = self.k
        k("s_mov_b64 exec, 1")
        k.vm(f"buffer_store_dword v{vone}, v{vzero}, {sr(srd,4)}, {soff} offen sc1")
        k("s_mov_b64 exec, -1")

    def prologue(self):
        k = self.k
        k(f"""
        s_cmp_ge_u32 s2, 256
        s_cbranch_scc1 L_end
        s_load_dwordx2 s[{XS}:{XS+1}], s[0:1], 0
        s_load_dwordx2 s[{QS}:{QS+1}], s[0:1], 8
        s_load_dwordx2 s[{WS}:{WS+1}], s[0:1], 64
        s_load_dwordx2 s[{sWO}:{sWO+1}], s[0:1], 16
        s_load_dwordx2 s[{W1S}:{W1S+1}], s[0:1], 32
        s_load_dwordx2 s[{W2S}:{W2S+1}], s[0:1], 40
        s_load_dwordx2 s[{OS}:{OS+1}], s[0:1], 48
        s_load_dwordx2 s[{DS}:{DS+1}], s[0:1], 56
        v_lshrrev_b32 v1, 6, v0
        v_lshlrev_b32 v15, 4, v0
        v_and_b32 v0, 63, v0
        v_readfirstlane_b32 s{sWV}, v1
        v_lshlrev_b32 v1, 4, v0
        v_and_b32 v2, 15, v0
        v_lshrrev_b32 v3, 4, v0
        s_and_b32 s{sX}, s2, 7
        s_lshr_b32 s{sI}, s2, 3
        s_and_b32 s{sT0}, s{sX}, 1
        s_lshl_b32 s{sT0}, s{sT0}, 3
        s_and_b32 s{sT1}, s{sI}, 7
        s_add_u32 s{sR}, s{sT0}, s{sT1}
        s_lshr_b32 s{sT0}, s{sX}, 1
        s_lshl_b32 s{sT0}, s{sT0}, 2
        s_lshr_b32 s{sT1}, s{sI}, 3
        s_add_u32 s{sP}, s{sT0}, s{sT1}
        s_and_b32 s{sDL}, s{sP}, 1
        s_lshl_b32 s{sDL}, s{sDL}, 3
        """)
        if OPT["cpf"]: self.code_touch()
        for srd, size in ((WS, WS_SIZE), (XS, 2359296), (QS, 1990656), (W1S, 5308416), (W2S, 5308416), (DS, 256), (OS, 2359296)):
            k(f"s_mov_b32 s{srd+2}, {size}"); k(f"s_mov_b32 s{srd+3}, 0x20000")
        k(f"""
        s_lshl_b32 s{sT0}, s{sR}, 7
        s_lshl_b32 s{sT1}, s{sWV}, 5
        s_add_u32 s{sT0}, s{sT0}, s{sT1}
        s_mul_i32 s{sXB}, s{sT0}, 1152
        s_lshr_b32 s{sT1}, s{sI}, 3
        s_lshl_b32 s{sT1}, s{sT1}, 1
        s_and_b32 s{sPH}, s{sI}, 7
        s_add_u32 s{sPH}, s{sPH}, s{sT1}
        s_sub_u32 s{sT1}, s{sPH}, 9
        s_cmp_ge_u32 s{sPH}, 9
        s_cselect_b32 s{sPH}, s{sT1}, s{sPH}
        s_mul_i32 s{sPH}, s{sPH}, {OPT["rot"]}
        s_mul_i32 s{sWK}, s{sPH}, 221184
        s_lshl_b32 s{sT1}, s{sPH}, 7
        s_add_u32 s{sXB}, s{sXB}, s{sT1}
        s_add_u32 s{sXB+1}, s{sXB}, 9216
        s_add_u32 s{sXB+2}, s{sXB}, {2*9216}
        s_add_u32 s{sXB+3}, s{sXB}, {3*9216}
        v_lshrrev_b32 v16, 3, v0
        v_and_b32 v17, 6, v16
        v_xor_b32 v17, v17, v0
        v_and_b32 v17, 7, v17
        s_movk_i32 s{sT1}, 1152
        v_mul_u32_u24 v12, s{sT1}, v16
        v_lshl_add_u32 v12, v17, 4, v12
        """)
        k(f"""
        s_and_b32 s{sT0}, s{sWV}, 1
        s_lshl_b32 s{sT0}, s{sT0}, 3
        v_lshl_add_u32 v16, v3, 1, s{sT0}
        v_sub_u32 v16, v2, v16
        v_and_b32 v16, 15, v16
        v_cmp_ne_u32 s[{sDM}:{sDM+1}], 15, v16
        v_mul_u32_u24 v17, 52, v16
        v_lshrrev_b32 v17, 8, v17
        s_movk_i32 s{sT1}, 1072
        v_mul_u32_u24 v17, s{sT1}, v17
        v_lshl_add_u32 v17, v16, 4, v17
        s_movk_i32 s{sT1}, 3456
        v_mul_u32_u24 v13, s{sT1}, v3
        s_mul_i32 s{sT0}, s{sWV}, 27648
        s_mul_i32 s{sT1}, s{sP}, 72
        s_add_u32 s{sT0}, s{sT0}, s{sT1}
        s_sub_u32 s{sT0}, s{sT0}, s{sDL}
        v_add3_u32 v13, v13, v17, s{sT0}
        s_lshl_b32 s{sDK}, s{sWV}, 11
        s_waitcnt lgkmcnt(0)
        """)
        if self.prof:
            k("v_mov_b32 v255, 0"); self.rt(62)
        self.ts("start")
        L = k.label("nz")
        k(f"s_cmp_lg_u32 s2, 0"); k(f"s_cbranch_scc1 {L}")
        for r in range(4): k(f"v_mov_b32 v{20+r}, 0")
        for n in range(ZERO_BYTES // 4096):
            k(f"s_movk_i32 s{sT0}, {n*4096}" if n * 4096 < 32768 else f"s_mov_b32 s{sT0}, {n*4096}")
            k(f"buffer_store_dwordx4 v[20:23], v15, {sr(WS,4)}, s{sT0} offen sc1")
        k(f"{L}:")

    def code_touch(self):
        k = self.k
        k(f"s_getpc_b64 s[{sT2}:{sT3}]"); k("L_pc:")
        k(f"""
        s_lshl_b32 s{sT0}, s{sI}, 2
        s_add_u32 s{sT0}, s{sT0}, s{sWV}
        s_and_b32 s{sT0}, s{sT0}, 7
        s_lshl_b32 s{sT0}, s{sT0}, 13
        v_lshl_add_u32 v146, v0, 7, s{sT0}
        v_min_u32 v146, L_end-L_pc, v146
        v_mov_b32 v147, s{sT3}
        v_add_co_u32 v146, vcc, s{sT2}, v146
        v_addc_co_u32 v147, vcc, 0, v147, vcc
        """)
        k.vm("global_load_dword v146, v[146:147], off", "code")

    def x_stage(self, s):
        k = self.k
        if s < 8:
            k(f"s_cmp_eq_u32 s{sPH}, 8"); k(f"s_cselect_b32 s{sXD}, -8, 1")
            k(f"s_cselect_b32 s{sPH}, -1, s{sPH}"); k(f"s_add_u32 s{sPH}, s{sPH}, 1")
            k(f"s_lshl_b32 s{sXD}, s{sXD}, 7")
        for j in range(4):
            k(f"s_add_u32 m0, s{sDK}, {(2*s + 2 + (j >> 1))*8192 + (j & 1)*1024}")
            k.vm(f"buffer_load_dwordx4 v12, {sr(XS,4)}, s{sXB+j} offen lds", ("x", s))
            if s < 8: k(f"s_add_u32 s{sXB+j}, s{sXB+j}, s{sXD}")
    def w_half(self, kk):
        k = self.k
        k(f"s_mov_b64 exec, s[{sDM}:{sDM+1}]")
        k(f"s_add_u32 m0, s{sDK}, {kk*8192}")
        k(f"s_add_u32 s{sXD}, s{sWK}, {13824-1024}")
        k.vm(f"buffer_load_dwordx4 v13, {sr(QS,4)}, s{sWK} offen lds", ("st", kk >> 1))
        k.vm(f"buffer_load_dwordx4 v13, {sr(QS,4)}, s{sXD} offen offset:1024 lds", ("st", kk >> 1))
        k(f"s_add_u32 s{sWK}, s{sWK}, 110592")
        if kk & 1: k(f"s_cmp_eq_u32 s{sWK}, {18*110592}"); k(f"s_cselect_b32 s{sWK}, 0, s{sWK}")
        k("s_mov_b64 exec, -1")
    def w_stage(self, s):
        self.w_half(2*s); self.w_half(2*s + 1)
    def w_touch(self):
        k = self.k
        k(f"""
        s_lshl_b32 s{sT0}, s{sI}, 2
        s_add_u32 s{sT0}, s{sT0}, s{sWV}
        s_mul_i32 s{sT0}, s{sT0}, 81
        s_lshr_b32 s{sT1}, s{sX}, 1
        s_lshl_b32 s{sT1}, s{sT1}, 8
        s_movk_i32 s{sT2}, 1152
        s_mov_b32 s{sT3}, 43691
        """)
        for h in range(2):
            k(f"""
            v_add_u32 v16, s{sT0}, v0
            v_mul_u32_u24 v17, s{sT3}, v16
            v_lshrrev_b32 v17, 18, v17
            v_mul_u32_u24 v18, 6, v17
            v_sub_u32 v18, v16, v18
            v_mul_u32_u24 v17, s{sT2}, v17
            v_lshl_add_u32 v17, v18, 6, v17
            """)
            if h: k("s_mov_b64 exec, 0x1ffff")
            k.vm(f"buffer_load_dword v{144+h}, v17, {sr(QS,4)}, s{sT1} offen", "touch")
            if h: k("s_mov_b64 exec, -1")
            else: k(f"s_add_u32 s{sT0}, s{sT0}, 64")
    def x_read(self, s):
        k = self.k
        if s in (4, 8):
            for a in (140, 141): k(f"v_add_u32 v{a}, 0x10000, v{a}")
        for h in range(2):
            for mt in range(2):
                k.ds(f"ds_read_b128 {ar(((2*s+h)*2+mt)*4,4)}, v{140+h} offset:{(s & 3)*16384 + mt*8192}", ("xr", s))
        if s < 8: self.ones()
    def ones(self):
        k = self.k
        k("s_mov_b64 exec, 0xffff")
        k.ds("ds_write_b128 v142, v[124:127]")
        k("s_mov_b64 exec, -1")
        k("v_add_u32 v142, 0x4000, v142")

    def setup_a(self):
        k = self.k
        for r in range(4): k(f"v_mov_b32 v{124+r}, {hex(ONE2)}")
        k(f"""
        s_and_b32 s{sT0}, s{sWV}, 1
        s_lshl_b32 s{sT0}, s{sT0}, 3
        s_add_u32 s{sT0}, s{sT0}, 15
        v_and_b32 v16, 3, v0
        v_lshl_add_u32 v16, v16, 1, s{sT0}
        v_and_b32 v16, 15, v16
        v_and_b32 v17, 7, v0
        v_lshlrev_b32 v18, 8, v17
        v_lshl_add_u32 v16, v16, 4, v18
        v_bfe_u32 v18, v0, 3, 1
        v_lshl_add_u32 v16, v18, 13, v16
        v_add_u32 v142, s{sDK}, v16
        v_and_b32 v16, 6, v0
        v_xor_b32 v16, v16, v3
        v_lshlrev_b32 v16, 4, v16
        v_lshl_add_u32 v16, v17, 7, v16
        v_lshl_add_u32 v143, v18, 10, v16
        s_add_u32 s{sT0}, s{sDK}, 16384
        v_add_u32 v140, s{sT0}, v143
        v_xor_b32 v141, 64, v140
        """)
        self.ones()
    def setup_b(self):
        k = self.k
        k(f"""
        v_lshrrev_b32 v16, 2, v2
        v_and_b32 v17, 3, v0
        v_and_b32 v18, 1, v3
        v_lshl_add_u32 v18, v18, 2, v16
        v_lshlrev_b32 v18, 5, v18
        v_add_u32 v18, s{sDL}, v18
        v_lshl_add_u32 v19, v3, 3, v16
        v_lshlrev_b32 v19, 8, v19
        v_lshl_add_u32 v20, v17, 3, v18
        s_movk_i32 s{sT0}, 255
        """)
        for reg, off in ((4, 80), (5, 120), (6, 160), (7, 200), (9, 0), (10, 40)):
            k(f"v_add_u32 v21, {off}, v20"); k(f"v_and_or_b32 v{reg}, v21, s{sT0}, v19")
        k(f"v_add_u32 v21, 32, v18"); k(f"v_and_or_b32 v11, v21, s{sT0}, v19")
        k(f"""
        v_mov_b32 v21, 112
        v_mov_b32 v22, 192
        v_cmp_eq_u32 vcc, 3, v17
        v_cndmask_b32 v21, v21, v22, vcc
        s_sub_u32 s{sT1}, 248, s{sDL}
        v_mov_b32 v22, s{sT1}
        v_cmp_eq_u32 vcc, 0, v17
        v_cndmask_b32 v21, v21, v22, vcc
        v_add_u32 v21, v21, v18
        v_and_or_b32 v8, v21, s{sT0}, v19
        """)
    def setup_c(self):
        k = self.k
        for reg, bits, one in ((248, 0x111, 1), (249, 0x3000, 0), (250, 0x222, 1), (251, 0xC000, 0),
                               (252, 0x30, 0), (253, 0xC00, 0), (254, 0x300, 0), (131, 0xC0, 0)):
            k(f"s_mov_b32 s{sT1}, {hex(bits)}"); k(f"v_bfe_i32 v{reg}, s{sT1}, v2, 1")
            if one: k(f"v_and_b32 v{reg}, {hex(ONE2)}, v{reg}")
        k(f"s_mov_b32 s{sPE}, 0x05040100"); k(f"s_mov_b32 s{sPO}, 0x07060302")

    def lane_off(self, t, c1, c2):
        k = self.k
        k(f"""
        v_and_b32 v16, 1, v3
        v_lshrrev_b32 v17, 1, v3
        v_mul_lo_u32 v16, v16, s{c1}
        v_mul_lo_u32 v17, v17, s{c2}
        v_lshlrev_b32 v18, 3, v2
        v_add3_u32 v{128+t}, v16, v17, v18
        """)
    def p_w1(self, t, n):
        k = self.k; b = sRL + 5*t; A, B, C, D = sT0, sT1, sT2, sT3
        k(f"""
        s_mul_i32 s{A}, s{n}, 205
        s_lshr_b32 s{A}, s{A}, 10
        s_mul_i32 s{B}, s{A}, 5
        s_sub_u32 s{B}, s{n}, s{B}
        s_cmp_eq_u32 s{B}, 4
        s_cselect_b32 s{B}, 8, s{B}
        s_sub_u32 s{C}, s{n}, 90
        s_and_b32 s{D}, s{C}, 3
        s_add_u32 s{D}, s{D}, 4
        s_lshr_b32 s{C}, s{C}, 2
        s_cmp_lt_u32 s{n}, 90
        s_cselect_b32 s{A}, s{A}, s{C}
        s_cselect_b32 s{B}, s{B}, s{D}
        s_lshr_b32 s{C}, s{A}, 1
        s_lshl_b32 s{C}, s{C}, 6
        s_and_b32 s{D}, s{A}, 1
        s_lshl_b32 s{D}, s{D}, 1
        s_add_u32 s{C}, s{C}, s{D}
        s_mul_i32 s{C}, s{C}, 9216
        s_lshl_b32 s{B}, s{B}, 7
        s_add_u32 s{C}, s{C}, s{B}
        s_mul_i32 s{D}, s{sX}, 1152
        s_add_u32 s{b}, s{C}, s{D}
        s_mov_b32 s{b+1}, {4*9216}
        s_mov_b32 s{b+2}, {16*9216 - 12*9216}
        s_mul_i32 s{C}, s{sX}, {4*324*1024}
        s_lshl_b32 s{D}, s{n}, 10
        s_add_u32 s{C}, s{C}, s{D}
        s_add_u32 s{b+3}, s{C}, {WT}
        s_mov_b32 s{b+4}, {324*1024}
        s_mov_b32 s{A}, {32*9216}
        s_mov_b32 s{B}, 9216
        """)
    def p_w2(self, t, n):
        k = self.k; b = sRL + 5*t; A, B, C, D, E = sT0, sT1, sT2, sT3, sT4
        k(f"""
        s_cmp_ge_u32 s{n}, 54
        s_cselect_b32 s{A}, 54, 0
        s_cselect_b32 s{B}, 3, 0
        s_sub_u32 s{A}, s{n}, s{A}
        s_mul_i32 s{C}, s{A}, 171
        s_lshr_b32 s{C}, s{C}, 9
        s_mul_i32 s{D}, s{C}, 3
        s_sub_u32 s{A}, s{A}, s{D}
        s_add_u32 s{B}, s{B}, s{A}
        s_sub_u32 s{A}, s{n}, 108
        s_and_b32 s{D}, s{A}, 1
        s_add_u32 s{D}, s{D}, 6
        s_lshr_b32 s{A}, s{A}, 1
        s_cmp_ge_u32 s{n}, 108
        s_cselect_b32 s{C}, s{A}, s{C}
        s_cselect_b32 s{B}, s{D}, s{B}
        s_sub_u32 s{A}, s{n}, 144
        s_cmp_ge_u32 s{n}, 144
        s_cselect_b32 s{C}, s{A}, s{C}
        s_cselect_b32 s{B}, 8, s{B}
        s_add_u32 s{A}, s{sX}, s{B}
        s_and_b32 s{A}, s{A}, 7
        s_cmp_eq_u32 s{B}, 0
        s_cselect_b32 s{A}, 8, s{A}
        s_lshl_b32 s{A}, s{A}, 7
        s_add_u32 s{B}, s{C}, 8
        s_sub_u32 s{D}, s{C}, 2
        s_cmp_lt_u32 s{C}, 10
        s_cselect_b32 s{B}, s{B}, s{D}
        s_cmp_lt_u32 s{C}, 8
        s_cselect_b32 s{C}, s{C}, s{B}
        s_lshr_b32 s{B}, s{C}, 2
        s_lshl_b32 s{B}, s{B}, 7
        s_and_b32 s{D}, s{C}, 3
        s_add_u32 s{B}, s{B}, s{D}
        s_lshl_b32 s{D}, s{C}, 1
        s_add_u32 s{D}, s{D}, 480
        s_mov_b32 s{E}, {1152 - 12*1152 + (1 << 32)}
        s_cmp_lt_u32 s{C}, 16
        s_cselect_b32 s{B}, s{B}, s{D}
        s_cselect_b32 s{b+2}, {64*1152 - 12*1152}, s{E}
        s_mul_i32 s{D}, s{sX}, 576
        s_add_u32 s{B}, s{B}, s{D}
        s_mul_i32 s{B}, s{B}, 1152
        s_add_u32 s{b}, s{B}, s{A}
        s_mov_b32 s{b+1}, {4*1152}
        s_mul_i32 s{C}, s{sX}, {4*324*1024}
        s_lshl_b32 s{D}, s{n}, 10
        s_add_u32 s{C}, s{C}, s{D}
        s_add_u32 s{b+3}, s{C}, {WT + 162*1024}
        s_mov_b32 s{b+4}, {324*1024}
        s_mov_b32 s{A}, {16*1152}
        s_mov_b32 s{B}, {32*1152}
        """)
    def p_wo(self, t, n):
        k = self.k; b = sRL + 5*t; A, B, C, D, E = sT0, sT1, sT2, sT3, sT4
        k(f"""
        s_mul_i32 s{A}, s{n}, 57
        s_lshr_b32 s{A}, s{A}, 10
        s_mul_i32 s{B}, s{A}, 18
        s_sub_u32 s{B}, s{n}, s{B}
        s_mul_i32 s{C}, s{A}, {4*18*1024}
        s_lshl_b32 s{D}, s{B}, 10
        s_add_u32 s{C}, s{C}, s{D}
        s_add_u32 s{b+3}, s{C}, {WOT}
        s_mov_b32 s{b+4}, {18*1024}
        s_mul_i32 s{C}, s{B}, 36
        s_mul_i32 s{D}, s{B}, 288
        s_sub_u32 s{D}, s{D}, {288*16 - 16}
        s_mov_b32 s{E}, {33*1152}
        s_cmp_lt_u32 s{B}, 16
        s_cselect_b32 s{C}, s{C}, s{D}
        s_cselect_b32 s{b+2}, {17*1152}, s{E}
        s_mov_b32 s{E}, {72*1152}
        s_cselect_b32 s{E}, {4*1152}, s{E}
        s_mul_i32 s{C}, s{C}, 1152
        s_lshl_b32 s{A}, s{A}, 7
        s_add_u32 s{b}, s{C}, s{A}
        s_mov_b32 s{b+1}, 1152
        s_mov_b32 s{A}, s{E}
        s_lshl_b32 s{B}, s{E}, 1
        """)
    def relay_params(self, early):
        k = self.k; n = sT5
        k(f"s_lshl_b32 s{n}, s{sI}, 2"); k(f"s_add_u32 s{n}, s{n}, s{sWV}")
        LB, LD = k.label("tb"), k.label("td")
        if early == 0:
            k(f"s_mov_b32 s{T2S+3}, 0x20000")
            k(f"""
            s_cmp_lt_u32 s{n}, 107
            s_cselect_b64 s[{T2S}:{T2S+1}], s[{W1S}:{W1S+1}], s[{sWO}:{sWO+1}]
            s_mov_b32 s{T2S+2}, 663552
            s_cselect_b32 s{T2S+2}, 5308416, s{T2S+2}
            s_mov_b32 s{sV2}, 1
            s_cbranch_scc0 {LB}
            """)
            self.p_w1(0, n); k(f"s_branch {LD}"); k(f"{LB}:")
            k(f"""
            s_sub_u32 s{n}, s{n}, 107
            s_lshl_b32 s{n}, s{n}, 3
            s_add_u32 s{n}, s{n}, s{sX}
            s_cmp_lt_u32 s{n}, 162
            s_cselect_b32 s{sV2}, 1, 0
            s_cselect_b32 s{n}, s{n}, 0
            """)
            self.p_wo(0, n); self.void(0, sV2); k(f"{LD}:")
            self.lane_off(0, sT0, sT1)
        elif early == 1:
            self.p_w2(1, n); self.lane_off(1, sT0, sT1)
        else:
            k(f"""
            s_mov_b32 s{T3S+3}, 0x20000
            s_cmp_lt_u32 s{n}, 89
            s_cselect_b32 s{sV3}, 1, 0
            s_cmp_lt_u32 s{n}, 55
            s_cselect_b64 s[{T3S}:{T3S+1}], s[{W1S}:{W1S+1}], s[{W2S}:{W2S+1}]
            s_mov_b32 s{T3S+2}, 5308416
            s_cbranch_scc0 {LB}
            s_add_u32 s{n}, s{n}, 107
            """)
            self.p_w1(2, n); k(f"s_branch {LD}"); k(f"{LB}:")
            k(f"s_add_u32 s{n}, s{n}, 73"); k(f"s_min_u32 s{n}, s{n}, 161")
            self.p_w2(2, n); self.void(2, sV3); k(f"{LD}:")
            self.lane_off(2, sT0, sT1)
    def void(self, t, valid):
        k = self.k; b = sRL + 5*t
        k(f"s_cmp_eq_u32 s{valid}, 0")
        k(f"s_cselect_b32 s{b}, 0x7f000000, s{b}"); k(f"s_cselect_b32 s{b+3}, 0x7f000000, s{b+3}")
    def relay_loads(self, t):
        k = self.k; b = sRL + 5*t; srd = (T2S, W2S, T3S)[t]
        k(f"s_mov_b32 s{sT2}, s{b}")
        for s in range(8):
            k.vm(f"buffer_load_dwordx2 {vr(200+16*t+2*s,2)}, v{128+t}, {sr(srd,4)}, s{sT2} offen" + (" nt" if OPT["nt"] else ""), ("rl", t))
            if s < 7: k(f"s_add_u32 s{sT2}, s{sT2}, s{b+2 if s == 3 else b+1}")
    def relay_store_ops(self, t, tmp):
        k = self.k; b = sRL + 5*t; ops = []
        for e in range(4):
            o = tmp + 4*e
            for d in range(4):
                lo = 200+16*t+2*(2*d)+(e >> 1); hi = lo + 2
                ops.append(lambda o=o, d=d, lo=lo, hi=hi, e=e: k(f"v_perm_b32 v{o+d}, v{hi}, v{lo}, s{sPO if e & 1 else sPE}"))
            ops.append(lambda o=o: (k.vm(f"buffer_store_dwordx4 {vr(o,4)}, v1, {sr(WS,4)}, s{b+3} offen sc1", ("rs", t)),
                                    k(f"s_add_u32 s{b+3}, s{b+3}, s{b+4}")))
        return ops
    def relay_stores(self, t, tmp):
        for f in self.relay_store_ops(t, tmp): f()

    def tr_reads(self, kk, addrs, buf):
        k = self.k; out = []
        for T, a in enumerate(addrs):
            for h in range(2):
                off = (kk & 7) * 8192 + 1024 * h
                out.append(lambda T=T, a=a, h=h, off=off: k.ds(
                    f"ds_read_b64_tr_b16 {vr(buf+4*T+2*h,2)}, v{a} offset:{off}", ("b", kk)))
        return out
    def bump(self, addrs):
        for a in addrs: self.k(f"v_add_u32 v{a}, 0x10000, v{a}")

    def phase_a(self):
        k = self.k
        if OPT["touch"]: self.w_touch()
        self.w_stage(0)
        chunks = [self.setup_a, lambda: self.relay_params(0), self.setup_b, self.setup_c,
                  lambda: self.relay_params(1), lambda: self.relay_params(2)]
        for s in range(9):
            self.x_stage(s)
            if s >= 1 and chunks: chunks.pop(0)()
        self.relay_loads(0)
        self.ts("issued")
        KA = [4, 5, 6, 7, 8]
        PRE = OPT["pre"]
        for s in range(PRE):
            k.wait(vm=("x", s))
            if s == 0:
                self.ts("x0")
                L = k.label("ng")
                k("s_cmp_lg_u32 s2, 0"); k(f"s_cbranch_scc1 {L}"); k("s_barrier")
                k("v_mov_b32 v16, 1"); k("v_mov_b32 v17, 0"); k("s_mov_b64 exec, 1")
                k(f"buffer_store_dword v16, v17, {sr(DS,4)}, 0 offen sc1"); k("s_mov_b64 exec, -1"); k(f"{L}:")
            self.x_read(s)
            if s > 0: k.wait(ds=[("xr", s - 1)]); self.w_stage(s)
        k("s_barrier")
        self.ts("A.first")
        for f in self.tr_reads(0, KA, 64): f()
        rs0 = None
        for kk in range(18):
            buf = 64 + 20 * (kk & 1)
            fill = []; nx = (kk >> 1) + PRE
            if nx < 9 and kk & 1 == 0:
                fill.append(lambda s=nx: (k.wait(vm=("x", s)), self.x_read(s)))
            if kk + 1 < 18:
                if (kk + 1) % 2 == 0:
                    fill.append(lambda s=(kk+1)//2: (k.wait(vm=("st", s)), k("s_barrier")))
                if (kk + 1) % 8 == 0: fill.append(lambda: self.bump(KA))
                fill += self.tr_reads(kk + 1, KA, 64 + 20 * ((kk + 1) & 1))
            if nx < 9:
                fill.insert(3, lambda h=2*nx + (kk & 1): (k.wait(ds=[("xr", (h >> 1) - 1)]), self.w_half(h)))
            KR = 2 * (9 - PRE)
            if kk == KR:
                rs0 = self.relay_store_ops(0, 184); fill.append(lambda: k.wait(vm=("rl", 0)))
            if kk in (KR, KR + 1):
                for _ in range(10): fill.append(rs0.pop(0))
            if kk == KR + 1:
                fill.append(lambda: (k("v_mov_b32 v14, 0"), k.vm(f"buffer_load_dword v14, v14, {sr(DS,4)}, 0 offen sc1", "gate")))
            if OPT["rsq"] >= 0:
                if kk in (KR + 2, KR + 3): fill.append(lambda t=kk-KR-1: self.relay_loads(t))
            else:
                for t in (1, 2):
                    if kk == OPT[f"kl{t}"]: fill.append(lambda t=t: self.relay_loads(t))
                    if kk == KR + 2*t:
                        rs0 = self.relay_store_ops(t, 184); fill.append(lambda t=t: k.wait(vm=("rl", t)))
                    if kk in (KR + 2*t, KR + 2*t + 1):
                        for _ in range(10): fill.append(rs0.pop(0))
            k.wait(ds=[("b", kk)])
            ms = []
            for T in range(5):
                for mt in range(2):
                    d = vr(16 + 8*T + 4*mt, 4)
                    ms.append((d, ar((kk*2+mt)*4, 4), vr(buf + 4*T, 4), d if kk else None))
            for mt in range(2):
                d = vr(56 + 4*mt, 4); xa = ar((kk*2+mt)*4, 4)
                ms.append((d, xa, xa, d if kk else None))
            for m in ms:
                self.mfma(*m)
                if fill: fill.pop(0)()
            L = k.label("cs")
            k(f"s_cmp_lg_u32 s{sWV}, {kk & 3}"); k(f"s_cbranch_scc1 {L}")
            for T in range(5):
                d = vr(104 + 4*T, 4); self.mfma(d, "v[124:127]", vr(buf + 4*T, 4), d if kk >= 4 else None)
            k(f"{L}:")
            while fill: fill.pop(0)()
        self.ts("A.kloop")
        k(f"""
        s_lshl_b32 s{sT0}, s{sWV}, 8
        s_add_u32 s{sT0}, s{sT0}, {ST}
        v_lshl_add_u32 v132, v3, 4, s{sT0}
        v_lshl_add_u32 v133, v2, 2, s{sT0}
        s_lshl_b32 s{sT0}, s{sWV}, 2
        s_add_u32 s{sT0}, s{sT0}, {CS}
        v_lshl_add_u32 v134, v2, 4, s{sT0}
        v_lshlrev_b32 v135, 4, v2
        v_add_u32 v135, {CS}, v135
        """)
        self.setexec(0x0001000100010001)
        for mt in range(2): k.ds(f"ds_write_b128 v132, {vr(48+4*mt,4)} offset:{128*mt}")
        for r in range(4):
            self.setexec(0x1000010000100001 << r)
            for mt in range(2): k.ds(f"ds_write_b32 v133, v{56+4*mt+r} offset:{64+128*mt}")
        self.setexec(0xffff)
        for T in range(5): k.ds(f"ds_write_b32 v134, v{104+4*T} offset:{256*T}")
        self.setexec(-1)
        k.wait(ds="all"); k("s_barrier")
        for mt in range(2):
            k.ds(f"ds_read_b128 {vr(136+8*mt,4)}, v132 offset:{128*mt}", ("s", mt))
            k.ds(f"ds_read_b128 {vr(140+8*mt,4)}, v132 offset:{128*mt+64}", ("s", mt))
        for T in range(5): k.ds(f"ds_read_b128 {vr(104+4*T,4)}, v135 offset:{256*T}", ("c", T))
        k(f"s_mov_b32 s{sC0}, {hex(f2u(-1/576))}"); k(f"s_mov_b32 s{sC1}, {hex(f2u(1/576))}")
        k(f"s_mov_b32 s{sC2}, {hex(f2u(1.4426950408889634))}"); k(f"s_mov_b32 s{sC3}, {hex(f2u(1e-6))}")
        k(f"v_mov_b32 v15, {hex(f2u(1e-5))}")
        NM = lambda mt, r: 136 + 8*mt + r
        RS = lambda mt, r: 140 + 8*mt + r
        RLg = lambda mt, r: 152 + 4*mt + r
        for mt in range(2):
            k.wait(ds=[("s", mt)])
            self.stats([(NM(mt, r), RS(mt, r), RLg(mt, r)) for r in range(4)])
        for T in range(5):
            k.wait(ds=[("c", T)]); c = 104 + 4*T
            k(f"v_add_f32 v{c}, v{c}, v{c+1}"); k(f"v_add_f32 v{c+2}, v{c+2}, v{c+3}"); k(f"v_add_f32 v{c}, v{c}, v{c+2}")
        k(f"s_mov_b32 s{sMK}, 0xf000f000"); k(f"s_mov_b32 s{sMK+1}, 0xf000f000")
        PK = lambda T: 160 + 4*T
        for T in (0, 2, 1, 3, 4):
            for mt in range(2):
                el = [(16 + 8*T + 4*mt + r, NM(mt, r), 104 + 4*T, RS(mt, r), RLg(mt, r)) for r in range(4)]
                self.affine(el, phi=T in (0, 1, 4), keep=(T == 4), tmp=64)
                for h in range(2):
                    a = 16 + 8*T + 4*mt + 2*h
                    k(f"v_cvt_pk_bf16_f32 v{PK(T)+2*mt+h}, v{a}, v{a+1}")
            if T == 2: self.mfma("v[16:19]", vr(PK(0), 4), vr(PK(2), 4))
            if T == 3: self.mfma("v[20:23]", vr(PK(1), 4), vr(PK(3), 4))
        X = PK(4); BA, BB, AC, AD, AEA, AEB = 72, 76, 80, 84, 88, 92
        for d in range(4): k(f"v_and_or_b32 v{BA+d}, v{X+d}, v249, v248")
        for d in range(4): k(f"v_and_b32 v{AC+d}, v{X+d}, v252")
        self.mfma("v[24:27]", vr(PK(0), 4), vr(BA, 4))
        for d in range(4): k(f"v_and_or_b32 v{BB+d}, v{X+d}, v251, v250")
        self.mfma("v[28:31]", vr(AC, 4), vr(PK(2), 4))
        for d in range(4): k(f"v_and_b32 v{AD+d}, v{X+d}, v253")
        self.mfma("v[24:27]", vr(PK(1), 4), vr(BB, 4), "v[24:27]")
        for d in range(4): k(f"v_and_b32 v{AEA+d}, v{X+d}, v254")
        self.mfma("v[28:31]", vr(AD, 4), vr(PK(3), 4), "v[28:31]")
        for d in range(4): k(f"v_and_b32 v{AEB+d}, v{X+d}, v131")
        self.mfma("v[28:31]", vr(AEA, 4), vr(BA, 4), "v[28:31]")
        self.mfma("v[28:31]", vr(AEB, 4), vr(BB, 4), "v[28:31]")
        self.ts("A.epi")
        k(f"v_add_u32 v134, {AUX}, v1")
        LD = k.label("kvd"); labs = [k.label("kv") for _ in range(4)]
        for w in range(4):
            k(f"{labs[w]}:")
            if w < 3: k(f"s_cmp_lg_u32 s{sWV}, {w}"); k(f"s_cbranch_scc1 {labs[w+1]}")
            for T in range(4):
                if T != w: k(f"ds_write_b128 v134, {vr(16+4*T,4)} offset:{T*3072 + ((w-T-1) & 3)*1024}")
            for r in range(4): k(f"v_mov_b32 v{32+r}, v{16+4*w+r}")
            if w < 3: k(f"s_branch {LD}")
        k(f"{LD}:")
        k(f"s_mul_i32 s{sT0}, s{sWV}, 3072"); k(f"v_add_u32 v134, s{sT0}, v134")
        k("s_waitcnt lgkmcnt(0)"); k.lq = []; k("s_barrier")
        for q in range(3): k.ds(f"ds_read_b128 {vr(16+4*q,4)}, v134 offset:{q*1024}", ("r", q))
        k(f"""
        s_lshl_b32 s{sT0}, s{sP}, 4
        s_add_u32 s{sT0}, s{sT0}, s{sR}
        s_lshl_b32 s{sT0}, s{sT0}, 2
        s_add_u32 s{sT0}, s{sT0}, s{sWV}
        s_lshl_b32 s{sT0}, s{sT0}, 10
        s_add_u32 s{sT0}, s{sT0}, {KVP}
        """)
        for q in range(3):
            k.wait(ds=[("r", q)])
            for r in range(4): k(f"v_add_f32 v{32+r}, v{32+r}, v{16+4*q+r}")
        k.vm(f"buffer_store_dwordx4 v[32:35], v1, {sr(WS,4)}, s{sT0} offen sc1", "kvp")
        self.ts("A.kvst")

    def stats(self, L):
        k = self.k
        for a, b, c in L: k(f"v_mul_f32 v{a}, s{sC0}, v{a}")
        for a, b, c in L: k(f"v_fma_f32 v{b}, v{b}, s{sC1}, v15")
        for a, b, c in L: k(f"v_fma_f32 v{b}, -v{a}, v{a}, v{b}")
        for a, b, c in L: k(f"v_max_f32 v{b}, v{b}, v15")
        for a, b, c in L: k(f"v_rsq_f32 v{b}, v{b}")
        for a, b, c in L:
            if c is not None: k(f"v_mul_f32 v{c}, s{sC2}, v{b}")
    def affine(self, el, phi, keep, tmp):
        k = self.k
        for a, nm, cs, rs, rl in el: k(f"v_fma_f32 v{a}, v{nm}, v{cs}, v{a}")
        if not phi:
            for a, nm, cs, rs, rl in el: k(f"v_mul_f32 v{a}, v{a}, v{rs}")
            return
        for n, (a, nm, cs, rs, rl) in enumerate(el): k(f"v_mul_f32 v{tmp+n}, v{a}, v{rl}")
        if keep:
            for n, (a, nm, cs, rs, rl) in enumerate(el): k(f"v_mul_f32 v{tmp+4+n}, v{a}, v{rs}")
        for n, (a, nm, cs, rs, rl) in enumerate(el): k(f"v_exp_f32 v{tmp+n}, v{tmp+n} clamp")
        for a, nm, cs, rs, rl in el: k(f"v_fma_f32 v{a}, v{a}, v{rs}, s{sC3}")
        for a, nm, cs, rs, rl in el: k(f"v_max_f32 v{a}, s{sC3}, v{a}")
        for n, (a, nm, cs, rs, rl) in enumerate(el): k(f"v_add_f32 v{a}, v{a}, v{tmp+n}")
        if keep:
            for n, (a, nm, cs, rs, rl) in enumerate(el):
                k(f"v_cndmask_b32 v{a}, v{a}, v{tmp+4+n}, s[{sMK}:{sMK+1}]")

    def finish(self):
        k = self.k
        if self.prof:
            self.ts("end"); self.rt(63)
            k(f"""
            s_lshl_b32 s{sT0}, s2, 2
            s_add_u32 s{sT0}, s{sT0}, s{sWV}
            s_lshl_b32 s{sT0}, s{sT0}, 8
            s_add_u32 s{sT0}, s{sT0}, {PROF}
            v_lshlrev_b32 v4, 2, v0
            buffer_store_dword v255, v4, {sr(WS,4)}, s{sT0} offen
            """)
            if self.dbgwg is not None:
                k(f"s_cmp_lg_u32 s2, {self.dbgwg}"); k("s_cbranch_scc1 L_nd")
                k(f"s_cmp_lg_u32 s{sWV}, 0"); k("s_cbranch_scc1 L_nd")
                k("v_readlane_b32 s3, v255, 0"); k("v_subrev_u32 v255, s3, v255")
                k("s_mov_b64 exec, 0xfffe")
                k(f"buffer_store_dword v255, v4, {sr(DS,4)}, 0 offen"); k("L_nd:")
        k("s_waitcnt vmcnt(0)"); k("L_end:"); k("s_endpgm")


def build(stop=None, prof=False, only=None, dbgwg=None):
    from gen2 import hop1, phase_b, phase_f
    g = G(stop, prof); g.only = only; g.dbgwg = dbgwg
    g.prologue(); g.phase_a()
    for name, fn in (("q", hop1), ("b", phase_b), ("f", phase_f)):
        if stop == "pre" + name: break
        fn(g)
    g.finish()
    hdr = "".join(open("cdna_kernels/" + NAME + ".s.ref").readlines()[:12]) if True else ""
    txt = g.k.text(hdr, NAME + "_kernel", 256, 256, 102, (256, 1, 1), (256, 1, 1), 163840)
    return txt, g

if __name__ == "__main__":
    out = sys.argv[1]; stop = sys.argv[2] if len(sys.argv) > 2 and sys.argv[2] != "-" else None
    prof = len(sys.argv) > 3
    txt, g = build(stop, prof)
    open(out, "w").write(txt)
    import json; json.dump(g.tsn, open(out + ".ts.json", "w"))
    print("lines", txt.count("\n"), "bytes", len(txt), "nop states", g.k.nops)
```

```python
from kgen import *
import gen as _g
from gen import *

NP1, NP2A, NP2B = OPT['np1'], OPT['np2'], OPT['np3']
RING = OPT['ring']
XRB = 81920
WOA = 96

def ring_load(g, seq):
    k = g.k
    if seq % 4 == 0:
        k(f"s_add_u32 s{sA0}, s{sA1}, {seq*1024}")
    k.vm(f"buffer_load_dwordx4 {ar(4*(seq % RING),4)}, v1, {sr(WS,4)}, s{sA0} offen offset:{(seq % 4)*1024} sc1", ("w", seq))

def p_touch(g):
    k = g.k
    k("v_lshlrev_b32 v158, 7, v0")
    for h in range(2):
        k(f"""
        s_lshl_b32 s{sT0}, s{sWV}, 1
        s_add_u32 s{sT0}, s{sT0}, s{sJ}
        s_add_u32 s{sT0}, s{sT0}, {h}
        s_and_b32 s{sT0}, s{sT0}, 7
        s_cmp_eq_u32 s{sT0}, s{sJ}
        s_cselect_b32 s{sT0}, 8, s{sT0}
        s_mul_i32 s{sT1}, s{sRF}, 9
        s_add_u32 s{sT0}, s{sT0}, s{sT1}
        s_lshl_b32 s{sT0}, s{sT0}, 3
        s_add_u32 s{sT0}, s{sT0}, s{sJ}
        s_lshl_b32 s{sT0}, s{sT0}, 13
        s_add_u32 s{sT0}, s{sT0}, {PB}
        """)
        k.vm(f"buffer_load_dword v{156+h}, v158, {sr(WS,4)}, s{sT0} offen sc1", "pt")

def hop1(g):
    k = g.k
    QA = [9, 10, 11]
    for f in g.tr_reads(0, QA, 64): f()
    k(f"""
    s_lshr_b32 s{sT0}, s{sI}, 3
    s_lshl_b32 s{sBR}, s{sX}, 2
    s_add_u32 s{sBR}, s{sBR}, s{sT0}
    s_and_b32 s{sBC}, s{sI}, 7
    v_mov_b32 v6, 0
    """)
    if OPT["fmap"] == 2:
        k(f"""
        s_and_b32 s{sJ}, s{sX}, 1
        s_lshl_b32 s{sJ}, s{sJ}, 2
        s_and_b32 s{sT0}, s{sI}, 3
        s_add_u32 s{sJ}, s{sJ}, s{sT0}
        s_lshr_b32 s{sRF}, s{sX}, 1
        s_lshl_b32 s{sRF}, s{sRF}, 3
        s_lshr_b32 s{sT0}, s{sI}, 2
        s_add_u32 s{sRF}, s{sRF}, s{sT0}
        """)
    elif OPT["fmap"] == 3:
        k(f"s_mov_b32 s{sJ}, s{sBC}"); k(f"s_mov_b32 s{sRF}, s{sBR}")
    elif OPT["fmap"]:
        k(f"""
        s_and_b32 s{sJ}, s{sX}, 6
        s_and_b32 s{sT0}, s{sI}, 1
        s_add_u32 s{sJ}, s{sJ}, s{sT0}
        s_and_b32 s{sRF}, s{sX}, 1
        s_lshl_b32 s{sRF}, s{sRF}, 4
        s_lshr_b32 s{sT0}, s{sI}, 1
        s_add_u32 s{sRF}, s{sRF}, s{sT0}
        """)
    else:
        k(f"s_mov_b32 s{sJ}, s{sX}"); k(f"s_mov_b32 s{sRF}, s{sI}")
    k(f"""
    s_lshl_b32 s{sT3}, s{sP}, 8
    s_lshl_b32 s{sT0}, s{sWV}, 6
    s_add_u32 s{sT3}, s{sT3}, s{sT0}
    s_lshl_b32 s{sT0}, s{sR}, 2
    s_add_u32 s{sT4}, s{sT3}, s{sT0}
    """)
    rsq = []
    for t in (1, 2)[:max(OPT["rsq"], 0)]: rsq += g.relay_store_ops(t, 176 + 8*0)
    def ready_loads():
        k(f"""
        v_lshlrev_b32 v135, 10, v3
        v_lshl_add_u32 v135, v2, 4, v135
        s_movk_i32 s{sA0}, {FK + 768}
        s_lshr_b32 s{sA1}, s{sJ}, 1
        s_lshl_b32 s{sA1}, s{sA1}, 10
        """)
        k.vm(f"buffer_load_dwordx4 v[168:171], v135, {sr(WS,4)}, s{sA0} offen sc1", "fw")
        k.vm(f"buffer_load_dwordx4 v[172:175], v1, {sr(WS,4)}, s{sA1} offen sc1", "fw")
    g.ts("Q.start")
    for kk in range(18):
        buf = 64 + 12 * (kk & 1); fill = []
        if kk + 1 < 18:
            if (kk + 1) % 8 == 0: fill.append(lambda: g.bump(QA))
            fill += g.tr_reads(kk + 1, QA, 64 + 12 * ((kk + 1) & 1))
        else:
            for mt in range(2):
                fill.append(lambda mt=mt: k.ds(f"ds_read_b32 v{136+mt}, v133 offset:{128*mt}", "qs"))
                fill.append(lambda mt=mt: k.ds(f"ds_read_b32 v{138+mt}, v133 offset:{128*mt+64}", "qs"))
        if kk == 3:
            fill.append(lambda: (k.wait(vm="kvp"), g.check(6, "0", 14, 1, srd=DS), k("v_mov_b32 v14, 1"), g.flag(f"s{sT4}", 14, 6)))
        if 4 <= kk < 9:
            for _ in range(8):
                if rsq: fill.append(rsq.pop(0))
        if kk == 12 and not OPT["rdy"]: fill.append(ready_loads)
        if kk == 5 and OPT["ptouch"]: fill.append(lambda: p_touch(g))
        if OPT["fine"] and kk in (3, 4, 9, 12): g.ts(f"q.{kk}")
        k.wait(ds=[("b", kk)])
        ms = []
        for T in range(3):
            for mt in range(2):
                d = vr(16 + 8*T + 4*mt, 4)
                ms.append((d, vr(buf + 4*T, 4), ar((kk*2+mt)*4, 4), d if kk else None))
            d = vr(40 + 4*T, 4); ms.append((d, vr(buf + 4*T, 4), "v[124:127]", d if kk else None))
        for m in ms:
            g.mfma(*m)
            if fill: fill.pop(0)()
        while fill: fill.pop(0)()
    k.wait(ds=["qs"])
    g.stats([(136 + mt, 138 + mt, 140 + mt) for mt in range(2)])
    for T in range(3):
        for mt in range(2):
            el = [(16 + 8*T + 4*mt + r, 136 + mt, 40 + 4*T + r, 138 + mt, 140 + mt) for r in range(4)]
            g.affine(el, phi=True, keep=False, tmp=64)
            dst = 144 + 4*mt + 2*T if T < 2 else 152 + 2*mt
            for h in range(2):
                a = 16 + 8*T + 4*mt + 2*h
                k(f"v_cvt_pk_bf16_f32 v{dst+h}, v{a}, v{a+1}")
    for reg, bits in ((248, 0x3111), (249, 0xC222)):
        k(f"s_mov_b32 s{sT1}, {hex(bits)}"); k(f"v_bfe_i32 v{reg}, s{sT1}, v2, 1")
    k("v_bfe_i32 v250, 2, v3, 1"); k("v_bfe_i32 v251, 4, v3, 1")
    k(f"""
    v_lshlrev_b32 v134, 2, v2
    s_lshl_b32 s{sT0}, s{sP}, 16
    s_lshl_b32 s{sT1}, s{sWV}, 10
    s_add_u32 s{sT0}, s{sT0}, s{sT1}
    s_add_u32 s{sT0}, s{sT0}, {KVP}
    s_lshl_b32 s{sT1}, s{sWV}, 9
    s_add_u32 s{sT1}, s{sT1}, {KVX}
    v_lshl_add_u32 v132, v0, 3, s{sT1}
    v_lshlrev_b32 v133, 3, v0
    v_add_u32 v133, {KVX}, v133
    """)
    g.ts("Q.end")
    g.poll(134, f"s{sT3}", 136)
    ready_check = lambda: (k.wait(vm="fw"), g.check(135, f"s{sA0}", 168, 4), g.check(1, f"s{sA1}", 172, 4))
    if not OPT["rdy"]: ready_check()
    g.ts("FK.seen")
    for q in range(16):
        k.vm(f"buffer_load_dwordx4 {vr(64+4*q,4)}, v1, {sr(WS,4)}, s{sT0} offen sc1", ("kv", q))
        if q < 15: k(f"s_add_u32 s{sT0}, s{sT0}, 4096")
    def wo_loads(lo=0, hi=18):
        if lo == 0:
            k(f"""
            s_lshl_b32 s{sA2}, s{sBC}, 2
            s_add_u32 s{sA2}, s{sA2}, s{sWV}
            s_mul_i32 s{sA2}, s{sA2}, 18432
            s_add_u32 s{sA2}, s{sA2}, {WOT}
            """)
        for kk in range(lo, hi):
            k.vm(f"buffer_load_dwordx4 {ar(WOA+4*kk,4)}, v1, {sr(WS,4)}, s{sA2} offen offset:{(kk & 3)*1024} sc1", "wo")
            if kk & 3 == 3: k(f"s_add_u32 s{sA2}, s{sA2}, 4096")
    g.wo_loads = wo_loads
    if OPT["rdy"] in (1, 2): ready_loads()
    if OPT["rdy"] == 0: wo_loads()
    k(f"""
    s_lshl_b32 s{sT0}, s{sBR}, 6
    s_lshl_b32 s{sT1}, s{sWV}, 4
    s_add_u32 s{sT1}, s{sT1}, s{sT0}
    s_mul_i32 s{sT1}, s{sT1}, 1152
    s_lshl_b32 s{sT2}, s{sBC}, 7
    s_add_u32 s{sXB}, s{sT1}, s{sT2}
    s_add_u32 s{sXB+1}, s{sXB}, 9216
    s_lshr_b32 s{sT1}, s{sBC}, 1
    s_lshl_b32 s{sT1}, s{sT1}, 4
    s_add_u32 s{sT0}, s{sT0}, s{sT1}
    s_lshl_b32 s{sT1}, s{sWV}, 3
    s_add_u32 s{sT0}, s{sT0}, s{sT1}
    s_mul_i32 s{sT0}, s{sT0}, 1152
    s_add_u32 s{sXB+2}, s{sT0}, 1024
    s_cmp_lt_u32 s{sWV}, 2
    s_cselect_b32 s{sXB+2}, s{sXB+2}, 0x7f000000
    """)
    for q in range(1, 16):
        k.wait(vm=("kv", q)); d = 64 + 4*(q & 1 if q > 1 else 0)
        if q == 1: continue
        for h in range(2): k(f"v_pk_add_f32 {vr(d+2*h,2)}, {vr(d+2*h,2)}, {vr(64+4*q+2*h,2)}")
    for h in range(2): k(f"v_pk_add_f32 {vr(64+2*h,2)}, {vr(64+2*h,2)}, {vr(68+2*h,2)}")
    k("v_cvt_pk_bf16_f32 v160, v64, v65"); k("v_cvt_pk_bf16_f32 v161, v66, v67")
    k.ds("ds_write_b64 v132, v[160:161]")
    if OPT["rdy"] == 1: ready_check(); wo_loads()
    k.wait(ds="all"); k("s_barrier")
    for T in range(4): k.ds(f"ds_read_b64 {vr(160+2*T,2)}, v133 offset:{512*T}", ("x", T))
    if OPT["rdy"] == 3: ready_loads()
    for j in range(3):
        k(f"s_add_u32 m0, s{sDK}, {XRB + 1024*j}" if j < 2 else f"s_lshr_b32 s{sT0}, s{sDK}, 1")
        if j == 2: k(f"s_add_u32 m0, s{sT0}, {XRB + 8192}")
        k.vm(f"buffer_load_dwordx4 v12, {sr(XS,4)}, s{sXB+j} offen lds", "xr")
    k(f"""
    s_lshl_b32 s{sT0}, s{sR}, 1
    s_lshr_b32 s{sT1}, s{sWV}, 1
    s_add_u32 s{sT0}, s{sT0}, s{sT1}
    s_lshl_b32 s{sT4}, s{sT0}, 7
    s_mul_i32 s{sT0}, s{sT0}, 73728
    s_and_b32 s{sT1}, s{sWV}, 1
    s_lshl_b32 s{sT2}, s{sT1}, 11
    s_add_u32 s{sT0}, s{sT0}, s{sT2}
    s_add_u32 s{sT0}, s{sT0}, {OB}
    s_lshl_b32 s{sT1}, s{sT1}, 2
    s_add_u32 s{sT4}, s{sT4}, s{sT1}
    s_lshl_b32 s{sT1}, s{sP}, 3
    s_add_u32 s{sT4}, s{sT4}, s{sT1}
    s_add_u32 s{sT4}, s{sT4}, {FO}
    s_lshr_b32 s{sT1}, s{sP}, 3
    s_add_u32 s{sT1}, s{sT1}, 16
    s_lshl_b32 s{sT1}, s{sT1}, 12
    s_and_b32 s{sT2}, s{sP}, 6
    s_lshl_b32 s{sT2}, s{sT2}, 7
    s_add_u32 s{sT1}, s{sT1}, s{sT2}
    s_add_u32 s{sT1}, s{sT1}, s{sDL}
    s_add_u32 s{sT1}, s{sT1}, s{sT0}
    s_lshl_b32 s{sT2}, s{sP}, 12
    s_add_u32 s{sT0}, s{sT0}, s{sT2}
    v_lshlrev_b32 v134, 4, v2
    """)
    T0, T1, O1, O2 = 160, 162, 164, 166
    AF, A0L, A1L, AFL = 56, 60, 62, 64
    E = lambda q, mt: 16 + 12*mt + 4*q
    k.wait(ds=[("x", 1)])
    for mt in range(2):
        g.mfma(vr(E(0, mt), 4), vr(T0, 2), vr(144 + 4*mt, 2), k16=True)
        g.mfma(vr(E(1, mt), 4), vr(T1, 2), vr(146 + 4*mt, 2), k16=True)
    k.wait(ds=[("x", 3)])
    k(f"""
    v_mov_b32 v61, 0
    v_mov_b32 v62, 0
    v_and_b32 v{AF}, v{O1}, v248
    v_and_b32 v{AF+1}, v{O1+1}, v248
    v_and_b32 v{AF+2}, v{O1}, v249
    v_and_b32 v{AF+3}, v{O1+1}, v249
    v_and_b32 v{AFL}, v{O2}, v251
    v_and_b32 v{AFL+1}, v{O2+1}, v250
    v_and_b32 v{A0L}, v{O2}, v250
    v_and_b32 v{A1L+1}, v{O2+1}, v251
    """)
    for mt in range(2): g.mfma(vr(E(2, mt), 4), vr(AF, 4), vr(144 + 4*mt, 4))
    for mt in range(2): g.mfma(vr(E(2, mt), 4), vr(AFL, 2), vr(152 + 2*mt, 2), vr(E(2, mt), 4), k16=True)
    for mt in range(2):
        g.mfma(vr(E(0, mt), 4), vr(A0L, 2), vr(152 + 2*mt, 2), vr(E(0, mt), 4), k16=True)
        g.mfma(vr(E(1, mt), 4), vr(A1L, 2), vr(152 + 2*mt, 2), vr(E(1, mt), 4), k16=True)
    for mt in range(2):
        F = E(2, mt); c = 68 + 4*mt
        for q in range(2):
            k(f"v_add_f32 v{c+2*q}, s{sC3}, v{F+q}"); k(f"v_add_f32 v{c+2*q+1}, s{sC3}, v{F+q}")
    for mt in range(2):
        c = 68 + 4*mt
        for q in range(2): k(f"v_permlane16_swap_b32 v{c+2*q}, v{c+2*q+1}")
    for mt in range(2):
        c = 68 + 4*mt
        for q in range(2): k(f"v_rcp_f32 v{c+2*q}, v{c+2*q}")
    for mt in range(2):
        c = 68 + 4*mt; o = 80 + 8*mt
        for q in range(2):
            for r in range(4): k(f"v_mul_f32 v{E(q,mt)+r}, v{E(q,mt)+r}, v{c+2*q}")
            for h in range(2): k(f"v_cvt_pk_bf16_f32 v{o+2*q+h}, v{E(q,mt)+2*h}, v{E(q,mt)+2*h+1}")
        k.vm(f"buffer_store_dwordx4 {vr(o,4)}, v1, {sr(WS,4)}, s{sT0} offen offset:{1024*mt} sc1", "o")
    for mt in range(2):
        c = 68 + 4*mt; o = 84 + 8*mt; F = E(2, mt)
        for r in range(4): k(f"v_mul_f32 v{F+r}, v{F+r}, v{c+2*(r>>1)}")
        for h in range(2): k(f"v_cvt_pk_bf16_f32 v{o+h}, v{F+2*h}, v{F+2*h+1}")
    g.setexec(0xffff << 48)
    for mt in range(2):
        k.vm(f"buffer_store_dwordx2 {vr(84+8*mt,2)}, v134, {sr(WS,4)}, s{sT1} offen offset:{1024*mt} sc1", "o")
    g.setexec(-1)
    g.ts("O.st")
    if OPT["rdy"] == 2: ready_check(); wo_loads()
    if OPT["rdy"] == 3: ready_check(); wo_loads(0, OPT["nwo"])

def sel(g, dst, se, h, tmp):
    k = g.k
    k(f"v_lshl_add_u32 v{tmp}, v2, 2, s{se}")
    k(f"v_lshlrev_b32 v{tmp+1}, 3, v3")
    k(f"v_sub_u32 v{tmp}, v{tmp}, v{tmp+1}")
    if h: k(f"v_subrev_u32 v{tmp}, 32, v{tmp}")
    k(f"v_and_b32 v{tmp+1}, 1, v{tmp}")
    k(f"v_lshlrev_b32 v{tmp+1}, 4, v{tmp+1}")
    k(f"v_mov_b32 v{tmp+2}, 0x3f80")
    k(f"v_lshlrev_b32 v{tmp+1}, v{tmp+1}, v{tmp+2}")
    k(f"v_lshrrev_b32 v{tmp}, 1, v{tmp}")
    for d in range(4):
        k(f"v_cmp_eq_u32 vcc, {d}, v{tmp}"); k(f"v_cndmask_b32 v{dst+d}, 0, v{tmp+1}, vcc")

def phase_b(g):
    k = g.k
    k(f"""
    s_and_b32 s{sT0}, s{sBC}, 1
    s_lshl_b32 s{sT0}, s{sT0}, 1
    s_add_u32 s{sT5}, s{sT0}, s{sWV}
    s_add_u32 s{sT3}, s{sT5}, 32
    s_mul_i32 s{sT3}, s{sT3}, 18432
    s_add_u32 s{sT3}, s{sT3}, {WOT}
    s_lshl_b32 s{sA1}, s{sJ}, 2
    s_add_u32 s{sA1}, s{sA1}, s{sWV}
    s_mul_i32 s{sA1}, s{sA1}, {324*1024}
    s_add_u32 s{sA1}, s{sA1}, {WT}
    """)
    for h in range(2):
        sel(g, 40 + 4*h, sWV, h, 100); sel(g, 48 + 4*h, sT5, h, 100)
    k(f"""
    v_and_b32 v56, 31, v0
    v_lshlrev_b32 v56, 2, v56
    s_lshl_b32 s{sT0}, s{sBR}, 7
    s_add_u32 s{sT0}, s{sT0}, {FO}
    s_mul_i32 s{sT1}, s{sBR}, 73728
    s_add_u32 s{sT1}, s{sT1}, {OB}
    s_lshr_b32 s{sT2}, s{sBC}, 1
    s_lshl_b32 s{sT2}, s{sT2}, 10
    v_add_u32 v57, s{sT2}, v1
    v_add_u32 v58, 0x10000, v1
    v_add_u32 v59, 0x10000, v57
    v_and_b32 v100, 6, v0
    v_xor_b32 v100, v100, v3
    v_lshlrev_b32 v100, 4, v100
    v_and_b32 v101, 7, v0
    v_lshl_add_u32 v100, v101, 7, v100
    v_bfe_u32 v101, v0, 3, 1
    v_lshl_add_u32 v100, v101, 10, v100
    v_add_u32 v62, {XRB}, v100
    v_xor_b32 v63, 64, v62
    """)
    k.wait(vm="o"); g.flag(f"s{sT4}", 14, 6)
    g.ts("FO.set")
    if OPT["rdy"] == 3 and OPT["nwo"] < 18: g.wo_loads(OPT["nwo"], 18)
    L = k.label("nx")
    k(f"s_cmp_ge_u32 s{sWV}, 2"); k(f"s_cbranch_scc1 {L}")
    for kk in range(18):
        k.vm(f"buffer_load_dwordx4 {ar(WOA+72+4*kk,4)}, v1, {sr(WS,4)}, s{sT3} offen offset:{(kk & 3)*1024} sc1", None, count=False)
        if kk & 3 == 3: k(f"s_add_u32 s{sT3}, s{sT3}, 4096")
    k(f"{L}:")
    g.poll1(56, f"s{sT0}", 60, wave=3)
    g.ts("FO.seen")
    for s in range(5):
        if s < 4:
            k(f"s_lshl_b32 s{sT2}, s{sWV}, 12"); k(f"s_add_u32 s{sT2}, s{sT2}, {s*16384}")
        else:
            k(f"s_lshl_b32 s{sT2}, s{sWV}, 11"); k(f"s_add_u32 s{sT2}, s{sT2}, 65536")
        k(f"s_mov_b32 m0, s{sT2}"); k(f"s_add_u32 s{sT2}, s{sT2}, s{sT1}")
        for q in range(4 if s < 4 else 2):
            k.vm(f"buffer_load_dwordx4 v1, {sr(WS,4)}, s{sT2} offen offset:{q*1024} sc1 lds", ("os", s))
    for h in range(2):
        for mt in range(5): k.ds(f"ds_read_b128 {vr(104+8*mt+4*h,4)}, v{62+h} offset:{2048*mt}", ("xr", h))
    later = []
    for t in (1, 2)[OPT["rsq"] if OPT["rsq"] >= 0 else 2:]: later += g.relay_store_ops(t, 168 + 16*(t - 1))
    later += [lambda seq=seq: ring_load(g, seq) for seq in range(NP1)]
    for h in range(2):
        k.wait(ds=[("xr", h)])
        for mt in range(5):
            d = vr(16 + 4*mt, 4); g.mfma(d, vr((40 if mt < 4 else 48) + 4*h, 4), vr(104 + 8*mt + 4*h, 4), d if h else None)
    def reads(kk):
        buf = 64 + 20 * (kk & 1); out = []
        for q in range(5):
            a = (1, 57)[q == 4] if kk < 16 else (58, 59)[q == 4]
            off = (kk & 15) * 4096 + (q & 3) * 1024
            out.append(lambda q=q, a=a, off=off: k.ds(f"ds_read_b128 {vr(buf+4*q,4)}, v{a} offset:{off}", ("ob", kk)))
        return out
    k.wait(vm=("os", 0)); k("s_barrier")
    g.ts("O.first")
    for f in reads(0): f()
    for kk in range(18):
        buf = 64 + 20 * (kk & 1); fill = []
        if kk + 1 < 18:
            if (kk + 1) % 4 == 0: fill.append(lambda s=(kk+1)//4: (k.wait(vm=("os", s)), k("s_barrier")))
            fill += reads(kk + 1)
        k.wait(ds=[("ob", kk)])
        for q in range(5):
            d = vr(16 + 4*q, 4)
            g.mfma(d, ar(WOA + (0 if q < 4 else 72) + 4*kk, 4), vr(buf + 4*q, 4), d)
            if fill: fill.pop(0)()
            if later: later.pop(0)()
        while fill: fill.pop(0)()
    while later: later.pop(0)()
    k(f"""
    s_mul_i32 s{sT0}, s{sBR}, 73728
    s_add_u32 s{sT0}, s{sT0}, {HB}
    s_and_b32 s{sT2}, s{sBC}, 1
    s_add_u32 s{sT2}, s{sT2}, 16
    s_lshl_b32 s{sT2}, s{sT2}, 2
    s_lshr_b32 s{sT3}, s{sBC}, 1
    s_add_u32 s{sT2}, s{sT2}, s{sT3}
    s_lshl_b32 s{sT2}, s{sT2}, 10
    s_lshl_b32 s{sT3}, s{sWV}, 9
    s_add_u32 s{sT2}, s{sT2}, s{sT3}
    s_add_u32 s{sT1}, s{sT2}, s{sT0}
    s_lshl_b32 s{sT2}, s{sBC}, 1
    s_lshr_b32 s{sT3}, s{sWV}, 1
    s_add_u32 s{sT2}, s{sT2}, s{sT3}
    s_lshl_b32 s{sT2}, s{sT2}, 12
    s_and_b32 s{sT3}, s{sWV}, 1
    s_lshl_b32 s{sT3}, s{sT3}, 9
    s_add_u32 s{sT2}, s{sT2}, s{sT3}
    s_add_u32 s{sT0}, s{sT0}, s{sT2}
    v_lshrrev_b32 v56, 1, v3
    v_lshlrev_b32 v56, 8, v56
    v_lshl_add_u32 v56, v2, 4, v56
    v_and_b32 v57, 1, v3
    v_lshl_add_u32 v4, v57, 10, v56
    v_lshl_add_u32 v5, v57, 3, v56
    s_lshl_b32 s{sT4}, s{sBR}, 3
    s_add_u32 s{sT4}, s{sT4}, s{sBC}
    s_lshl_b32 s{sT4}, s{sT4}, 2
    s_add_u32 s{sT4}, s{sT4}, s{sWV}
    s_lshl_b32 s{sT4}, s{sT4}, 2
    s_add_u32 s{sT4}, s{sT4}, {FH}
    """)
    for pb in range(2):
        o = 40 + 4*pb
        for q in range(4):
            a = 16 + 8*pb + 2*q; k(f"v_cvt_pk_bf16_f32 v{o+q}, v{a}, v{a+1}")
        k(f"v_permlane16_swap_b32 v{o}, v{o+2}"); k(f"v_permlane16_swap_b32 v{o+1}, v{o+3}")
        k.vm(f"buffer_store_dwordx4 {vr(o,4)}, v4, {sr(WS,4)}, s{sT0} offen offset:{2048*pb} sc1", "h")
    k("v_cvt_pk_bf16_f32 v48, v32, v33"); k("v_cvt_pk_bf16_f32 v49, v34, v35")
    L = k.label("nx")
    k(f"s_cmp_ge_u32 s{sWV}, 2"); k(f"s_cbranch_scc1 {L}")
    k.vm(f"buffer_store_dwordx2 v[48:49], v5, {sr(WS,4)}, s{sT1} offen sc1", "h", count=False)
    k(f"{L}:")
    g.ts("H.st")
    for seq in range(NP1, NP1 + NP2A): ring_load(g, seq)
    k.wait(vm="h"); g.flag(f"s{sT4}", 14, 6)
    g.ts("FH.set")
    for seq in range(NP1 + NP2A, NP1 + NP2A + NP2B): ring_load(g, seq)

from gen3 import phase_f
```

```python
from kgen import *
from gen import *
import gen2

HP = 73728
ID = 208
vG1B, vG2A, vG2B, vHP, vHP8, vP0, vP1, vOWN, vRS = 210, 211, 212, 213, 214, 215, 216, 217, 218
SQA, SQB, vFE, vFL = 220, 224, 232, 233
ORDER = list(range(8)) + [16, 17] + list(range(8, 16))
NSEQ = 324

def b_reads(g, src, kp, buf):
    k = g.k
    a = ((1, vG1B), (vG2A, vG2B))[src][kp >= 16]
    return [lambda mt=mt: k.ds(f"ds_read_b128 {vr(buf+4*mt,4)}, v{a} offset:{(kp & 15)*4096 + mt*1024}", ("fb", src, kp, buf))
            for mt in range(4)]

class Stream:
    def __init__(self): self.seq = 0; self.step = 0; self.ptr = gen2.RING
    def target(self):
        n = self.seq + 1
        lag = OPT["lag"] * min(n, 216) // 216
        return min(NSEQ, n + gen2.RING - lag)

def gpass(g, st, src, nblk, acc, nxt, fill, hooks={}, paced={}, rate=2, name=None):
    k = g.k
    order = list(range(18)) if src == 0 else ORDER
    for pos, kp in enumerate(order):
        buf = 160 + 16 * (st.step & 1); nb = 160 + 16 * ((st.step + 1) & 1)
        pre = [hooks[pos]] if pos in hooks else []
        if pos + 1 < 18: pre += b_reads(g, src, order[pos + 1], nb)
        elif nxt is not None: pre += b_reads(g, nxt, 0, nb)
        pre += paced.get(pos, [])
        if name and OPT["fine"] and pos % OPT["fine"] == 0 and pos: g.ts(f"{name}.{pos}")
        k.wait(ds=[("fb", src, kp, buf)])
        for b in range(nblk):
            k.wait(vm=("w", st.seq))
            for mt in range(4):
                d = vr(acc + 16*b + 4*mt, 4)
                g.mfma(d, ar(4 * (st.seq % gen2.RING), 4), vr(buf + 4*mt, 4), d if pos else None)
                n = 0
                if pre: pre.pop(0)(); n += 1
                if mt == 3 and st.ptr < st.target(): gen2.ring_load(g, st.ptr); st.ptr += 1; n += 1
                while fill and n < (rate - 1 if mt == 3 else rate): fill.pop(0)(); n += 1
            st.seq += 1
        while pre: pre.pop(0)()
        st.step += 1

def relu_ops(g, acc, pis, blk8):
    k = g.k; ops = []; n = 0
    for q, pi in enumerate(pis):
        for mt in range(4):
            t = 192 + 4 * (n & 3); n += 1
            for d in range(4):
                a = acc + 16 * (2*q + (d >> 1)) + 4*mt + 2*(d & 1)
                ops.append(lambda t=t, d=d, a=a: k(f"v_cvt_pk_bf16_f32 v{t+d}, v{a}, v{a+1}"))
            for d in range(4): ops.append(lambda t=t, d=d: k(f"v_pk_max_i16 v{t+d}, v{t+d}, 0"))
            ops.append(lambda t=t, pi=pi, mt=mt: k.ds(f"ds_write_b128 v{vHP}, {vr(t,4)} offset:{pi*16384 + mt*1024}", "hp"))
    if blk8 is not None:
        for mt in range(4):
            t = 192 + 4 * (n & 3); n += 1
            for d in range(2):
                a = acc + 16*blk8 + 4*mt + 2*d
                ops.append(lambda t=t, d=d, a=a: k(f"v_cvt_pk_bf16_f32 v{t+d}, v{a}, v{a+1}"))
            for d in range(2): ops.append(lambda t=t, d=d: k(f"v_pk_max_i16 v{t+d}, v{t+d}, 0"))
            ops.append(lambda t=t, mt=mt: k.ds(f"ds_write_b64 v{vHP8}, {vr(t,2)} offset:{mt*1024}", "hp"))
    return ops

def blk_index(g, dst, rel):
    k = g.k
    if rel == 0: k(f"s_add_u32 s{dst}, s{sA2}, 8")
    else:
        k(f"s_add_u32 s{dst}, s{sJ}, {rel}"); k(f"s_and_b32 s{dst}, s{dst}, 7"); k(f"s_add_u32 s{dst}, s{dst}, s{sA2}")

def part_ops(g, acc, rels, tag):
    k = g.k; ops = []; n = 0
    for b, rel in enumerate(rels):
        ops.append(lambda rel=rel: (blk_index(g, sT0, rel), k(f"s_lshl_b32 s{sT0}, s{sT0}, 16"), k(f"s_add_u32 s{sT0}, s{sT0}, s{sA3}")))
        for pb in range(2):
            t = 192 + 4 * (n & 3); n += 1
            for q in range(4):
                a = acc + 16*b + 8*pb + 2*q
                ops.append(lambda t=t, q=q, a=a: k(f"v_cvt_pk_bf16_f32 v{t+q}, v{a}, v{a+1}"))
            for q in range(2): ops.append(lambda t=t, q=q: k(f"v_permlane16_swap_b32 v{t+q}, v{t+q+2}"))
            ops.append(lambda t=t, pb=pb: k.vm(f"buffer_store_dwordx4 {vr(t,4)}, v{vP0+pb}, {sr(WS,4)}, s{sT0} offen sc1", tag))
    return ops

def part_flags(g, rels, tag):
    k = g.k
    k.wait(vm=tag); k("s_mov_b64 exec, 1")
    for rel in rels:
        blk_index(g, sT1, rel); k(f"s_lshl_b32 s{sT1}, s{sT1}, 7"); k(f"s_add_u32 s{sT1}, s{sT1}, s{sT5}")
        k.vm(f"buffer_store_dword v14, v6, {sr(WS,4)}, s{sT1} offen sc1")
    k("s_mov_b64 exec, -1")

def h_pieces(g, sblk, dst, tag, count=True):
    k = g.k
    k(f"s_lshl_b32 s{sT0}, s{sblk}, 13"); k(f"s_add_u32 s{sT0}, s{sT0}, s{sT4}"); k(f"s_add_u32 s{sT1}, s{sT0}, 4096")
    for e in range(4):
        k.vm(f"buffer_load_dwordx2 {vr(dst+2*e,2)}, v5, {sr(WS,4)}, s{sT0 if e < 2 else sT1} offen offset:{(e & 1)*512} sc1", tag, count)

def part_base(g, sblk):
    k = g.k
    k(f"""
    s_add_u32 s{sT2}, s{sA2}, s{sblk}
    s_lshl_b32 s{sT2}, s{sT2}, 16
    s_lshl_b32 s{sT1}, s{sWV}, 11
    s_add_u32 s{sT2}, s{sT2}, s{sT1}
    s_add_u32 s{sT2}, s{sT2}, {PB}
    """)

def part_loads(g, qs, regs, tag, count=True):
    k = g.k
    for q, rg in zip(qs, regs):
        k(f"s_add_u32 s{sT0}, s{sJ}, {q}"); k(f"s_and_b32 s{sT0}, s{sT0}, 7"); k(f"s_lshl_b32 s{sT0}, s{sT0}, 13")
        k(f"s_add_u32 s{sT0}, s{sT0}, s{sT2}")
        for c in range(2):
            k.vm(f"buffer_load_dwordx4 {rg(4*c,4)}, v1, {sr(WS,4)}, s{sT0} offen offset:{1024*c} sc1", (tag, q, c), count)

def part_sum(g, acc, qs, regs, tag, first):
    k = g.k
    for n, (q, rg) in enumerate(zip(qs, regs)):
        for c in range(2):
            k.wait(vm=(tag, q, c))
            for h in range(2):
                d = vr(acc + 8*c + 4*h, 4); g.mfma(d, vr(ID, 2), rg(4*c + 2*h, 2), None if first and n == 0 else d, k16=True)

def out_store(g, tmp, sblk, r):
    k = g.k
    if r == 1: k(f"s_lshl_b32 s{sT0}, s{sblk}, 7")
    k.vm(f"buffer_store_dwordx4 {vr(tmp+2*(r-1),4)}, v7, {sr(OS,4)}, s{sT0} offen offset:{8*(r-1)}")

def finish(g, acc, res, tmp, sblk):
    k = g.k
    for c in range(2):
        for r in range(4): k(f"v_permlane16_swap_b32 v{acc+8*c+r}, v{acc+4+8*c+r}")
    for e in range(4):
        for r in range(4): k(f"v_fma_f32 v{acc+4*e+r}, v{acc+4*e+r}, v{vRS}, v{res+4*e+r}")
    for r in range(4):
        for c in range(2): k(f"v_cvt_pk_bf16_f32 v{tmp+2*r+c}, v{acc+8*c+r}, v{acc+4+8*c+r}")
        if r & 1 and sblk is not None: out_store(g, tmp, sblk, r)

def stat_ops(g):
    k = g.k; a = SQA
    txt = [f"v_and_b32 v{a+4}, 3, v0", f"v_lshrrev_b32 v{a+5}, 2, v2"]
    for r in range(1, 4):
        txt += [f"v_cmp_eq_u32 vcc, {r}, v{a+4}", f"v_cndmask_b32 v{a}, v{a}, v{a+r}, vcc"]
    txt += [f"v_cmp_eq_u32 vcc, v{a+5}, v3", f"v_cndmask_b32 v{a}, 0, v{a}, vcc",
            f"v_mov_b32 v{a+1}, v{a}", f"v_permlane16_swap_b32 v{a}, v{a+1}", f"v_add_f32 v{a}, v{a}, v{a+1}",
            f"v_mov_b32 v{a+1}, v{a}", f"v_permlane32_swap_b32 v{a}, v{a+1}", f"v_add_f32 v{a}, v{a}, v{a+1}",
            f"v_fma_f32 v{a}, v{a}, s{sC1}, v15", f"v_rsq_f32 v{vRS}, v{a}"]
    return [lambda t=t: k(t) for t in txt]

def claim_ops(g):
    k = g.k; ops = []
    for rel in range(8):
        for pb in range(2):
            def f(rel=rel, pb=pb):
                blk_index(g, sT2, rel); k(f"s_lshl_b32 s{sT2}, s{sT2}, 16"); k(f"s_add_u32 s{sT2}, s{sT2}, s{sA3}")
                k.vm(f"buffer_store_dwordx4 v[228:231], v{vP0+pb}, {sr(WS,4)}, s{sT2} offen sc1", "claim")
            ops.append(f)
    return ops

def phase_f(g):
    k = g.k
    k(f"""
    s_lshl_b32 s{sT0}, s{sRF}, 7
    s_add_u32 s{sT0}, s{sT0}, {FH}
    s_mul_i32 s{sT4}, s{sRF}, 73728
    s_lshl_b32 s{sT1}, s{sWV}, 10
    s_add_u32 s{sT4}, s{sT4}, s{sT1}
    s_add_u32 s{sT4}, s{sT4}, {HB}
    v_and_b32 v56, 31, v0
    v_lshlrev_b32 v56, 2, v56
    v_lshlrev_b32 v57, 2, v3
    v_sub_u32 v57, v2, v57
    v_and_b32 v58, 1, v57
    v_lshlrev_b32 v58, 4, v58
    v_mov_b32 v59, 0x3f80
    v_lshlrev_b32 v58, v58, v59
    v_lshrrev_b32 v57, 1, v57
    v_cmp_eq_u32 vcc, 0, v57
    v_cndmask_b32 v{ID}, 0, v58, vcc
    v_cmp_eq_u32 vcc, 1, v57
    v_cndmask_b32 v{ID+1}, 0, v58, vcc
    v_add_u32 v{vG1B}, 0x10000, v1
    v_add_u32 v{vG2A}, {HP}, v1
    v_add_u32 v{vG2B}, {HP + 65536}, v1
    s_lshl_b32 s{sT2}, s{sWV}, 12
    v_add_u32 v{vHP}, s{sT2}, v{vG2A}
    s_lshr_b32 s{sT2}, s{sWV}, 1
    s_lshl_b32 s{sT3}, s{sT2}, 12
    s_and_b32 s{sA3}, s{sWV}, 1
    s_lshl_b32 s{sT5}, s{sA3}, 3
    s_add_u32 s{sT3}, s{sT3}, s{sT5}
    v_add_u32 v{vHP8}, s{sT3}, v{vG2B}
    s_lshl_b32 s{sT2}, s{sT2}, 10
    s_lshl_b32 s{sA3}, s{sA3}, 8
    s_add_u32 s{sA3}, s{sA3}, s{sT2}
    s_lshl_b32 s{sT2}, s{sJ}, 13
    s_add_u32 s{sA3}, s{sA3}, s{sT2}
    s_add_u32 s{sA3}, s{sA3}, {PB}
    s_mul_i32 s{sA2}, s{sRF}, 9
    s_lshl_b32 s{sT5}, s{sJ}, 2
    s_add_u32 s{sT5}, s{sT5}, s{sWV}
    s_lshl_b32 s{sT5}, s{sT5}, 2
    s_add_u32 s{sT5}, s{sT5}, {FP}
    v_and_b32 v57, 1, v3
    v_lshrrev_b32 v58, 1, v3
    v_lshlrev_b32 v58, 9, v58
    v_lshl_add_u32 v58, v57, 11, v58
    v_lshl_add_u32 v{vP0}, v2, 4, v58
    v_add_u32 v{vP1}, 0x1000, v{vP0}
    v_add_u32 v8, s{sT1}, v1
    v_add_u32 v9, 0x10000, v8
    v_add_u32 v{vOWN}, {AUX}, v8
    s_lshl_b32 s{sT2}, s{sRF}, 6
    s_lshl_b32 s{sT3}, s{sWV}, 4
    s_add_u32 s{sT2}, s{sT2}, s{sT3}
    v_add_u32 v7, s{sT2}, v2
    s_movk_i32 s{sT2}, 1152
    v_mul_u32_u24 v7, s{sT2}, v7
    v_lshl_add_u32 v7, v3, 5, v7
    """)
    for r in range(4): k(f"v_mov_b32 v{92+r}, {hex(ONE2)}")
    g.poll1(56, f"s{sT0}", 60)
    g.ts("FH.seen")
    k(f"s_mov_b32 s{sT0}, s{sT4}")
    for kk in range(18):
        k.vm(f"buffer_load_dwordx4 {vr(16+4*kk,4)}, v1, {sr(WS,4)}, s{sT0} offen sc1", ("h", kk))
        if kk < 17: k(f"s_add_u32 s{sT0}, s{sT0}, 4096")
    for seq in range(gen2.NP1 + gen2.NP2A + gen2.NP2B, gen2.RING): gen2.ring_load(g, seq)
    for kk in range(18):
        k.wait(vm=("h", kk)); g.mfma("v[88:91]", "v[92:95]", vr(16 + 4*kk, 4), "v[88:91]" if kk else None)
    g.ts("H.in")
    for r in range(4): k(f"v_mul_f32 v{88+r}, s{sC0}, v{88+r}")
    def cvt(kk):
        t = 96 + 8 * (kk % 3); o = 128 + 4 * (kk & 3)
        for d in range(4): k(f"v_cvt_pk_bf16_f32 v{o+d}, v{t+2*d}, v{t+2*d+1}")
        k.ds(f"ds_write_b128 v{8 if kk < 16 else 9}, {vr(o,4)} offset:{(kk & 15)*4096}")
    def gram(kk):
        o = vr(128 + 4 * (kk & 3), 4); g.mfma(vr(SQA, 4), o, o, vr(SQA, 4) if kk else None)
    for kk in range(18):
        t = 96 + 8 * (kk % 3)
        for h in range(2): g.mfma(vr(t + 4*h, 4), vr(ID, 2), vr(16 + 4*kk + 2*h, 2), "v[88:91]", k16=True)
        if kk >= 2: gram(kk - 2)
        if kk >= 1: cvt(kk - 1)
    cvt(17); gram(16); gram(17)
    k.wait(ds="all"); k("s_barrier")
    g.ts("F.start")
    st = Stream()
    for f in b_reads(g, 0, 0, 160): f()
    bar = lambda: (k.wait(ds=["hp"]), k("s_barrier"))
    def late_load():
        k(f"s_lshl_b32 s{sT0}, s{sJ}, 9"); k(f"s_add_u32 s{sT0}, s{sT0}, {FH}"); k("v_lshlrev_b32 v98, 3, v0")
        k.vm(f"buffer_load_dwordx2 v[96:97], v98, {sr(WS,4)}, s{sT0} offen sc1", "late")
    def late_check():
        k.wait(vm="late"); g.check(98, f"s{sT0}", 96, 2)
    sops = stat_ops(g); cl = claim_ops(g) if OPT["claim"] else []
    pa = {4: sops[:9], 5: sops[9:]}; pb_ = {}
    def w_touch(h):
        n0 = OPT["wpf"]; per = (NSEQ - n0) * 8 // 16
        k(f"s_lshr_b32 s{sT2}, s{sI}, 1"); k(f"s_mul_i32 s{sT2}, s{sT2}, {per*128}")
        k(f"s_add_u32 s{sT2}, s{sT2}, {n0*1024 + h*8192}"); k(f"s_add_u32 s{sT2}, s{sT2}, s{sA1}")
        k("v_lshlrev_b32 v228, 7, v0")
        m = min(per - 64*h, 64)
        if m < 64: g.setexec((1 << m) - 1)
        k.vm(f"buffer_load_dword v{229+h}, v228, {sr(WS,4)}, s{sT2} offen sc1", "wt")
        if m < 64: g.setexec(-1)
    if OPT["wpf"]:
        for h in range(((NSEQ - OPT["wpf"]) * 8 // 16 + 63) // 64): pa[10 + h] = [lambda h=h: w_touch(h)]
    for n, f in enumerate(cl):
        pos = OPT["c0"] + n * OPT["claim"]
        (pa if pos < 18 else pb_).setdefault(pos % 18, []).append(f); assert pos < 36
    gpass(g, st, 0, 5, 16, 0, [], {2: late_load, 9: late_check} if OPT['rsq'] >= 0 and OPT['rdy'] != 5 else {}, pa)
    g.ts("G1a")
    fill = relu_ops(g, 16, (0, 1), 4)
    gpass(g, st, 0, 4, 96, 1, fill, {17: bar}, pb_); assert not fill
    g.ts("G1b")
    fill = relu_ops(g, 96, (2, 3), None)
    def chk9():
        assert not fill
        bar()
    gpass(g, st, 1, 3, 16, 1, fill, {9: chk9})
    g.ts("P1")
    def flag_addr():
        k(f"""
        v_and_b32 v{vFL}, 31, v0
        v_lshrrev_b32 v48, 2, v{vFL}
        v_add_u32 v49, 4, v{vFL}
        v_and_b32 v49, 31, v49
        v_cmp_eq_u32 vcc, s{sJ}, v48
        v_cndmask_b32 v{vFL}, v{vFL}, v49, vcc
        v_lshlrev_b32 v{vFL}, 2, v{vFL}
        s_add_u32 s{sT0}, s{sJ}, 7
        v_bfe_u32 v48, v0, 2, 1
        v_sub_u32 v48, s{sT0}, v48
        v_and_b32 v48, 7, v48
        v_and_b32 v49, 3, v0
        v_lshl_add_u32 v48, v48, 2, v49
        s_lshl_b32 s{sT0}, s{sJ}, 5
        v_add_u32 v48, s{sT0}, v48
        v_add_u32 v49, 256, v0
        v_cmp_gt_u32 vcc, 32, v0
        v_cndmask_b32 v{vFE}, v48, v49, vcc
        v_lshlrev_b32 v{vFE}, 2, v{vFE}
        s_lshl_b32 s{sXB}, s{sA2}, 7
        s_add_u32 s{sXB}, s{sXB}, {FP}
        s_lshl_b32 s{sXB+1}, s{sJ}, 7
        s_add_u32 s{sXB+1}, s{sXB+1}, s{sXB}
        s_movk_i32 s{sXB+2}, 8
        """)
    fill = part_ops(g, 16, (0, 1, 2), "p1")
    gpass(g, st, 1, 3, 96, 1, fill, {12: flag_addr}, name="p2"); assert not fill
    g.ts("P2")
    fill = part_ops(g, 96, (3, 4, 5), "p2")
    gpass(g, st, 1, 2, 16, 1, fill, {OPT["f1"]: lambda: part_flags(g, (0, 1, 2), "p1"),
                                     14: lambda: h_pieces(g, sJ, 144, "hp")}, name="p3"); assert not fill
    g.ts("P3")
    V = lambda b: (lambda o, n: vr(b + o, n))
    A = lambda b: (lambda o, n: ar(b + o, n))
    R8 = [A(4 * (264 % gen2.RING) + 8*n) for n in range(8)]
    def owner(body):
        L = k.label("n8")
        k(f"s_lshl_b32 s{sT0}, s{sWV}, 1"); k(f"s_cmp_lg_u32 s{sT0}, s{sJ}"); k(f"s_cbranch_scc1 {L}")
        body(); k(f"{L}:")
    fill = part_ops(g, 16, (6, 7), "p3")
    def early_load():
        assert not fill
        k.vm(f"buffer_load_dword v60, v{vFE}, {sr(WS,4)}, s{sXB} offen sc1", "fe")
    def publish():
        part_flags(g, (3, 4, 5, 6, 7), "p3")
        g.ts("P4f")
        k.wait(vm="fe"); g.check(vFE, f"s{sXB}", 60, 1)
        part_base(g, sJ); part_loads(g, (7, 6), (V(48), V(56)), "pl")
        owner(lambda: (h_pieces(g, sXB + 2, 152, "h8", False), part_base(g, sXB + 2), part_loads(g, range(8), R8, "p8", False)))
    gpass(g, st, 1, 1, 96, None, fill, {OPT["f3"] - 1: early_load, OPT["f3"]: publish}, rate=OPT["r4"], name="p4")
    g.ts("P4")
    for mt in range(4): k.ds(f"ds_write_b128 v{vOWN}, {vr(96+4*mt,4)} offset:{mt*4096}")
    for e in range(4): g.mfma(vr(32 + 4*e, 4), vr(ID, 2), vr(144 + 2*e, 2), k16=True)
    k(f"s_mul_i32 s{sT0}, s{sWV}, 3072"); k(f"v_add_u32 v{vOWN}, s{sT0}, v{vOWN}")
    k.wait(ds="all"); k("s_barrier")
    for e in range(4): k.ds(f"ds_read_b128 {vr(160+4*e,4)}, v{vOWN} offset:{e*1024}", "own")
    part_sum(g, 16, (7, 6), (V(48), V(56)), "pl", True)
    k.wait(ds=["own"])
    for n in range(16): k(f"v_fma_f32 v{32+n}, v{160+n}, v{vRS}, v{32+n}")
    def block8():
        sv = list(k.vq)
        k.wait(vm="all")
        for e in range(4): g.mfma(vr(176 + 4*e, 4), vr(ID, 2), vr(152 + 2*e, 2), k16=True)
        part_sum(g, 112, range(8), R8, "p8", True)
        finish(g, 112, 176, 128, None)
        k.vq = sv
    owner(block8)
    part_base(g, sJ)
    g.ts("T.poll")
    g.poll(vFL, f"s{sXB+1}", 60)
    g.ts("T.seen")
    RL = [V(64 + 8*n) for n in range(5)]
    part_loads(g, (5, 4, 3, 2, 1), RL, "pl")
    part_sum(g, 16, (5, 4, 3, 2, 1), RL, "pl", False)
    finish(g, 16, 32, 140, sJ)
    owner(lambda: [out_store(g, 128, sXB + 2, r) for r in (1, 3)])
```

```python
import sys
from kgen import *

NAME = "sequential_preLN__linear_attn_block__dense_activation_relu__prompt"
FK, FW, FO, FH, FP = 0, 4096, 5120, 9216, 13312
ZERO_BYTES = 53248
KVP, OB, HB, WOT, WT, PB, PROF = 0x10000, 0x200000, 0x480000, 0x700000, 0x800000, 0x1300000, 0x3000000
WS_SIZE = 0x4000000
AUX = 147456
ST, CS, KVX = AUX + 12288, AUX + 13312, AUX + 13312
SPIN = 20000
WS, XS, QS, W1S, W2S, T2S, DS, OS = 4, 8, 12, 16, 20, 24, 28, 32
sWO = 36
sX, sI, sWV, sR, sP, sDL = 38, 39, 40, 41, 42, 43
sT0, sT1, sT2, sT3, sT4, sT5 = 44, 45, 46, 47, 48, 49
sV3, sDK, sCNT, sV2 = 50, 51, 52, 53
sRL = 56
sDM = 72
sPE, sPO = 74, 75
sMK = 76
sC0, sC1, sC2, sC3 = 78, 79, 80, 81
sTS = 82
sBR, sBC = 84, 85
sA0, sA1, sA2, sA3 = 86, 87, 88, 89
sXB = 90
sJ, sRF = 94, 95
T3S, sXD = 96, 100
sPH, sWK = 54, 55
OPT = dict(tq=2, we=0, te=0, tp=15, rc=20, nd=0, rl=0, dp=2, kvp=14, kvn=3, kvd=3, b22=2, touch=0, fmap=1, ptouch=0, rot=1, pre=3, rsq=2, np1=0, np2=8, np3=28, ring=60, lag=0, f1=6, f3=8, r4=5, claim=0, c0=1, fine=0, cpf=1, wpf=0, kl1=1, kl2=3, nt=1, rdy=5, nwo=8, ord=0, pipe=1, xr=1, r0=11, r1=13, kr=16, rn=4, xt=0, rq=8, wp=0, wm=1, ini=2, inf=0)
from perm import tables as _pt
PERM = _pt()
ONE2 = 0x3F803F80
def f2u(x):
    import struct
    return struct.unpack("<I", struct.pack("<f", x))[0]

class G:
    def __init__(self, stop=None, prof=False):
        self.k = Kern(); self.stop = stop; self.prof = prof; self.nts = 0; self.tsn = []; self.only = None; self.dbgwg = None
    def ts(self, name):
        if not self.prof: return
        if self.only is not None and name not in self.only: return
        k = self.k
        k(f"s_memtime s[{sTS}:{sTS+1}]"); k("s_waitcnt lgkmcnt(0)"); k.lq = []
        k(f"v_writelane_b32 v255, s{sTS}, {self.nts}")
        self.tsn.append(name); self.nts += 1
    def rt(self, lane):
        k = self.k
        k(f"s_memrealtime s[{sTS}:{sTS+1}]"); k("s_waitcnt lgkmcnt(0)"); k.lq = []
        k(f"v_writelane_b32 v255, s{sTS}, {lane}")
    def mfma(self, d, a, b, c=None, k16=False):
        op = "v_mfma_f32_16x16x16_bf16" if k16 else "v_mfma_f32_16x16x32_bf16"
        cc = "0" if c is None else c
        self.k(f"{op} {d}, {a}, {b}, {cc}")
    def setexec(self, m):
        k = self.k
        if m == -1: k("s_mov_b64 exec, -1")
        else:
            k(f"s_mov_b32 exec_lo, {hex(m & 0xffffffff)}"); k(f"s_mov_b32 exec_hi, {hex(m >> 32)}")
    def poll(self, vaddr, soff, vtmp, n=1, srd=WS):
        k = self.k; L = k.label("poll"); D = k.label("pdone")
        k(f"s_mov_b32 s{sCNT}, 0"); k(f"{L}:")
        sfx = {1: "dword", 2: "dwordx2", 4: "dwordx4"}[n]
        k(f"buffer_load_{sfx} {vr(vtmp, n)}, v{vaddr}, {sr(srd,4)}, {soff} offen sc1")
        k("s_waitcnt vmcnt(0)"); k.vq = []
        if n == 4:
            k(f"v_and_b32 v{vtmp}, v{vtmp}, v{vtmp+1}"); k(f"v_and_b32 v{vtmp+2}, v{vtmp+2}, v{vtmp+3}")
            k(f"v_and_b32 v{vtmp}, v{vtmp}, v{vtmp+2}")
        if n == 2: k(f"v_and_b32 v{vtmp}, v{vtmp}, v{vtmp+1}")
        k(f"v_cmp_ne_u32 vcc, 1, v{vtmp}")
        k(f"s_cbranch_vccz {D}")
        k(f"s_add_u32 s{sCNT}, s{sCNT}, 1"); k(f"s_cmp_lt_u32 s{sCNT}, {SPIN}"); k(f"s_cbranch_scc1 {L}")
        k(f"{D}:")
    def poll1(self, vaddr, soff, vtmp, wave=0):
        k = self.k; L = k.label("p1"); sv = list(k.vq)
        k(f"s_cmp_lg_u32 s{sWV}, {wave}"); k(f"s_cbranch_scc1 {L}")
        self.poll(vaddr, soff, vtmp)
        k(f"{L}:"); k("s_barrier"); k.vq = sv
    def check(self, vaddr, soff, vtmp, n, srd=WS):
        k = self.k; L = k.label("ok")
        if n == 4:
            k(f"v_and_b32 v{vtmp}, v{vtmp}, v{vtmp+1}"); k(f"v_and_b32 v{vtmp+2}, v{vtmp+2}, v{vtmp+3}")
            k(f"v_and_b32 v{vtmp}, v{vtmp}, v{vtmp+2}")
        if n == 2: k(f"v_and_b32 v{vtmp}, v{vtmp}, v{vtmp+1}")
        k(f"v_cmp_ne_u32 vcc, 1, v{vtmp}"); k(f"s_cbranch_vccz {L}")
        sv = list(k.vq); self.poll(vaddr, soff, vtmp, n=n, srd=srd); k.vq = sv
        k(f"{L}:")
    def flag(self, soff, vone, vzero, srd=WS):
        k = self.k
        k("s_mov_b64 exec, 1")
        k.vm(f"buffer_store_dword v{vone}, v{vzero}, {sr(srd,4)}, {soff} offen sc1")
        k("s_mov_b64 exec, -1")

    def prologue(self):
        k = self.k
        if self.prof: k(f"s_memtime s[{T3S}:{T3S+1}]")
        k(f"""
        s_cmp_ge_u32 s2, 256
        s_cbranch_scc1 L_end
        s_load_dwordx2 s[{XS}:{XS+1}], s[0:1], 0
        s_load_dwordx2 s[{QS}:{QS+1}], s[0:1], 8
        s_load_dwordx2 s[{WS}:{WS+1}], s[0:1], 64
        s_load_dwordx2 s[{sWO}:{sWO+1}], s[0:1], 16
        s_load_dwordx2 s[{W1S}:{W1S+1}], s[0:1], 32
        s_load_dwordx2 s[{W2S}:{W2S+1}], s[0:1], 40
        s_load_dwordx2 s[{OS}:{OS+1}], s[0:1], 48
        s_load_dwordx2 s[{DS}:{DS+1}], s[0:1], 56
        v_lshrrev_b32 v1, 6, v0
        v_lshlrev_b32 v15, 4, v0
        v_and_b32 v0, 63, v0
        v_readfirstlane_b32 s{sWV}, v1
        v_lshlrev_b32 v1, 4, v0
        v_and_b32 v2, 15, v0
        v_lshrrev_b32 v3, 4, v0
        s_and_b32 s{sX}, s2, 7
        s_lshr_b32 s{sI}, s2, 3
        s_and_b32 s{sT0}, s{sX}, 1
        s_lshl_b32 s{sT0}, s{sT0}, 3
        s_and_b32 s{sT1}, s{sI}, 7
        s_add_u32 s{sR}, s{sT0}, s{sT1}
        s_lshr_b32 s{sT0}, s{sX}, 1
        s_lshl_b32 s{sT0}, s{sT0}, 2
        s_lshr_b32 s{sT1}, s{sI}, 3
        s_add_u32 s{sP}, s{sT0}, s{sT1}
        s_and_b32 s{sDL}, s{sP}, 1
        s_lshl_b32 s{sDL}, s{sDL}, 3
        """)
        if OPT["cpf"] == 1: self.code_touch()
        for srd, size in ((WS, WS_SIZE), (XS, 2359296), (QS, 1990656), (W1S, 5308416), (W2S, 5308416), (DS, 256), (OS, 2359296)):
            k(f"s_mov_b32 s{srd+2}, {size}"); k(f"s_mov_b32 s{srd+3}, 0x20000")
        k(f"""
        s_lshl_b32 s{sT0}, s{sR}, 7
        s_lshl_b32 s{sT1}, s{sWV}, 5
        s_add_u32 s{sT0}, s{sT0}, s{sT1}
        s_mul_i32 s{sXB}, s{sT0}, 1152
        s_lshr_b32 s{sT1}, s{sI}, 3
        s_lshl_b32 s{sT1}, s{sT1}, {1 if OPT["rot"] < 2 else 0}
        s_and_b32 s{sPH}, s{sI}, 7
        s_add_u32 s{sPH}, s{sPH}, s{sT1}
        s_mul_i32 s{sT1}, s{sPH}, {(29, 29, 128, 86, 64)[OPT["rot"]]}
        s_lshr_b32 s{sT1}, s{sT1}, 8
        s_mul_i32 s{sT1}, s{sT1}, {(9, 9, 2, 3, 4)[OPT["rot"]]}
        s_sub_u32 s{sPH}, s{sPH}, s{sT1}
        s_mul_i32 s{sPH}, s{sPH}, {(0, 1, 4, 3, 2)[OPT["rot"]]}
        s_mul_i32 s{sWK}, s{sPH}, 221184
        s_lshl_b32 s{sT1}, s{sPH}, 7
        s_add_u32 s{sXB}, s{sXB}, s{sT1}
        s_add_u32 s{sXB+1}, s{sXB}, 9216
        s_add_u32 s{sXB+2}, s{sXB}, {2*9216}
        s_add_u32 s{sXB+3}, s{sXB}, {3*9216}
        v_lshrrev_b32 v16, 3, v0
        v_and_b32 v17, 6, v16
        v_xor_b32 v17, v17, v0
        v_and_b32 v17, 7, v17
        s_movk_i32 s{sT1}, 1152
        v_mul_u32_u24 v12, s{sT1}, v16
        v_lshl_add_u32 v12, v17, 4, v12
        """)
        k(f"""
        s_and_b32 s{sT0}, s{sWV}, 1
        """)
        if OPT["wp"]:
            self.perm_table(1, sT4)
            k(f"""
            s_lshl_b32 s{sT0}, s{sT0}, 1
            v_lshlrev_b32 v16, 2, v3
            v_sub_u32 v16, v2, v16
            v_and_b32 v16, 15, v16
            v_xor_b32 v16, s{sT0}, v16
            v_lshlrev_b32 v16, 2, v16
            v_lshrrev_b64 v[16:17], v16, s[{sT4}:{sT5}]
            """)
        else:
            k(f"""
            s_lshl_b32 s{sT0}, s{sT0}, 3
            v_lshl_add_u32 v16, v3, 1, s{sT0}
            v_sub_u32 v16, v2, v16
            """)
        k(f"""
        v_and_b32 v16, 15, v16
        v_cmp_ne_u32 s[{sDM}:{sDM+1}], 15, v16
        v_mul_u32_u24 v17, 52, v16
        v_lshrrev_b32 v17, 8, v17
        s_movk_i32 s{sT1}, 1072
        v_mul_u32_u24 v17, s{sT1}, v17
        v_lshl_add_u32 v17, v16, 4, v17
        s_movk_i32 s{sT1}, 3456
        v_mul_u32_u24 v13, s{sT1}, v3
        s_mul_i32 s{sT0}, s{sWV}, 27648
        s_mul_i32 s{sT1}, s{sP}, 72
        s_add_u32 s{sT0}, s{sT0}, s{sT1}
        s_sub_u32 s{sT0}, s{sT0}, s{sDL}
        v_add3_u32 v13, v13, v17, s{sT0}
        s_lshl_b32 s{sDK}, s{sWV}, 11
        s_waitcnt lgkmcnt(0)
        """)
        if self.prof:
            k("v_mov_b32 v255, 0"); self.rt(62)
        self.ts("start")
        if self.prof and (self.only is None or "entry" in self.only):
            k(f"v_writelane_b32 v255, s{T3S}, {self.nts}"); self.nts += 1; self.tsn.append("entry")
        L = k.label("nz")
        k(f"s_cmp_lg_u32 s2, 0"); k(f"s_cbranch_scc1 {L}")
        for r in range(4): k(f"v_mov_b32 v{20+r}, 0")
        for n in range(ZERO_BYTES // 4096):
            k(f"s_movk_i32 s{sT0}, {n*4096}" if n * 4096 < 32768 else f"s_mov_b32 s{sT0}, {n*4096}")
            k(f"buffer_store_dwordx4 v[20:23], v15, {sr(WS,4)}, s{sT0} offen sc1")
        k(f"{L}:")

    def perm_table(self, which, dst):
        k = self.k; T = PERM
        k(f"s_mul_i32 s{sT1}, s{sP}, 72"); k(f"s_sub_u32 s{sT1}, s{sT1}, s{sDL}"); k(f"s_and_b32 s{sT1}, s{sT1}, 0x70")
        k(f"s_mov_b32 s{dst}, {hex(T[5][which] & 0xffffffff)}"); k(f"s_mov_b32 s{dst+1}, {hex(T[5][which] >> 32)}")
        for a in (4, 3, 2, 1):
            k(f"s_cmp_eq_u32 s{sT1}, {128 - 16*a}")
            k(f"s_cselect_b32 s{dst}, {hex(T[a][which] & 0xffffffff)}, s{dst}")
            k(f"s_cselect_b32 s{dst+1}, {hex(T[a][which] >> 32)}, s{dst+1}")
    def slot_addr(self, reg, off, rowb, rot):
        k = self.k
        k(f"""
        v_lshrrev_b32 v22, 2, v{off}
        v_and_b32 v22, 60, v22
        v_lshrrev_b64 v[22:23], v22, s[{sA0}:{sA1}]
        v_xor_b32 v22, v22, v{rot+1}
        v_add_u32 v22, v22, v{rot}
        v_and_b32 v22, 15, v22
        v_and_b32 v{off}, 15, v{off}
        v_lshl_add_u32 v22, v22, 4, v{off}
        v_or_b32 v{reg}, v22, v{rowb}
        """)
    def code_touch(self):
        k = self.k
        k(f"s_getpc_b64 s[{sT2}:{sT3}]"); k("L_pc:")
        k(f"""
        s_lshl_b32 s{sT0}, s{sI}, 2
        s_add_u32 s{sT0}, s{sT0}, s{sWV}
        s_and_b32 s{sT0}, s{sT0}, 7
        s_lshl_b32 s{sT0}, s{sT0}, 13
        v_lshl_add_u32 v146, v0, 7, s{sT0}
        v_min_u32 v146, L_end-L_pc, v146
        v_mov_b32 v147, s{sT3}
        v_add_co_u32 v146, vcc, s{sT2}, v146
        v_addc_co_u32 v147, vcc, 0, v147, vcc
        """)
        k.vm("global_load_dword v146, v[146:147], off", "code")

    def x_stage(self, s):
        k = self.k
        if s < 8:
            k(f"s_cmp_eq_u32 s{sPH}, 8"); k(f"s_cselect_b32 s{sXD}, -8, 1")
            k(f"s_cselect_b32 s{sPH}, -1, s{sPH}"); k(f"s_add_u32 s{sPH}, s{sPH}, 1")
            k(f"s_lshl_b32 s{sXD}, s{sXD}, 7")
        for j in range(4):
            k(f"s_add_u32 m0, s{sDK}, {(2*s + 2 + (j >> 1))*8192 + (j & 1)*1024}")
            k.vm(f"buffer_load_dwordx4 v12, {sr(XS,4)}, s{sXB+j} offen lds", ("x", s))
            if s < 8: k(f"s_add_u32 s{sXB+j}, s{sXB+j}, s{sXD}")
    def x_ops(self, s):
        k = self.k; sl = 7 + s % 3
        def one(j):
            if j == 0 and s < 8:
                k(f"s_cmp_eq_u32 s{sPH}, 8"); k(f"s_cselect_b32 s{sA3}, -8, 1")
                k(f"s_cselect_b32 s{sPH}, -1, s{sPH}"); k(f"s_add_u32 s{sPH}, s{sPH}, 1")
                k(f"s_lshl_b32 s{sA3}, s{sA3}, 7")
            k(f"s_add_u32 m0, s{sDK}, {(2*sl + (j >> 1))*8192 + (j & 1)*1024}")
            k.vm(f"buffer_load_dwordx4 v12, {sr(XS,4)}, s{sXB+j} offen lds", ("x", s))
            if s < 8: k(f"s_add_u32 s{sXB+j}, s{sXB+j}, s{sA3}")
        return [lambda j=j: one(j) for j in range(4)]
    def x_read2(self, s):
        k = self.k
        for h in range(2):
            for mt in range(2):
                k.ds(f"ds_read_b128 {ar(((2*s+h)*2+mt)*4,4)}, v{140+h} offset:{(s % 3)*16384 + mt*8192}", ("xr", s))
        if s in (6, 7): self.ones()
    def relay_load_ops(self, t):
        k = self.k; b = sRL + 5*t; srd = (T2S, W2S, T3S)[t]
        def one(s):
            k.vm(f"buffer_load_dwordx2 {vr(200+16*t+2*s,2)}, v{128+t}, {sr(srd,4)}, s{b} offen" + (" nt" if OPT["nt"] else ""), ("rl", t))
            if s < 7: k(f"s_add_u32 s{b}, s{b}, s{b+2 if s == 3 else b+1}")
        return [lambda s=s: one(s) for s in range(8)]
    def w_half(self, kk):
        k = self.k
        k(f"s_mov_b64 exec, s[{sDM}:{sDM+1}]")
        k(f"s_add_u32 m0, s{sDK}, {kk*8192}")
        k(f"s_add_u32 s{sXD}, s{sWK}, {13824-1024}")
        k.vm(f"buffer_load_dwordx4 v13, {sr(QS,4)}, s{sWK} offen lds", ("st", kk >> 1))
        k.vm(f"buffer_load_dwordx4 v13, {sr(QS,4)}, s{sXD} offen offset:1024 lds", ("st", kk >> 1))
        k(f"s_add_u32 s{sWK}, s{sWK}, 110592")
        if kk & 1: k(f"s_cmp_eq_u32 s{sWK}, {18*110592}"); k(f"s_cselect_b32 s{sWK}, 0, s{sWK}")
        k("s_mov_b64 exec, -1")
    def w_stage(self, s):
        self.w_half(2*s); self.w_half(2*s + 1)
    def w_touch(self):
        k = self.k
        k(f"""
        s_lshl_b32 s{sT0}, s{sI}, 2
        s_add_u32 s{sT0}, s{sT0}, s{sWV}
        s_mul_i32 s{sT0}, s{sT0}, 81
        s_lshr_b32 s{sT1}, s{sX}, 1
        s_lshl_b32 s{sT1}, s{sT1}, 8
        s_movk_i32 s{sT2}, 1152
        s_mov_b32 s{sT3}, 43691
        """)
        for h in range(2):
            k(f"""
            v_add_u32 v16, s{sT0}, v0
            v_mul_u32_u24 v17, s{sT3}, v16
            v_lshrrev_b32 v17, 18, v17
            v_mul_u32_u24 v18, 6, v17
            v_sub_u32 v18, v16, v18
            v_mul_u32_u24 v17, s{sT2}, v17
            v_lshl_add_u32 v17, v18, 6, v17
            """)
            if h: k("s_mov_b64 exec, 0x1ffff")
            k.vm(f"buffer_load_dword v{144+h}, v17, {sr(QS,4)}, s{sT1} offen", "touch")
            if h: k("s_mov_b64 exec, -1")
            else: k(f"s_add_u32 s{sT0}, s{sT0}, 64")
    def x_touch(self):
        k = self.k
        k(f"""
        s_lshl_b32 s{sT0}, s{sI}, 2
        s_add_u32 s{sT0}, s{sT0}, s{sWV}
        s_and_b32 s{sT1}, s{sX}, 1
        s_lshl_b32 s{sT1}, s{sT1}, 7
        s_add_u32 s{sT0}, s{sT0}, s{sT1}
        s_mul_i32 s{sT0}, s{sT0}, 9216
        s_add_u32 s{sT0}, s{sT0}, 128
        s_movk_i32 s{sT1}, 1152
        v_lshrrev_b32 v16, 3, v0
        v_mul_u32_u24 v16, s{sT1}, v16
        v_and_b32 v17, 7, v0
        v_lshl_add_u32 v16, v17, 7, v16
        """)
        k.vm(f"buffer_load_dword v148, v16, {sr(XS,4)}, s{sT0} offen", "touch")
    def x_read(self, s):
        k = self.k
        if s in (4, 8):
            for a in (140, 141): k(f"v_add_u32 v{a}, 0x10000, v{a}")
        for h in range(2):
            for mt in range(2):
                k.ds(f"ds_read_b128 {ar(((2*s+h)*2+mt)*4,4)}, v{140+h} offset:{(s & 3)*16384 + mt*8192}", ("xr", s))
        if s < 8: self.ones()
    def ones(self):
        k = self.k
        k("s_mov_b64 exec, 0xffff")
        k.ds("ds_write_b128 v142, v[124:127]")
        k("s_mov_b64 exec, -1")
        k("v_add_u32 v142, 0x4000, v142")

    def setup_a(self):
        k = self.k
        for r in range(4): k(f"v_mov_b32 v{124+r}, {hex(ONE2)}")
        k(f"""
        s_and_b32 s{sT0}, s{sWV}, 1
        """)
        if OPT["wp"]:
            self.perm_table(0, sA0)
            k(f"""
            s_lshl_b32 s{sT0}, s{sT0}, 1
            s_lshr_b32 s{sT1}, s{sA1}, 28
            s_xor_b32 s{sT0}, s{sT0}, s{sT1}
            v_and_b32 v16, 3, v0
            v_lshl_add_u32 v16, v16, 2, s{sT0}
            """)
        else:
            k(f"""
            s_lshl_b32 s{sT0}, s{sT0}, 3
            s_add_u32 s{sT0}, s{sT0}, 15
            v_and_b32 v16, 3, v0
            v_lshl_add_u32 v16, v16, 1, s{sT0}
            """)
        k(f"""
        v_and_b32 v16, 15, v16
        v_and_b32 v17, 7, v0
        v_lshlrev_b32 v18, 8, v17
        v_lshl_add_u32 v16, v16, 4, v18
        v_bfe_u32 v18, v0, 3, 1
        v_lshl_add_u32 v16, v18, 13, v16
        v_add_u32 v142, s{sDK}, v16
        v_and_b32 v16, 6, v0
        v_xor_b32 v16, v16, v3
        v_lshlrev_b32 v16, 4, v16
        v_lshl_add_u32 v16, v17, 7, v16
        v_lshl_add_u32 v143, v18, 10, v16
        s_add_u32 s{sT0}, s{sDK}, {7*16384 if OPT["pipe"] else 16384}
        v_add_u32 v140, s{sT0}, v143
        v_xor_b32 v141, 64, v140
        """)
        for _ in range(7 if OPT["pipe"] else 1): self.ones()
    def setup_b(self):
        if not OPT["wp"]: return self.setup_b0()
        k = self.k
        k(f"""
        v_lshrrev_b32 v16, 2, v2
        v_and_b32 v17, 3, v0
        v_lshl_add_u32 v19, v3, 3, v16
        v_lshlrev_b32 v19, 8, v19
        v_lshlrev_b32 v24, 2, v16
        v_and_b32 v25, 1, v3
        v_lshlrev_b32 v25, 1, v25
        v_lshl_add_u32 v20, v17, 3, s{sDL}
        """)
        for reg, off in ((4, 80), (5, 120), (6, 160), (7, 200), (9, 0), (10, 40)):
            k(f"v_add_u32 v21, {off}, v20"); self.slot_addr(reg, 21, 19, 24)
        k(f"v_mov_b32 v21, s{sDL}"); k("v_add_u32 v21, 32, v21"); self.slot_addr(11, 21, 19, 24)
        k(f"""
        v_mov_b32 v21, 112
        v_mov_b32 v22, 192
        v_cmp_eq_u32 vcc, 3, v17
        v_cndmask_b32 v21, v21, v22, vcc
        v_add_u32 v21, s{sDL}, v21
        v_mov_b32 v22, 248
        v_cmp_eq_u32 vcc, 0, v17
        v_cndmask_b32 v21, v21, v22, vcc
        """)
        self.slot_addr(8, 21, 19, 24)
    def setup_b0(self):
        k = self.k
        k(f"""
        v_lshrrev_b32 v16, 2, v2
        v_and_b32 v17, 3, v0
        v_and_b32 v18, 1, v3
        v_lshl_add_u32 v18, v18, 2, v16
        v_lshlrev_b32 v18, 5, v18
        v_add_u32 v18, s{sDL}, v18
        v_lshl_add_u32 v19, v3, 3, v16
        v_lshlrev_b32 v19, 8, v19
        v_lshl_add_u32 v20, v17, 3, v18
        s_movk_i32 s{sT0}, 255
        """)
        for reg, off in ((4, 80), (5, 120), (6, 160), (7, 200), (9, 0), (10, 40)):
            k(f"v_add_u32 v21, {off}, v20"); k(f"v_and_or_b32 v{reg}, v21, s{sT0}, v19")
        k(f"v_add_u32 v21, 32, v18"); k(f"v_and_or_b32 v11, v21, s{sT0}, v19")
        k(f"""
        v_mov_b32 v21, 112
        v_mov_b32 v22, 192
        v_cmp_eq_u32 vcc, 3, v17
        v_cndmask_b32 v21, v21, v22, vcc
        s_sub_u32 s{sT1}, 248, s{sDL}
        v_mov_b32 v22, s{sT1}
        v_cmp_eq_u32 vcc, 0, v17
        v_cndmask_b32 v21, v21, v22, vcc
        v_add_u32 v21, v21, v18
        v_and_or_b32 v8, v21, s{sT0}, v19
        """)
    def setup_c(self):
        k = self.k
        for reg, bits, one in ((248, 0x111, 1), (249, 0x3000, 0), (250, 0x222, 1), (251, 0xC000, 0),
                               (252, 0x30, 0), (253, 0xC00, 0), (254, 0x300, 0), (131, 0xC0, 0)):
            k(f"s_mov_b32 s{sT1}, {hex(bits)}"); k(f"v_bfe_i32 v{reg}, s{sT1}, v2, 1")
            if one: k(f"v_and_b32 v{reg}, {hex(ONE2)}, v{reg}")
        k(f"s_mov_b32 s{sPE}, 0x05040100"); k(f"s_mov_b32 s{sPO}, 0x07060302")

    def lane_off(self, t, c1, c2):
        k = self.k
        k(f"""
        v_and_b32 v16, 1, v3
        v_lshrrev_b32 v17, 1, v3
        v_mul_lo_u32 v16, v16, s{c1}
        v_mul_lo_u32 v17, v17, s{c2}
        v_lshlrev_b32 v18, 3, v2
        v_add3_u32 v{128+t}, v16, v17, v18
        """)
    def p_w1(self, t, n):
        k = self.k; b = sRL + 5*t; A, B, C, D = sT0, sT1, sT2, sT3
        k(f"""
        s_mul_i32 s{A}, s{n}, 205
        s_lshr_b32 s{A}, s{A}, 10
        s_mul_i32 s{B}, s{A}, 5
        s_sub_u32 s{B}, s{n}, s{B}
        s_cmp_eq_u32 s{B}, 4
        s_cselect_b32 s{B}, 8, s{B}
        s_sub_u32 s{C}, s{n}, 90
        s_and_b32 s{D}, s{C}, 3
        s_add_u32 s{D}, s{D}, 4
        s_lshr_b32 s{C}, s{C}, 2
        s_cmp_lt_u32 s{n}, 90
        s_cselect_b32 s{A}, s{A}, s{C}
        s_cselect_b32 s{B}, s{B}, s{D}
        s_lshr_b32 s{C}, s{A}, 1
        s_lshl_b32 s{C}, s{C}, 6
        s_and_b32 s{D}, s{A}, 1
        s_lshl_b32 s{D}, s{D}, 1
        s_add_u32 s{C}, s{C}, s{D}
        s_mul_i32 s{C}, s{C}, 9216
        s_lshl_b32 s{B}, s{B}, 7
        s_add_u32 s{C}, s{C}, s{B}
        s_mul_i32 s{D}, s{sX}, 1152
        s_add_u32 s{b}, s{C}, s{D}
        s_mov_b32 s{b+1}, {4*9216}
        s_mov_b32 s{b+2}, {16*9216 - 12*9216}
        s_mul_i32 s{C}, s{sX}, {4*324*1024}
        s_lshl_b32 s{D}, s{n}, 10
        s_add_u32 s{C}, s{C}, s{D}
        s_add_u32 s{b+3}, s{C}, {WT}
        s_mov_b32 s{b+4}, {324*1024}
        s_mov_b32 s{A}, {32*9216}
        s_mov_b32 s{B}, 9216
        """)
    def p_w2(self, t, n):
        k = self.k; b = sRL + 5*t; A, B, C, D, E = sT0, sT1, sT2, sT3, sT4
        k(f"""
        s_cmp_ge_u32 s{n}, 54
        s_cselect_b32 s{A}, 54, 0
        s_cselect_b32 s{B}, 3, 0
        s_sub_u32 s{A}, s{n}, s{A}
        s_mul_i32 s{C}, s{A}, 171
        s_lshr_b32 s{C}, s{C}, 9
        s_mul_i32 s{D}, s{C}, 3
        s_sub_u32 s{A}, s{A}, s{D}
        s_add_u32 s{B}, s{B}, s{A}
        s_sub_u32 s{A}, s{n}, 108
        s_and_b32 s{D}, s{A}, 1
        s_add_u32 s{D}, s{D}, 6
        s_lshr_b32 s{A}, s{A}, 1
        s_cmp_ge_u32 s{n}, 108
        s_cselect_b32 s{C}, s{A}, s{C}
        s_cselect_b32 s{B}, s{D}, s{B}
        s_sub_u32 s{A}, s{n}, 144
        s_cmp_ge_u32 s{n}, 144
        s_cselect_b32 s{C}, s{A}, s{C}
        s_cselect_b32 s{B}, 8, s{B}
        s_add_u32 s{A}, s{sX}, s{B}
        s_and_b32 s{A}, s{A}, 7
        s_cmp_eq_u32 s{B}, 0
        s_cselect_b32 s{A}, 8, s{A}
        s_lshl_b32 s{A}, s{A}, 7
        s_add_u32 s{B}, s{C}, 8
        s_sub_u32 s{D}, s{C}, 2
        s_cmp_lt_u32 s{C}, 10
        s_cselect_b32 s{B}, s{B}, s{D}
        s_cmp_lt_u32 s{C}, 8
        s_cselect_b32 s{C}, s{C}, s{B}
        s_lshr_b32 s{B}, s{C}, 2
        s_lshl_b32 s{B}, s{B}, 7
        s_and_b32 s{D}, s{C}, 3
        s_add_u32 s{B}, s{B}, s{D}
        s_lshl_b32 s{D}, s{C}, 1
        s_add_u32 s{D}, s{D}, 480
        s_mov_b32 s{E}, {1152 - 12*1152 + (1 << 32)}
        s_cmp_lt_u32 s{C}, 16
        s_cselect_b32 s{B}, s{B}, s{D}
        s_cselect_b32 s{b+2}, {64*1152 - 12*1152}, s{E}
        s_mul_i32 s{D}, s{sX}, 576
        s_add_u32 s{B}, s{B}, s{D}
        s_mul_i32 s{B}, s{B}, 1152
        s_add_u32 s{b}, s{B}, s{A}
        s_mov_b32 s{b+1}, {4*1152}
        s_mul_i32 s{C}, s{sX}, {4*324*1024}
        s_lshl_b32 s{D}, s{n}, 10
        s_add_u32 s{C}, s{C}, s{D}
        s_add_u32 s{b+3}, s{C}, {WT + 162*1024}
        s_mov_b32 s{b+4}, {324*1024}
        s_mov_b32 s{A}, {16*1152}
        s_mov_b32 s{B}, {32*1152}
        """)
    def p_wo(self, t, n):
        k = self.k; b = sRL + 5*t; A, B, C, D, E = sT0, sT1, sT2, sT3, sT4
        k(f"""
        s_mul_i32 s{A}, s{n}, 57
        s_lshr_b32 s{A}, s{A}, 10
        s_mul_i32 s{B}, s{A}, 18
        s_sub_u32 s{B}, s{n}, s{B}
        s_mul_i32 s{C}, s{A}, {4*18*1024}
        s_lshl_b32 s{D}, s{B}, 10
        s_add_u32 s{C}, s{C}, s{D}
        s_add_u32 s{b+3}, s{C}, {WOT}
        s_mov_b32 s{b+4}, {18*1024}
        s_mul_i32 s{C}, s{B}, 36
        s_mul_i32 s{D}, s{B}, 288
        s_sub_u32 s{D}, s{D}, {288*16 - 16}
        s_mov_b32 s{E}, {33*1152}
        s_cmp_lt_u32 s{B}, 16
        s_cselect_b32 s{C}, s{C}, s{D}
        s_cselect_b32 s{b+2}, {17*1152}, s{E}
        s_mov_b32 s{E}, {72*1152}
        s_cselect_b32 s{E}, {4*1152}, s{E}
        s_mul_i32 s{C}, s{C}, 1152
        s_lshl_b32 s{A}, s{A}, 7
        s_add_u32 s{b}, s{C}, s{A}
        s_mov_b32 s{b+1}, 1152
        s_mov_b32 s{A}, s{E}
        s_lshl_b32 s{B}, s{E}, 1
        """)
    def relay_params(self, early):
        k = self.k; n = sT5
        k(f"s_lshl_b32 s{n}, s{sI}, 2"); k(f"s_add_u32 s{n}, s{n}, s{sWV}")
        if OPT["wm"] and early == 0:
            k(f"s_cmp_lt_u32 s{sX}, 4"); k(f"s_cselect_b32 s{sT0}, 32, 0"); k(f"s_xor_b32 s{n}, s{n}, s{sT0}")
        LB, LD = k.label("tb"), k.label("td")
        if early == 0:
            k(f"s_mov_b32 s{T2S+3}, 0x20000")
            k(f"""
            s_cmp_lt_u32 s{n}, 107
            s_cselect_b64 s[{T2S}:{T2S+1}], s[{W1S}:{W1S+1}], s[{sWO}:{sWO+1}]
            s_mov_b32 s{T2S+2}, 663552
            s_cselect_b32 s{T2S+2}, 5308416, s{T2S+2}
            s_mov_b32 s{sV2}, 1
            s_cbranch_scc0 {LB}
            """)
            self.p_w1(0, n); k(f"s_branch {LD}"); k(f"{LB}:")
            k(f"""
            s_sub_u32 s{n}, s{n}, 107
            s_lshl_b32 s{n}, s{n}, 3
            s_add_u32 s{n}, s{n}, s{sX}
            s_cmp_lt_u32 s{n}, 162
            s_cselect_b32 s{sV2}, 1, 0
            s_cselect_b32 s{n}, s{n}, 0
            """)
            self.p_wo(0, n); self.void(0, sV2); k(f"{LD}:")
            self.lane_off(0, sT0, sT1)
        elif early == 1:
            self.p_w2(1, n); self.lane_off(1, sT0, sT1)
        else:
            k(f"""
            s_mov_b32 s{T3S+3}, 0x20000
            s_cmp_lt_u32 s{n}, 89
            s_cselect_b32 s{sV3}, 1, 0
            s_cmp_lt_u32 s{n}, 55
            s_cselect_b64 s[{T3S}:{T3S+1}], s[{W1S}:{W1S+1}], s[{W2S}:{W2S+1}]
            s_mov_b32 s{T3S+2}, 5308416
            s_cbranch_scc0 {LB}
            s_add_u32 s{n}, s{n}, 107
            """)
            self.p_w1(2, n); k(f"s_branch {LD}"); k(f"{LB}:")
            k(f"s_add_u32 s{n}, s{n}, 73"); k(f"s_min_u32 s{n}, s{n}, 161")
            self.p_w2(2, n); self.void(2, sV3); k(f"{LD}:")
            self.lane_off(2, sT0, sT1)
    def void(self, t, valid):
        k = self.k; b = sRL + 5*t
        k(f"s_cmp_eq_u32 s{valid}, 0")
        k(f"s_cselect_b32 s{b}, 0x7f000000, s{b}"); k(f"s_cselect_b32 s{b+3}, 0x7f000000, s{b+3}")
    def relay_loads(self, t):
        k = self.k; b = sRL + 5*t; srd = (T2S, W2S, T3S)[t]
        k(f"s_mov_b32 s{sT2}, s{b}")
        for s in range(8):
            k.vm(f"buffer_load_dwordx2 {vr(200+16*t+2*s,2)}, v{128+t}, {sr(srd,4)}, s{sT2} offen" + (" nt" if OPT["nt"] else ""), ("rl", t))
            if s < 7: k(f"s_add_u32 s{sT2}, s{sT2}, s{b+2 if s == 3 else b+1}")
    def relay_store_ops(self, t, tmp):
        k = self.k; b = sRL + 5*t; ops = []
        for e in range(4):
            o = tmp + 4*e
            for d in range(4):
                lo = 200+16*t+2*(2*d)+(e >> 1); hi = lo + 2
                ops.append(lambda o=o, d=d, lo=lo, hi=hi, e=e: k(f"v_perm_b32 v{o+d}, v{hi}, v{lo}, s{sPO if e & 1 else sPE}"))
            ops.append(lambda o=o: (k.vm(f"buffer_store_dwordx4 {vr(o,4)}, v1, {sr(WS,4)}, s{b+3} offen sc1", ("rs", t)),
                                    k(f"s_add_u32 s{b+3}, s{b+3}, s{b+4}")))
        return ops
    def relay_stores(self, t, tmp):
        for f in self.relay_store_ops(t, tmp): f()

    def tr_reads(self, kk, addrs, buf):
        k = self.k; out = []
        for T, a in enumerate(addrs):
            for h in range(2):
                off = (kk & 7) * 8192 + 1024 * h
                out.append(lambda T=T, a=a, h=h, off=off: k.ds(
                    f"ds_read_b64_tr_b16 {vr(buf+4*T+2*h,2)}, v{a} offset:{off}", ("b", kk)))
        return out
    def bump(self, addrs):
        for a in addrs: self.k(f"v_add_u32 v{a}, 0x10000, v{a}")

    def kloop_pipe(self):
        k = self.k
        XR = [None] + ([0, 2, 4, 6, 8, 10, 12, 14], [0, 1, 3, 4, 6, 7, 9, 10], [0, 1, 2, 3, 4, 5, 6, 7])[OPT["xr"]]
        WK = {h: max(h - 6, XR[(h >> 1) - 1] + 1 if h >= 14 else 0) for h in range(6, 18)}
        if OPT["xt"] == 1: self.x_touch()
        if OPT["touch"] == 1: self.w_touch()
        R5 = OPT["rdy"] == 5
        chunks = [self.setup_a, self.setup_b, lambda: self.relay_params(0), self.setup_c,
                  lambda: self.relay_params(1), lambda: self.relay_params(2)]
        def wot_only(fs):
            L = k.label("wo"); sv = list(k.vq)
            k(f"s_cmp_eq_u32 s{T2S+2}, 663552"); k(f"s_cbranch_scc0 {L}")
            for f in fs: f()
            k(f"{L}:"); k.vq = sv
        INI = OPT["ini"]
        for s in range(3):
            if s == 1 and R5:
                chunks.pop(2)(); wot_only(self.relay_load_ops(0))
            if s < 2 or INI >= 3: self.w_stage(s)
            if s == 0 and OPT["cpf"] == 2: self.code_touch()
            if s == 2: chunks.pop(0)()
            if s < 2 or INI >= 2:
                for f in self.x_ops(s): f()
            if s == 0 and OPT["cpf"] == 3: self.code_touch()
            if s == 0 and OPT["xt"] == 2: self.x_touch()
            if s == 0 and OPT["touch"] == 3: self.w_touch()
            if s == 1 and OPT["xt"] == 3: self.x_touch()
            if s == 1 and OPT["touch"] == 2: self.w_touch()
            if s == 1: chunks.pop(0)()
        while chunks: chunks.pop(0)()
        self.ts("issued")
        KA = [4, 5, 6, 7, 8]
        k.wait(vm=("x", 0), ds="all")
        self.ts("x0")
        L = k.label("ng")
        k("s_cmp_lg_u32 s2, 0"); k(f"s_cbranch_scc1 {L}"); k("s_barrier")
        k("v_mov_b32 v16, 1"); k("v_mov_b32 v17, 0"); k("s_mov_b64 exec, 1")
        k(f"buffer_store_dword v16, v17, {sr(DS,4)}, 0 offen sc1"); k("s_mov_b64 exec, -1"); k(f"{L}:")
        self.x_read2(0)
        k("s_barrier")
        self.ts("A.first")
        for f in self.tr_reads(0, KA, 64): f()
        first = self.x_ops(2) if INI < 2 else []
        if INI < 3: first += [lambda: self.w_half(4), lambda: self.w_half(5)]
        k.wait(ds=[("xr", 0)])
        first += self.x_ops(3)
        if not OPT["inf"]:
            while first: first.pop(0)()
        rl = [self.relay_load_ops(t) for t in range(3)]
        late = rl[1] + rl[2]
        KR = OPT["kr"]; rs0 = None
        for kk in range(18):
            buf = 64 + 20 * (kk & 1)
            fill = []; xs = XR.index(kk) if kk in XR else None
            if xs is not None: fill.append(lambda s=xs: (k.wait(vm=("x", s)), self.x_read2(s)))
            if kk + 1 < 18:
                if (kk + 1) % 2 == 0:
                    fill.append(lambda s=(kk+1)//2: (k.wait(vm=("st", s)), k("s_barrier")))
                if (kk + 1) % 8 == 0: fill.append(lambda: self.bump(KA))
                fill += self.tr_reads(kk + 1, KA, 64 + 20 * ((kk + 1) & 1))
            vq = first; first = []
            for h in range(6, 18):
                if WK[h] == kk:
                    vq.append(lambda h=h: (k.wait(ds=[("xr", (h >> 1) - 1)]) if h >= 14 else None, self.w_half(h)))
            if xs is not None and xs + 3 < 9:
                xo = self.x_ops(xs + 3)
                vq.append(lambda s=xs, f=xo[0]: (k.wait(ds=[("xr", s)]), f())); vq += xo[1:]
            if kk >= OPT["r0"]:
                for _ in range(OPT["rn"]):
                    if rl[0]: vq.append(rl[0].pop(0))
            if kk >= OPT["r1"]:
                for _ in range(OPT["rn"] if kk < 17 else 16):
                    if late: vq.append(late.pop(0))
            pos = 3
            for f in vq:
                fill.insert(min(pos, len(fill)), f); pos += 2
            if R5:
                if kk == 2:
                    fill.append(lambda: wot_only(self.relay_store_ops(0, 184) + [lambda: (
                        k(f"s_mov_b32 s{sRL}, 0x7f000000"), k(f"s_mov_b32 s{sRL+3}, 0x7f000000"))]))
            else:
                if kk == KR:
                    rs0 = self.relay_store_ops(0, 184); fill.append(lambda: k.wait(vm=("rl", 0)))
                if kk in (KR, KR + 1):
                    for _ in range(10): fill.append(rs0.pop(0))
            if kk == KR + 1:
                fill.append(lambda: (k("v_mov_b32 v14, 0"), k.vm(f"buffer_load_dword v14, v14, {sr(DS,4)}, 0 offen sc1", "gate")))
            k.wait(ds=[("b", kk), ("xr", kk >> 1)])
            ms = []
            for T in range(5):
                for mt in range(2):
                    d = vr(16 + 8*T + 4*mt, 4)
                    ms.append((d, ar((kk*2+mt)*4, 4), vr(buf + 4*T, 4), d if kk else None))
            for mt in range(2):
                d = vr(56 + 4*mt, 4); xa = ar((kk*2+mt)*4, 4)
                ms.append((d, xa, xa, d if kk else None))
            for n, m in enumerate(ms):
                self.mfma(*m)
                for _ in range(-(-len(fill) // (12 - n)) if len(fill) > 12 - n else 1):
                    if fill: fill.pop(0)()
            L = k.label("cs")
            k(f"s_cmp_lg_u32 s{sWV}, {kk & 3}"); k(f"s_cbranch_scc1 {L}")
            for T in range(5):
                d = vr(104 + 4*T, 4); self.mfma(d, "v[124:127]", vr(buf + 4*T, 4), d if kk >= 4 else None)
            k(f"{L}:")
            while fill: fill.pop(0)()
            if OPT["fine"] == 99 and kk & 1 and kk < 17: self.ts(f"a.{kk}")

    def phase_a(self):
        if OPT["pipe"]: self.kloop_pipe()
        else: self.kloop_flat()
        self.a_epilogue()
    def kloop_flat(self):
        k = self.k
        if OPT["ord"] == 1: self.x_stage(0)
        if OPT["fine"] == 99: self.ts("i.a")
        if OPT["touch"] == 1: self.w_touch()
        if OPT["fine"] == 99: self.ts("i.b")
        self.w_stage(0)
        if OPT["fine"] == 99: self.ts("i.c")
        if OPT["cpf"] == 2: self.code_touch()
        chunks = [self.setup_a, lambda: self.relay_params(0), self.setup_b, self.setup_c,
                  lambda: self.relay_params(1), lambda: self.relay_params(2)]
        for s in range(9):
            if s or OPT["ord"] != 1: self.x_stage(s)
            if s == 1 and OPT["touch"] == 2: self.w_touch()
            if s == 0 and OPT["cpf"] == 3: self.code_touch()
            if s >= 1 and chunks: chunks.pop(0)()
            if OPT["fine"] == 99 and s in (0, 2, 4, 6, 8): self.ts(f"i.{s}")
        self.relay_loads(0)
        self.ts("issued")
        KA = [4, 5, 6, 7, 8]
        PRE = OPT["pre"]
        for s in range(PRE):
            k.wait(vm=("x", s))
            if s == 0:
                self.ts("x0")
                L = k.label("ng")
                k("s_cmp_lg_u32 s2, 0"); k(f"s_cbranch_scc1 {L}"); k("s_barrier")
                k("v_mov_b32 v16, 1"); k("v_mov_b32 v17, 0"); k("s_mov_b64 exec, 1")
                k(f"buffer_store_dword v16, v17, {sr(DS,4)}, 0 offen sc1"); k("s_mov_b64 exec, -1"); k(f"{L}:")
            self.x_read(s)
            if s > 0: k.wait(ds=[("xr", s - 1)]); self.w_stage(s)
        k("s_barrier")
        self.ts("A.first")
        for f in self.tr_reads(0, KA, 64): f()
        rs0 = None
        for kk in range(18):
            buf = 64 + 20 * (kk & 1)
            fill = []; nx = (kk >> 1) + PRE
            if nx < 9 and kk & 1 == 0:
                fill.append(lambda s=nx: (k.wait(vm=("x", s)), self.x_read(s)))
            if kk + 1 < 18:
                if (kk + 1) % 2 == 0:
                    fill.append(lambda s=(kk+1)//2: (k.wait(vm=("st", s)), k("s_barrier")))
                if (kk + 1) % 8 == 0: fill.append(lambda: self.bump(KA))
                fill += self.tr_reads(kk + 1, KA, 64 + 20 * ((kk + 1) & 1))
            if nx < 9:
                fill.insert(3, lambda h=2*nx + (kk & 1): (k.wait(ds=[("xr", (h >> 1) - 1)]), self.w_half(h)))
            KR = 2 * (9 - PRE)
            if kk == KR:
                rs0 = self.relay_store_ops(0, 184); fill.append(lambda: k.wait(vm=("rl", 0)))
            if kk in (KR, KR + 1):
                for _ in range(10): fill.append(rs0.pop(0))
            if kk == KR + 1:
                fill.append(lambda: (k("v_mov_b32 v14, 0"), k.vm(f"buffer_load_dword v14, v14, {sr(DS,4)}, 0 offen sc1", "gate")))
            if OPT["rsq"] >= 0:
                if kk in (KR + 2, KR + 3): fill.append(lambda t=kk-KR-1: self.relay_loads(t))
            else:
                for t in (1, 2):
                    if kk == OPT[f"kl{t}"]: fill.append(lambda t=t: self.relay_loads(t))
                    if kk == KR + 2*t:
                        rs0 = self.relay_store_ops(t, 184); fill.append(lambda t=t: k.wait(vm=("rl", t)))
                    if kk in (KR + 2*t, KR + 2*t + 1):
                        for _ in range(10): fill.append(rs0.pop(0))
            k.wait(ds=[("b", kk)])
            ms = []
            for T in range(5):
                for mt in range(2):
                    d = vr(16 + 8*T + 4*mt, 4)
                    ms.append((d, ar((kk*2+mt)*4, 4), vr(buf + 4*T, 4), d if kk else None))
            for mt in range(2):
                d = vr(56 + 4*mt, 4); xa = ar((kk*2+mt)*4, 4)
                ms.append((d, xa, xa, d if kk else None))
            for m in ms:
                self.mfma(*m)
                if fill: fill.pop(0)()
            L = k.label("cs")
            k(f"s_cmp_lg_u32 s{sWV}, {kk & 3}"); k(f"s_cbranch_scc1 {L}")
            for T in range(5):
                d = vr(104 + 4*T, 4); self.mfma(d, "v[124:127]", vr(buf + 4*T, 4), d if kk >= 4 else None)
            k(f"{L}:")
            while fill: fill.pop(0)()
            if OPT["fine"] == 99 and kk & 1 and kk < 17: self.ts(f"a.{kk}")
    def a_epilogue(self):
        k = self.k
        self.ts("A.kloop")
        k(f"""
        s_lshl_b32 s{sT0}, s{sWV}, 8
        s_add_u32 s{sT0}, s{sT0}, {ST}
        v_lshl_add_u32 v132, v3, 4, s{sT0}
        v_lshl_add_u32 v133, v2, 2, s{sT0}
        s_lshl_b32 s{sT0}, s{sWV}, 2
        s_add_u32 s{sT0}, s{sT0}, {CS}
        v_lshl_add_u32 v134, v2, 4, s{sT0}
        v_lshlrev_b32 v135, 4, v2
        v_add_u32 v135, {CS}, v135
        """)
        self.setexec(0x0001000100010001)
        for mt in range(2): k.ds(f"ds_write_b128 v132, {vr(48+4*mt,4)} offset:{128*mt}")
        for r in range(4):
            self.setexec(0x1000010000100001 << r)
            for mt in range(2): k.ds(f"ds_write_b32 v133, v{56+4*mt+r} offset:{64+128*mt}")
        self.setexec(0xffff)
        for T in range(5): k.ds(f"ds_write_b32 v134, v{104+4*T} offset:{256*T}")
        self.setexec(-1)
        k.wait(ds="all"); k("s_barrier")
        for mt in range(2):
            k.ds(f"ds_read_b128 {vr(136+8*mt,4)}, v132 offset:{128*mt}", ("s", mt))
            k.ds(f"ds_read_b128 {vr(140+8*mt,4)}, v132 offset:{128*mt+64}", ("s", mt))
        for T in range(5): k.ds(f"ds_read_b128 {vr(104+4*T,4)}, v135 offset:{256*T}", ("c", T))
        k(f"s_mov_b32 s{sC0}, {hex(f2u(-1/576))}"); k(f"s_mov_b32 s{sC1}, {hex(f2u(1/576))}")
        k(f"s_mov_b32 s{sC2}, {hex(f2u(1.4426950408889634))}"); k(f"s_mov_b32 s{sC3}, {hex(f2u(1e-6))}")
        k(f"v_mov_b32 v15, {hex(f2u(1e-5))}")
        NM = lambda mt, r: 136 + 8*mt + r
        RS = lambda mt, r: 140 + 8*mt + r
        RLg = lambda mt, r: 152 + 4*mt + r
        for mt in range(2):
            k.wait(ds=[("s", mt)])
            self.stats([(NM(mt, r), RS(mt, r), RLg(mt, r)) for r in range(4)])
        for T in range(5):
            k.wait(ds=[("c", T)]); c = 104 + 4*T
            k(f"v_add_f32 v{c}, v{c}, v{c+1}"); k(f"v_add_f32 v{c+2}, v{c+2}, v{c+3}"); k(f"v_add_f32 v{c}, v{c}, v{c+2}")
        k(f"s_mov_b32 s{sMK}, 0xf000f000"); k(f"s_mov_b32 s{sMK+1}, 0xf000f000")
        PK = lambda T: 160 + 4*T
        for T in (0, 2, 1, 3, 4):
            for mt in range(2):
                el = [(16 + 8*T + 4*mt + r, NM(mt, r), 104 + 4*T, RS(mt, r), RLg(mt, r)) for r in range(4)]
                self.affine(el, phi=T in (0, 1, 4), keep=(T == 4), tmp=64)
                for h in range(2):
                    a = 16 + 8*T + 4*mt + 2*h
                    k(f"v_cvt_pk_bf16_f32 v{PK(T)+2*mt+h}, v{a}, v{a+1}")
            if T == 2: self.mfma("v[16:19]", vr(PK(0), 4), vr(PK(2), 4))
            if T == 3: self.mfma("v[20:23]", vr(PK(1), 4), vr(PK(3), 4))
        X = PK(4); BA, BB, AC, AD, AEA, AEB = 72, 76, 80, 84, 88, 92
        for d in range(4): k(f"v_and_or_b32 v{BA+d}, v{X+d}, v249, v248")
        for d in range(4): k(f"v_and_b32 v{AC+d}, v{X+d}, v252")
        self.mfma("v[24:27]", vr(PK(0), 4), vr(BA, 4))
        for d in range(4): k(f"v_and_or_b32 v{BB+d}, v{X+d}, v251, v250")
        self.mfma("v[28:31]", vr(AC, 4), vr(PK(2), 4))
        for d in range(4): k(f"v_and_b32 v{AD+d}, v{X+d}, v253")
        self.mfma("v[24:27]", vr(PK(1), 4), vr(BB, 4), "v[24:27]")
        for d in range(4): k(f"v_and_b32 v{AEA+d}, v{X+d}, v254")
        self.mfma("v[28:31]", vr(AD, 4), vr(PK(3), 4), "v[28:31]")
        for d in range(4): k(f"v_and_b32 v{AEB+d}, v{X+d}, v131")
        self.mfma("v[28:31]", vr(AEA, 4), vr(BA, 4), "v[28:31]")
        self.mfma("v[28:31]", vr(AEB, 4), vr(BB, 4), "v[28:31]")
        self.ts("A.epi")
        k(f"v_add_u32 v134, {AUX}, v1")
        LD = k.label("kvd"); labs = [k.label("kv") for _ in range(4)]
        for w in range(4):
            k(f"{labs[w]}:")
            if w < 3: k(f"s_cmp_lg_u32 s{sWV}, {w}"); k(f"s_cbranch_scc1 {labs[w+1]}")
            for T in range(4):
                if T != w: k(f"ds_write_b128 v134, {vr(16+4*T,4)} offset:{T*3072 + ((w-T-1) & 3)*1024}")
            for r in range(4): k(f"v_mov_b32 v{32+r}, v{16+4*w+r}")
            if w < 3: k(f"s_branch {LD}")
        k(f"{LD}:")
        k(f"s_mul_i32 s{sT0}, s{sWV}, 3072"); k(f"v_add_u32 v134, s{sT0}, v134")
        k("s_waitcnt lgkmcnt(0)"); k.lq = []; k("s_barrier")
        for q in range(3): k.ds(f"ds_read_b128 {vr(16+4*q,4)}, v134 offset:{q*1024}", ("r", q))
        k(f"""
        s_lshl_b32 s{sT0}, s{sP}, 4
        s_add_u32 s{sT0}, s{sT0}, s{sR}
        s_lshl_b32 s{sT0}, s{sT0}, 2
        s_add_u32 s{sT0}, s{sT0}, s{sWV}
        s_lshl_b32 s{sT0}, s{sT0}, 10
        s_add_u32 s{sT0}, s{sT0}, {KVP}
        """)
        for q in range(3):
            k.wait(ds=[("r", q)])
            for r in range(4): k(f"v_add_f32 v{32+r}, v{32+r}, v{16+4*q+r}")
        k.vm(f"buffer_store_dwordx4 v[32:35], v1, {sr(WS,4)}, s{sT0} offen sc1", "kvp")
        self.ts("A.kvst")

    def stats(self, L):
        k = self.k
        for a, b, c in L: k(f"v_mul_f32 v{a}, s{sC0}, v{a}")
        for a, b, c in L: k(f"v_fma_f32 v{b}, v{b}, s{sC1}, v15")
        for a, b, c in L: k(f"v_fma_f32 v{b}, -v{a}, v{a}, v{b}")
        for a, b, c in L: k(f"v_max_f32 v{b}, v{b}, v15")
        for a, b, c in L: k(f"v_rsq_f32 v{b}, v{b}")
        for a, b, c in L:
            if c is not None: k(f"v_mul_f32 v{c}, s{sC2}, v{b}")
    def affine(self, el, phi, keep, tmp):
        k = self.k
        for a, nm, cs, rs, rl in el: k(f"v_fma_f32 v{a}, v{nm}, v{cs}, v{a}")
        if not phi:
            for a, nm, cs, rs, rl in el: k(f"v_mul_f32 v{a}, v{a}, v{rs}")
            return
        for n, (a, nm, cs, rs, rl) in enumerate(el): k(f"v_mul_f32 v{tmp+n}, v{a}, v{rl}")
        if keep:
            for n, (a, nm, cs, rs, rl) in enumerate(el): k(f"v_mul_f32 v{tmp+4+n}, v{a}, v{rs}")
        for n, (a, nm, cs, rs, rl) in enumerate(el): k(f"v_exp_f32 v{tmp+n}, v{tmp+n} clamp")
        for a, nm, cs, rs, rl in el: k(f"v_fma_f32 v{a}, v{a}, v{rs}, s{sC3}")
        for a, nm, cs, rs, rl in el: k(f"v_max_f32 v{a}, s{sC3}, v{a}")
        for n, (a, nm, cs, rs, rl) in enumerate(el): k(f"v_add_f32 v{a}, v{a}, v{tmp+n}")
        if keep:
            for n, (a, nm, cs, rs, rl) in enumerate(el):
                k(f"v_cndmask_b32 v{a}, v{a}, v{tmp+4+n}, s[{sMK}:{sMK+1}]")

    def finish(self):
        k = self.k
        if self.prof:
            self.ts("end"); self.rt(63)
            k(f"""
            s_lshl_b32 s{sT0}, s2, 2
            s_add_u32 s{sT0}, s{sT0}, s{sWV}
            s_lshl_b32 s{sT0}, s{sT0}, 8
            s_add_u32 s{sT0}, s{sT0}, {PROF}
            v_lshlrev_b32 v4, 2, v0
            buffer_store_dword v255, v4, {sr(WS,4)}, s{sT0} offen
            """)
            if self.dbgwg is not None:
                k(f"s_cmp_lg_u32 s2, {self.dbgwg}"); k("s_cbranch_scc1 L_nd")
                k(f"s_cmp_lg_u32 s{sWV}, 0"); k("s_cbranch_scc1 L_nd")
                k("v_readlane_b32 s3, v255, 0"); k("v_subrev_u32 v255, s3, v255")
                k("s_mov_b64 exec, 0xfffe")
                k(f"buffer_store_dword v255, v4, {sr(DS,4)}, 0 offen"); k("L_nd:")
        k("s_waitcnt vmcnt(0)"); k("L_end:"); k("s_endpgm")


def build(stop=None, prof=False, only=None, dbgwg=None):
    from gen2 import hop1, phase_b, phase_f
    g = G(stop, prof); g.only = only; g.dbgwg = dbgwg
    g.prologue(); g.phase_a()
    for name, fn in (("q", hop1), ("b", phase_b), ("f", phase_f)):
        if stop == "pre" + name: break
        fn(g)
    g.finish()
    hdr = "".join(open("cdna_kernels/" + NAME + ".s.ref").readlines()[:12]) if True else ""
    txt = g.k.text(hdr, NAME + "_kernel", 256, 256, 102, (256, 1, 1), (256, 1, 1), 163840)
    return txt, g

if __name__ == "__main__":
    out = sys.argv[1]; stop = sys.argv[2] if len(sys.argv) > 2 and sys.argv[2] != "-" else None
    prof = len(sys.argv) > 3
    txt, g = build(stop, prof)
    open(out, "w").write(txt)
    import json; json.dump(g.tsn, open(out + ".ts.json", "w"))
    print("lines", txt.count("\n"), "bytes", len(txt), "nop states", g.k.nops)
```

```python
from kgen import *
import gen as _g
from gen import *

NP1, NP2A, NP2B = OPT['np1'], OPT['np2'], OPT['np3']
RING = OPT['ring']
XRB = 81920
WOA = 96

def ring_load(g, seq):
    k = g.k
    if seq % 4 == 0:
        k(f"s_add_u32 s{sA0}, s{sA1}, {seq*1024}")
    k.vm(f"buffer_load_dwordx4 {ar(4*(seq % RING),4)}, v1, {sr(WS,4)}, s{sA0} offen offset:{(seq % 4)*1024} sc1", ("w", seq))

def p_touch(g):
    k = g.k
    k("v_lshlrev_b32 v158, 7, v0")
    for h in range(2):
        k(f"""
        s_lshl_b32 s{sT0}, s{sWV}, 1
        s_add_u32 s{sT0}, s{sT0}, s{sJ}
        s_add_u32 s{sT0}, s{sT0}, {h}
        s_and_b32 s{sT0}, s{sT0}, 7
        s_cmp_eq_u32 s{sT0}, s{sJ}
        s_cselect_b32 s{sT0}, 8, s{sT0}
        s_mul_i32 s{sT1}, s{sRF}, 9
        s_add_u32 s{sT0}, s{sT0}, s{sT1}
        s_lshl_b32 s{sT0}, s{sT0}, 3
        s_add_u32 s{sT0}, s{sT0}, s{sJ}
        s_lshl_b32 s{sT0}, s{sT0}, 13
        s_add_u32 s{sT0}, s{sT0}, {PB}
        """)
        k.vm(f"buffer_load_dword v{156+h}, v158, {sr(WS,4)}, s{sT0} offen sc1", "pt")

def hop1(g):
    k = g.k
    QA = [9, 10, 11]
    for f in g.tr_reads(0, QA, 64): f()
    k(f"""
    s_lshr_b32 s{sT0}, s{sI}, 3
    s_lshl_b32 s{sBR}, s{sX}, 2
    s_add_u32 s{sBR}, s{sBR}, s{sT0}
    s_and_b32 s{sBC}, s{sI}, 7
    v_mov_b32 v6, 0
    """)
    if OPT["fmap"] == 2:
        k(f"""
        s_and_b32 s{sJ}, s{sX}, 1
        s_lshl_b32 s{sJ}, s{sJ}, 2
        s_and_b32 s{sT0}, s{sI}, 3
        s_add_u32 s{sJ}, s{sJ}, s{sT0}
        s_lshr_b32 s{sRF}, s{sX}, 1
        s_lshl_b32 s{sRF}, s{sRF}, 3
        s_lshr_b32 s{sT0}, s{sI}, 2
        s_add_u32 s{sRF}, s{sRF}, s{sT0}
        """)
    elif OPT["fmap"] == 3:
        k(f"s_mov_b32 s{sJ}, s{sBC}"); k(f"s_mov_b32 s{sRF}, s{sBR}")
    elif OPT["fmap"]:
        k(f"""
        s_and_b32 s{sJ}, s{sX}, 6
        s_and_b32 s{sT0}, s{sI}, 1
        s_add_u32 s{sJ}, s{sJ}, s{sT0}
        s_and_b32 s{sRF}, s{sX}, 1
        s_lshl_b32 s{sRF}, s{sRF}, 4
        s_lshr_b32 s{sT0}, s{sI}, 1
        s_add_u32 s{sRF}, s{sRF}, s{sT0}
        """)
    else:
        k(f"s_mov_b32 s{sJ}, s{sX}"); k(f"s_mov_b32 s{sRF}, s{sI}")
    k(f"""
    s_lshl_b32 s{sT3}, s{sP}, 8
    s_lshl_b32 s{sT0}, s{sWV}, 6
    s_add_u32 s{sT3}, s{sT3}, s{sT0}
    s_lshl_b32 s{sT0}, s{sR}, 2
    s_add_u32 s{sT4}, s{sT3}, s{sT0}
    """)
    rsq = []
    for t in ((0,) if OPT["rdy"] == 5 else ()) + (1, 2)[:max(OPT["rsq"], 0)]: rsq += g.relay_store_ops(t, 176 + 8*0)
    def ready_loads():
        k(f"""
        v_lshlrev_b32 v135, 10, v3
        v_lshl_add_u32 v135, v2, 4, v135
        s_movk_i32 s{sA0}, {FK + 768}
        s_lshr_b32 s{sA1}, s{sJ}, 1
        s_lshl_b32 s{sA1}, s{sA1}, 10
        """)
        if OPT["wm"]:
            k("v_subrev_u32 v168, 256, v135"); k("v_cmp_gt_u32 vcc, 2, v3"); k("v_cndmask_b32 v135, v135, v168, vcc")
            k(f"v_add_u32 v135, {FK + 768}, v135"); k(f"s_mov_b32 s{sA0}, 0")
        k.vm(f"buffer_load_dwordx4 v[168:171], v135, {sr(WS,4)}, s{sA0} offen sc1", "fw")
        if OPT["rdy"] != 5: k.vm(f"buffer_load_dwordx4 v[172:175], v1, {sr(WS,4)}, s{sA1} offen sc1", "fw")
    g.ts("Q.start")
    for kk in range(18):
        buf = 64 + 12 * (kk & 1); fill = []
        if kk + 1 < 18:
            if (kk + 1) % 8 == 0: fill.append(lambda: g.bump(QA))
            fill += g.tr_reads(kk + 1, QA, 64 + 12 * ((kk + 1) & 1))
        else:
            for mt in range(2):
                fill.append(lambda mt=mt: k.ds(f"ds_read_b32 v{136+mt}, v133 offset:{128*mt}", "qs"))
                fill.append(lambda mt=mt: k.ds(f"ds_read_b32 v{138+mt}, v133 offset:{128*mt+64}", "qs"))
        if kk == 3:
            fill.append(lambda: (k.wait(vm="kvp"), g.check(6, "0", 14, 1, srd=DS), k("v_mov_b32 v14, 1"), g.flag(f"s{sT4}", 14, 6)))
        if 4 <= kk < 14:
            for _ in range(OPT["rq"]):
                if rsq: fill.append(rsq.pop(0))
        if kk == 12 and not OPT["rdy"]: fill.append(ready_loads)
        if kk == 5 and OPT["ptouch"]: fill.append(lambda: p_touch(g))
        if OPT["fine"] and kk in (3, 4, 9, 12): g.ts(f"q.{kk}")
        k.wait(ds=[("b", kk)])
        ms = []
        for T in range(3):
            for mt in range(2):
                d = vr(16 + 8*T + 4*mt, 4)
                ms.append((d, vr(buf + 4*T, 4), ar((kk*2+mt)*4, 4), d if kk else None))
            d = vr(40 + 4*T, 4); ms.append((d, vr(buf + 4*T, 4), "v[124:127]", d if kk else None))
        for m in ms:
            g.mfma(*m)
            if fill: fill.pop(0)()
        while fill: fill.pop(0)()
    k.wait(ds=["qs"])
    g.stats([(136 + mt, 138 + mt, 140 + mt) for mt in range(2)])
    for T in range(3):
        for mt in range(2):
            el = [(16 + 8*T + 4*mt + r, 136 + mt, 40 + 4*T + r, 138 + mt, 140 + mt) for r in range(4)]
            g.affine(el, phi=True, keep=False, tmp=64)
            dst = 144 + 4*mt + 2*T if T < 2 else 152 + 2*mt
            for h in range(2):
                a = 16 + 8*T + 4*mt + 2*h
                k(f"v_cvt_pk_bf16_f32 v{dst+h}, v{a}, v{a+1}")
    for reg, bits in ((248, 0x3111), (249, 0xC222)):
        k(f"s_mov_b32 s{sT1}, {hex(bits)}"); k(f"v_bfe_i32 v{reg}, s{sT1}, v2, 1")
    k("v_bfe_i32 v250, 2, v3, 1"); k("v_bfe_i32 v251, 4, v3, 1")
    k(f"""
    v_lshlrev_b32 v134, 2, v2
    s_lshl_b32 s{sT0}, s{sP}, 16
    s_lshl_b32 s{sT1}, s{sWV}, 10
    s_add_u32 s{sT0}, s{sT0}, s{sT1}
    s_add_u32 s{sT0}, s{sT0}, {KVP}
    s_lshl_b32 s{sT1}, s{sWV}, 9
    s_add_u32 s{sT1}, s{sT1}, {KVX}
    v_lshl_add_u32 v132, v0, 3, s{sT1}
    v_lshlrev_b32 v133, 3, v0
    v_add_u32 v133, {KVX}, v133
    """)
    g.ts("Q.end")
    g.poll(134, f"s{sT3}", 136)
    assert not rsq
    ready_check = lambda: (k.wait(vm="fw"), g.check(135, f"s{sA0}", 168, 4), g.check(1, f"s{sA1}", 172, 4) if OPT["rdy"] != 5 else None)
    if not OPT["rdy"]: ready_check()
    g.ts("FK.seen")
    for q in range(16):
        k.vm(f"buffer_load_dwordx4 {vr(64+4*q,4)}, v1, {sr(WS,4)}, s{sT0} offen sc1", ("kv", q))
        if q < 15: k(f"s_add_u32 s{sT0}, s{sT0}, 4096")
    def wo_loads(lo=0, hi=18):
        if lo == 0:
            k(f"""
            s_lshl_b32 s{sA2}, s{sBC}, 2
            s_add_u32 s{sA2}, s{sA2}, s{sWV}
            s_mul_i32 s{sA2}, s{sA2}, 18432
            s_add_u32 s{sA2}, s{sA2}, {WOT}
            """)
        for kk in range(lo, hi):
            k.vm(f"buffer_load_dwordx4 {ar(WOA+4*kk,4)}, v1, {sr(WS,4)}, s{sA2} offen offset:{(kk & 3)*1024} sc1", "wo")
            if kk & 3 == 3: k(f"s_add_u32 s{sA2}, s{sA2}, 4096")
    g.wo_loads = wo_loads
    if OPT["rdy"] in (1, 2): ready_loads()
    if OPT["rdy"] == 0: wo_loads()
    k(f"""
    s_lshl_b32 s{sT0}, s{sBR}, 6
    s_lshl_b32 s{sT1}, s{sWV}, 4
    s_add_u32 s{sT1}, s{sT1}, s{sT0}
    s_mul_i32 s{sT1}, s{sT1}, 1152
    s_lshl_b32 s{sT2}, s{sBC}, 7
    s_add_u32 s{sXB}, s{sT1}, s{sT2}
    s_add_u32 s{sXB+1}, s{sXB}, 9216
    s_lshr_b32 s{sT1}, s{sBC}, 1
    s_lshl_b32 s{sT1}, s{sT1}, 4
    s_add_u32 s{sT0}, s{sT0}, s{sT1}
    s_lshl_b32 s{sT1}, s{sWV}, 3
    s_add_u32 s{sT0}, s{sT0}, s{sT1}
    s_mul_i32 s{sT0}, s{sT0}, 1152
    s_add_u32 s{sXB+2}, s{sT0}, 1024
    s_cmp_lt_u32 s{sWV}, 2
    s_cselect_b32 s{sXB+2}, s{sXB+2}, 0x7f000000
    """)
    for q in range(1, 16):
        k.wait(vm=("kv", q)); d = 64 + 4*(q & 1 if q > 1 else 0)
        if q == 1: continue
        for h in range(2): k(f"v_pk_add_f32 {vr(d+2*h,2)}, {vr(d+2*h,2)}, {vr(64+4*q+2*h,2)}")
    for h in range(2): k(f"v_pk_add_f32 {vr(64+2*h,2)}, {vr(64+2*h,2)}, {vr(68+2*h,2)}")
    k("v_cvt_pk_bf16_f32 v160, v64, v65"); k("v_cvt_pk_bf16_f32 v161, v66, v67")
    k.ds("ds_write_b64 v132, v[160:161]")
    if OPT["rdy"] == 1: ready_check(); wo_loads()
    k.wait(ds="all"); k("s_barrier")
    for T in range(4): k.ds(f"ds_read_b64 {vr(160+2*T,2)}, v133 offset:{512*T}", ("x", T))
    if OPT["rdy"] in (3, 5): ready_loads()
    for j in range(3):
        k(f"s_add_u32 m0, s{sDK}, {XRB + 1024*j}" if j < 2 else f"s_lshr_b32 s{sT0}, s{sDK}, 1")
        if j == 2: k(f"s_add_u32 m0, s{sT0}, {XRB + 8192}")
        k.vm(f"buffer_load_dwordx4 v12, {sr(XS,4)}, s{sXB+j} offen lds", "xr")
    k(f"""
    s_lshl_b32 s{sT0}, s{sR}, 1
    s_lshr_b32 s{sT1}, s{sWV}, 1
    s_add_u32 s{sT0}, s{sT0}, s{sT1}
    s_lshl_b32 s{sT4}, s{sT0}, 7
    s_mul_i32 s{sT0}, s{sT0}, 73728
    s_and_b32 s{sT1}, s{sWV}, 1
    s_lshl_b32 s{sT2}, s{sT1}, 11
    s_add_u32 s{sT0}, s{sT0}, s{sT2}
    s_add_u32 s{sT0}, s{sT0}, {OB}
    s_lshl_b32 s{sT1}, s{sT1}, 2
    s_add_u32 s{sT4}, s{sT4}, s{sT1}
    s_lshl_b32 s{sT1}, s{sP}, 3
    s_add_u32 s{sT4}, s{sT4}, s{sT1}
    s_add_u32 s{sT4}, s{sT4}, {FO}
    s_lshr_b32 s{sT1}, s{sP}, 3
    s_add_u32 s{sT1}, s{sT1}, 16
    s_lshl_b32 s{sT1}, s{sT1}, 12
    s_and_b32 s{sT2}, s{sP}, 6
    s_lshl_b32 s{sT2}, s{sT2}, 7
    s_add_u32 s{sT1}, s{sT1}, s{sT2}
    s_add_u32 s{sT1}, s{sT1}, s{sDL}
    s_add_u32 s{sT1}, s{sT1}, s{sT0}
    s_lshl_b32 s{sT2}, s{sP}, 12
    s_add_u32 s{sT0}, s{sT0}, s{sT2}
    v_lshlrev_b32 v134, 4, v2
    """)
    T0, T1, O1, O2 = 160, 162, 164, 166
    AF, A0L, A1L, AFL = 56, 60, 62, 64
    E = lambda q, mt: 16 + 12*mt + 4*q
    k.wait(ds=[("x", 1)])
    for mt in range(2):
        g.mfma(vr(E(0, mt), 4), vr(T0, 2), vr(144 + 4*mt, 2), k16=True)
        g.mfma(vr(E(1, mt), 4), vr(T1, 2), vr(146 + 4*mt, 2), k16=True)
    k.wait(ds=[("x", 3)])
    k(f"""
    v_mov_b32 v61, 0
    v_mov_b32 v62, 0
    v_and_b32 v{AF}, v{O1}, v248
    v_and_b32 v{AF+1}, v{O1+1}, v248
    v_and_b32 v{AF+2}, v{O1}, v249
    v_and_b32 v{AF+3}, v{O1+1}, v249
    v_and_b32 v{AFL}, v{O2}, v251
    v_and_b32 v{AFL+1}, v{O2+1}, v250
    v_and_b32 v{A0L}, v{O2}, v250
    v_and_b32 v{A1L+1}, v{O2+1}, v251
    """)
    for mt in range(2): g.mfma(vr(E(2, mt), 4), vr(AF, 4), vr(144 + 4*mt, 4))
    for mt in range(2): g.mfma(vr(E(2, mt), 4), vr(AFL, 2), vr(152 + 2*mt, 2), vr(E(2, mt), 4), k16=True)
    for mt in range(2):
        g.mfma(vr(E(0, mt), 4), vr(A0L, 2), vr(152 + 2*mt, 2), vr(E(0, mt), 4), k16=True)
        g.mfma(vr(E(1, mt), 4), vr(A1L, 2), vr(152 + 2*mt, 2), vr(E(1, mt), 4), k16=True)
    for mt in range(2):
        F = E(2, mt); c = 68 + 4*mt
        for q in range(2):
            k(f"v_add_f32 v{c+2*q}, s{sC3}, v{F+q}"); k(f"v_add_f32 v{c+2*q+1}, s{sC3}, v{F+q}")
    for mt in range(2):
        c = 68 + 4*mt
        for q in range(2): k(f"v_permlane16_swap_b32 v{c+2*q}, v{c+2*q+1}")
    for mt in range(2):
        c = 68 + 4*mt
        for q in range(2): k(f"v_rcp_f32 v{c+2*q}, v{c+2*q}")
    for mt in range(2):
        c = 68 + 4*mt; o = 80 + 8*mt
        for q in range(2):
            for r in range(4): k(f"v_mul_f32 v{E(q,mt)+r}, v{E(q,mt)+r}, v{c+2*q}")
            for h in range(2): k(f"v_cvt_pk_bf16_f32 v{o+2*q+h}, v{E(q,mt)+2*h}, v{E(q,mt)+2*h+1}")
        k.vm(f"buffer_store_dwordx4 {vr(o,4)}, v1, {sr(WS,4)}, s{sT0} offen offset:{1024*mt} sc1", "o")
    for mt in range(2):
        c = 68 + 4*mt; o = 84 + 8*mt; F = E(2, mt)
        for r in range(4): k(f"v_mul_f32 v{F+r}, v{F+r}, v{c+2*(r>>1)}")
        for h in range(2): k(f"v_cvt_pk_bf16_f32 v{o+h}, v{F+2*h}, v{F+2*h+1}")
    g.setexec(0xffff << 48)
    for mt in range(2):
        k.vm(f"buffer_store_dwordx2 {vr(84+8*mt,2)}, v134, {sr(WS,4)}, s{sT1} offen offset:{1024*mt} sc1", "o")
    g.setexec(-1)
    g.ts("O.st")
    if OPT["rdy"] == 2: ready_check(); wo_loads()
    if OPT["rdy"] in (3, 5): ready_check(); wo_loads(0, OPT["nwo"])

def sel(g, dst, se, h, tmp):
    k = g.k
    k(f"v_lshl_add_u32 v{tmp}, v2, 2, s{se}")
    k(f"v_lshlrev_b32 v{tmp+1}, 3, v3")
    k(f"v_sub_u32 v{tmp}, v{tmp}, v{tmp+1}")
    if h: k(f"v_subrev_u32 v{tmp}, 32, v{tmp}")
    k(f"v_and_b32 v{tmp+1}, 1, v{tmp}")
    k(f"v_lshlrev_b32 v{tmp+1}, 4, v{tmp+1}")
    k(f"v_mov_b32 v{tmp+2}, 0x3f80")
    k(f"v_lshlrev_b32 v{tmp+1}, v{tmp+1}, v{tmp+2}")
    k(f"v_lshrrev_b32 v{tmp}, 1, v{tmp}")
    for d in range(4):
        k(f"v_cmp_eq_u32 vcc, {d}, v{tmp}"); k(f"v_cndmask_b32 v{dst+d}, 0, v{tmp+1}, vcc")

def phase_b(g):
    k = g.k
    k(f"""
    s_and_b32 s{sT0}, s{sBC}, 1
    s_lshl_b32 s{sT0}, s{sT0}, 1
    s_add_u32 s{sT5}, s{sT0}, s{sWV}
    s_add_u32 s{sT3}, s{sT5}, 32
    s_mul_i32 s{sT3}, s{sT3}, 18432
    s_add_u32 s{sT3}, s{sT3}, {WOT}
    s_lshl_b32 s{sA1}, s{sJ}, 2
    s_add_u32 s{sA1}, s{sA1}, s{sWV}
    s_mul_i32 s{sA1}, s{sA1}, {324*1024}
    s_add_u32 s{sA1}, s{sA1}, {WT}
    """)
    for h in range(2):
        sel(g, 40 + 4*h, sWV, h, 100); sel(g, 48 + 4*h, sT5, h, 100)
    k(f"""
    v_and_b32 v56, 31, v0
    v_lshlrev_b32 v56, 2, v56
    s_lshl_b32 s{sT0}, s{sBR}, 7
    s_add_u32 s{sT0}, s{sT0}, {FO}
    s_mul_i32 s{sT1}, s{sBR}, 73728
    s_add_u32 s{sT1}, s{sT1}, {OB}
    s_lshr_b32 s{sT2}, s{sBC}, 1
    s_lshl_b32 s{sT2}, s{sT2}, 10
    v_add_u32 v57, s{sT2}, v1
    v_add_u32 v58, 0x10000, v1
    v_add_u32 v59, 0x10000, v57
    v_and_b32 v100, 6, v0
    v_xor_b32 v100, v100, v3
    v_lshlrev_b32 v100, 4, v100
    v_and_b32 v101, 7, v0
    v_lshl_add_u32 v100, v101, 7, v100
    v_bfe_u32 v101, v0, 3, 1
    v_lshl_add_u32 v100, v101, 10, v100
    v_add_u32 v62, {XRB}, v100
    v_xor_b32 v63, 64, v62
    """)
    k.wait(vm="o"); g.flag(f"s{sT4}", 14, 6)
    g.ts("FO.set")
    if OPT["rdy"] in (3, 5) and OPT["nwo"] < 18: g.wo_loads(OPT["nwo"], 18)
    L = k.label("nx")
    k(f"s_cmp_ge_u32 s{sWV}, 2"); k(f"s_cbranch_scc1 {L}")
    for kk in range(18):
        k.vm(f"buffer_load_dwordx4 {ar(WOA+72+4*kk,4)}, v1, {sr(WS,4)}, s{sT3} offen offset:{(kk & 3)*1024} sc1", None, count=False)
        if kk & 3 == 3: k(f"s_add_u32 s{sT3}, s{sT3}, 4096")
    k(f"{L}:")
    g.poll1(56, f"s{sT0}", 60, wave=3)
    g.ts("FO.seen")
    for s in range(5):
        if s < 4:
            k(f"s_lshl_b32 s{sT2}, s{sWV}, 12"); k(f"s_add_u32 s{sT2}, s{sT2}, {s*16384}")
        else:
            k(f"s_lshl_b32 s{sT2}, s{sWV}, 11"); k(f"s_add_u32 s{sT2}, s{sT2}, 65536")
        k(f"s_mov_b32 m0, s{sT2}"); k(f"s_add_u32 s{sT2}, s{sT2}, s{sT1}")
        for q in range(4 if s < 4 else 2):
            k.vm(f"buffer_load_dwordx4 v1, {sr(WS,4)}, s{sT2} offen offset:{q*1024} sc1 lds", ("os", s))
    if OPT["rdy"] == 5:
        assert NP1 == 0
        k(f"""
        v_lshrrev_b32 v146, 2, v0
        v_and_b32 v147, 3, v0
        v_lshlrev_b32 v147, 3, v147
        v_lshl_add_u32 v146, v146, 7, v147
        s_and_b32 s{sA3}, s{sJ}, 1
        s_lshl_b32 s{sA3}, s{sA3}, 11
        s_lshr_b32 s{sT2}, s{sJ}, 1
        s_lshl_b32 s{sT2}, s{sT2}, 5
        s_add_u32 s{sA3}, s{sA3}, s{sT2}
        s_add_u32 s{sA3}, s{sA3}, {FO}
        """)
    for h in range(2):
        for mt in range(5): k.ds(f"ds_read_b128 {vr(104+8*mt+4*h,4)}, v{62+h} offset:{2048*mt}", ("xr", h))
    later = []
    for t in (1, 2)[OPT["rsq"] if OPT["rsq"] >= 0 else 2:]: later += g.relay_store_ops(t, 168 + 16*(t - 1))
    later += [lambda seq=seq: ring_load(g, seq) for seq in range(NP1)]
    for h in range(2):
        k.wait(ds=[("xr", h)])
        for mt in range(5):
            d = vr(16 + 4*mt, 4); g.mfma(d, vr((40 if mt < 4 else 48) + 4*h, 4), vr(104 + 8*mt + 4*h, 4), d if h else None)
    def reads(kk):
        buf = 64 + 20 * (kk & 1); out = []
        for q in range(5):
            a = (1, 57)[q == 4] if kk < 16 else (58, 59)[q == 4]
            off = (kk & 15) * 4096 + (q & 3) * 1024
            out.append(lambda q=q, a=a, off=off: k.ds(f"ds_read_b128 {vr(buf+4*q,4)}, v{a} offset:{off}", ("ob", kk)))
        return out
    k.wait(vm=("os", 0)); k("s_barrier")
    g.ts("O.first")
    for f in reads(0): f()
    for kk in range(18):
        buf = 64 + 20 * (kk & 1); fill = []
        if kk + 1 < 18:
            if (kk + 1) % 4 == 0: fill.append(lambda s=(kk+1)//4: (k.wait(vm=("os", s)), k("s_barrier")))
            fill += reads(kk + 1)
        if kk == 9 and OPT["rdy"] == 5:
            fill.append(lambda: k.vm(f"buffer_load_dwordx2 v[144:145], v146, {sr(WS,4)}, s{sA3} offen sc1", "fo2"))
        k.wait(ds=[("ob", kk)])
        for q in range(5):
            d = vr(16 + 4*q, 4)
            g.mfma(d, ar(WOA + (0 if q < 4 else 72) + 4*kk, 4), vr(buf + 4*q, 4), d)
            if fill: fill.pop(0)()
            if later: later.pop(0)()
        while fill: fill.pop(0)()
    while later: later.pop(0)()
    if OPT["rdy"] == 5: k.wait(vm="fo2"); g.check(146, f"s{sA3}", 144, 2)
    k(f"""
    s_mul_i32 s{sT0}, s{sBR}, 73728
    s_add_u32 s{sT0}, s{sT0}, {HB}
    s_and_b32 s{sT2}, s{sBC}, 1
    s_add_u32 s{sT2}, s{sT2}, 16
    s_lshl_b32 s{sT2}, s{sT2}, 2
    s_lshr_b32 s{sT3}, s{sBC}, 1
    s_add_u32 s{sT2}, s{sT2}, s{sT3}
    s_lshl_b32 s{sT2}, s{sT2}, 10
    s_lshl_b32 s{sT3}, s{sWV}, 9
    s_add_u32 s{sT2}, s{sT2}, s{sT3}
    s_add_u32 s{sT1}, s{sT2}, s{sT0}
    s_lshl_b32 s{sT2}, s{sBC}, 1
    s_lshr_b32 s{sT3}, s{sWV}, 1
    s_add_u32 s{sT2}, s{sT2}, s{sT3}
    s_lshl_b32 s{sT2}, s{sT2}, 12
    s_and_b32 s{sT3}, s{sWV}, 1
    s_lshl_b32 s{sT3}, s{sT3}, 9
    s_add_u32 s{sT2}, s{sT2}, s{sT3}
    s_add_u32 s{sT0}, s{sT0}, s{sT2}
    v_lshrrev_b32 v56, 1, v3
    v_lshlrev_b32 v56, 8, v56
    v_lshl_add_u32 v56, v2, 4, v56
    v_and_b32 v57, 1, v3
    v_lshl_add_u32 v4, v57, 10, v56
    v_lshl_add_u32 v5, v57, 3, v56
    s_lshl_b32 s{sT4}, s{sBR}, 3
    s_add_u32 s{sT4}, s{sT4}, s{sBC}
    s_lshl_b32 s{sT4}, s{sT4}, 2
    s_add_u32 s{sT4}, s{sT4}, s{sWV}
    s_lshl_b32 s{sT4}, s{sT4}, 2
    s_add_u32 s{sT4}, s{sT4}, {FH}
    """)
    for pb in range(2):
        o = 40 + 4*pb
        for q in range(4):
            a = 16 + 8*pb + 2*q; k(f"v_cvt_pk_bf16_f32 v{o+q}, v{a}, v{a+1}")
        k(f"v_permlane16_swap_b32 v{o}, v{o+2}"); k(f"v_permlane16_swap_b32 v{o+1}, v{o+3}")
        k.vm(f"buffer_store_dwordx4 {vr(o,4)}, v4, {sr(WS,4)}, s{sT0} offen offset:{2048*pb} sc1", "h")
    k("v_cvt_pk_bf16_f32 v48, v32, v33"); k("v_cvt_pk_bf16_f32 v49, v34, v35")
    L = k.label("nx")
    k(f"s_cmp_ge_u32 s{sWV}, 2"); k(f"s_cbranch_scc1 {L}")
    k.vm(f"buffer_store_dwordx2 v[48:49], v5, {sr(WS,4)}, s{sT1} offen sc1", "h", count=False)
    k(f"{L}:")
    g.ts("H.st")
    for seq in range(NP1, NP1 + NP2A): ring_load(g, seq)
    k.wait(vm="h"); g.flag(f"s{sT4}", 14, 6)
    g.ts("FH.set")
    for seq in range(NP1 + NP2A, NP1 + NP2A + NP2B): ring_load(g, seq)

from gen3 import phase_f
```

```python
import itertools
def lines(a):
    return [(u // 5) * 2 + (1 if u % 5 >= a else 0) for u in range(15)] + [None]
def search(a):
    ln = lines(a); best = [99, None]
    quads = [[] for _ in range(4)]
    def cost(): return sum(len({ln[u] for u in q if ln[u] is not None}) for q in quads)
    for par in itertools.product((0, 1), repeat=3):
        pu = [(par[u // 5] + u % 5) & 1 for u in range(15)]
        ne = pu.count(0)
        if ne not in (7, 8): continue
        pu.append(0 if ne == 7 else 1)
        pen = (pu[7] == pu[12]) * 0.1 + (pu[7] == pu[15]) * 0.01
        def rec(u):
            c = cost() + pen
            if c >= best[0]: return
            if u == 16:
                best[0] = c; best[1] = ([list(q) for q in quads], pu); return
            seen = False
            for q in quads:
                if not q:
                    if seen: continue
                    seen = True
                if sum(1 for v in q if pu[v] == pu[u]) < 2:
                    q.append(u); rec(u + 1); q.pop()
        rec(0)
    qs, pu = best[1]; pi = [0] * 16
    for n, q in enumerate(qs):
        nxt = [0, 1]
        for u in q: pi[u] = 4 * n + nxt[pu[u]]; nxt[pu[u]] += 2
    return best[0], pi
def tables():
    out = {}
    for a in (5, 4, 3, 2, 1):
        c, pi = search(a); inv = [pi.index(s) for s in range(16)]
        out[a] = (sum(v << 4*n for n, v in enumerate(pi)), sum(v << 4*n for n, v in enumerate(inv)), c, pi)
    return out
if __name__ == "__main__":
    for a, (t, ti, c, pi) in tables().items():
        cur = 0
        for r in range(8):
            ln = lines(a); sl = [(s - 2*r) & 15 for s in range(16)]
            cur += sum(len({ln[u] for u in sl[4*q:4*q+4] if ln[u] is not None}) for q in range(4))
        print(a, hex(t), hex(ti), c, pi, "current avg", cur / 8)
    print([min(5, (128 - ((72*p - 8*(p & 1)) % 128)) // 16) for p in range(16)])
```

```python
from kgen import *
import gen as _g
from gen import *

NP1, NP2A, NP2B = OPT['np1'], OPT['np2'], OPT['np3']
RING = OPT['ring']
XRB = 81920
WOA = 96

def ring_load(g, seq):
    k = g.k
    if seq % 4 == 0:
        k(f"s_add_u32 s{sA0}, s{sA1}, {seq*1024}")
    k.vm(f"buffer_load_dwordx4 {ar(4*(seq % RING),4)}, v1, {sr(WS,4)}, s{sA0} offen offset:{(seq % 4)*1024} sc1", ("w", seq))

def p_touch(g):
    k = g.k
    k("v_lshlrev_b32 v158, 7, v0")
    for h in range(2):
        k(f"""
        s_lshl_b32 s{sT0}, s{sWV}, 1
        s_add_u32 s{sT0}, s{sT0}, s{sJ}
        s_add_u32 s{sT0}, s{sT0}, {h}
        s_and_b32 s{sT0}, s{sT0}, 7
        s_cmp_eq_u32 s{sT0}, s{sJ}
        s_cselect_b32 s{sT0}, 8, s{sT0}
        s_mul_i32 s{sT1}, s{sRF}, 9
        s_add_u32 s{sT0}, s{sT0}, s{sT1}
        s_lshl_b32 s{sT0}, s{sT0}, 3
        s_add_u32 s{sT0}, s{sT0}, s{sJ}
        s_lshl_b32 s{sT0}, s{sT0}, 13
        s_add_u32 s{sT0}, s{sT0}, {PB}
        """)
        k.vm(f"buffer_load_dword v{156+h}, v158, {sr(WS,4)}, s{sT0} offen sc1", "pt")

def hop1(g):
    k = g.k
    QA = [9, 10, 11]
    for f in g.tr_reads(0, QA, 64): f()
    k(f"""
    s_lshr_b32 s{sT0}, s{sI}, 3
    s_lshl_b32 s{sBR}, s{sX}, 2
    s_add_u32 s{sBR}, s{sBR}, s{sT0}
    s_and_b32 s{sBC}, s{sI}, 7
    v_mov_b32 v6, 0
    """)
    if OPT["fmap"] == 2:
        k(f"""
        s_and_b32 s{sJ}, s{sX}, 1
        s_lshl_b32 s{sJ}, s{sJ}, 2
        s_and_b32 s{sT0}, s{sI}, 3
        s_add_u32 s{sJ}, s{sJ}, s{sT0}
        s_lshr_b32 s{sRF}, s{sX}, 1
        s_lshl_b32 s{sRF}, s{sRF}, 3
        s_lshr_b32 s{sT0}, s{sI}, 2
        s_add_u32 s{sRF}, s{sRF}, s{sT0}
        """)
    elif OPT["fmap"] == 3:
        k(f"s_mov_b32 s{sJ}, s{sBC}"); k(f"s_mov_b32 s{sRF}, s{sBR}")
    elif OPT["fmap"]:
        k(f"""
        s_and_b32 s{sJ}, s{sX}, 6
        s_and_b32 s{sT0}, s{sI}, 1
        s_add_u32 s{sJ}, s{sJ}, s{sT0}
        s_and_b32 s{sRF}, s{sX}, 1
        s_lshl_b32 s{sRF}, s{sRF}, 4
        s_lshr_b32 s{sT0}, s{sI}, 1
        s_add_u32 s{sRF}, s{sRF}, s{sT0}
        """)
    else:
        k(f"s_mov_b32 s{sJ}, s{sX}"); k(f"s_mov_b32 s{sRF}, s{sI}")
    k(f"""
    s_lshl_b32 s{sT3}, s{sP}, 8
    s_lshl_b32 s{sT0}, s{sWV}, 6
    s_add_u32 s{sT3}, s{sT3}, s{sT0}
    s_lshl_b32 s{sT0}, s{sR}, 2
    s_add_u32 s{sT4}, s{sT3}, s{sT0}
    """)
    rsq = []
    for t in ((0,) if OPT["rdy"] == 5 else ()) + (1, 2)[:max(OPT["rsq"], 0)]: rsq += g.relay_store_ops(t, 176 + 8*0)
    def ready_loads():
        k(f"""
        v_lshlrev_b32 v135, 10, v3
        v_lshl_add_u32 v135, v2, 4, v135
        s_movk_i32 s{sA0}, {FK + 768}
        s_lshr_b32 s{sA1}, s{sJ}, 1
        s_lshl_b32 s{sA1}, s{sA1}, 10
        """)
        if OPT["wm"]:
            k("v_subrev_u32 v168, 256, v135"); k("v_cmp_gt_u32 vcc, 2, v3"); k("v_cndmask_b32 v135, v135, v168, vcc")
            k(f"v_add_u32 v135, {FK + 768}, v135"); k(f"s_mov_b32 s{sA0}, 0")
        k.vm(f"buffer_load_dwordx4 v[168:171], v135, {sr(WS,4)}, s{sA0} offen sc1", "fw")
        if OPT["rdy"] != 5: k.vm(f"buffer_load_dwordx4 v[172:175], v1, {sr(WS,4)}, s{sA1} offen sc1", "fw")
    def kv_one(q):
        if q == 0:
            k(f"""
            s_lshl_b32 s{sT2}, s{sP}, 16
            s_lshl_b32 s{sT1}, s{sWV}, 10
            s_add_u32 s{sT2}, s{sT2}, s{sT1}
            s_add_u32 s{sT2}, s{sT2}, {KVP}
            """)
        k.vm(f"buffer_load_dwordx4 {vr(176+4*q,4)}, v1, {sr(WS,4)}, s{sT2} offen sc1", ("kv", q))
        if q < 15: k(f"s_add_u32 s{sT2}, s{sT2}, 4096")
    kvq = [lambda q=q: kv_one(q) for q in range(16)] if OPT["kvn"] else []
    g.ts("Q.start")
    for kk in range(18):
        buf = 64 + 12 * (kk & 1); fill = []
        if kk + 1 < 18:
            if (kk + 1) % 8 == 0: fill.append(lambda: g.bump(QA))
            fill += g.tr_reads(kk + 1, QA, 64 + 12 * ((kk + 1) & 1))
        else:
            for mt in range(2):
                fill.append(lambda mt=mt: k.ds(f"ds_read_b32 v{136+mt}, v133 offset:{128*mt}", "qs"))
                fill.append(lambda mt=mt: k.ds(f"ds_read_b32 v{138+mt}, v133 offset:{128*mt+64}", "qs"))
        if kk == 3:
            fill.append(lambda: (k.wait(vm="kvp"), g.check(6, "0", 14, 1, srd=DS), k("v_mov_b32 v14, 1"), g.flag(f"s{sT4}", 14, 6)))
        if 4 <= kk < 14:
            for _ in range(OPT["rq"]):
                if rsq: fill.append(rsq.pop(0))
        if kk == 12 and not OPT["rdy"]: fill.append(ready_loads)
        if OPT["kvn"] and kk >= OPT["kvp"] + OPT["kvd"]:
            if kk == OPT["kvp"] + OPT["kvd"]: fill.insert(0, lambda: k.wait(vm="fk"))
            for n in range(OPT["kvn"]):
                if kvq: fill.insert(min(len(fill), 1 + 2*n), kvq.pop(0))
        if OPT["kvp"] and kk == OPT["kvp"]:
            fill.append(lambda: (k("v_lshlrev_b32 v134, 2, v2"),
                                 k.vm(f"buffer_load_dword v240, v134, {sr(WS,4)}, s{sT3} offen sc1", "fk")))
        if kk == 5 and OPT["ptouch"]: fill.append(lambda: p_touch(g))
        if OPT["fine"] and kk in (3, 4, 9, 12): g.ts(f"q.{kk}")
        k.wait(ds=[("b", kk)])
        ms = []
        for T in range(3):
            for mt in range(2):
                d = vr(16 + 8*T + 4*mt, 4)
                ms.append((d, vr(buf + 4*T, 4), ar((kk*2+mt)*4, 4), d if kk else None))
            d = vr(40 + 4*T, 4); ms.append((d, vr(buf + 4*T, 4), "v[124:127]", d if kk else None))
        for m in ms:
            g.mfma(*m)
            if fill: fill.pop(0)()
        while fill: fill.pop(0)()
    KV = 176 if OPT["kvp"] else 64
    def kv_loads():
        k(f"""
        s_lshl_b32 s{sT0}, s{sP}, 16
        s_lshl_b32 s{sT1}, s{sWV}, 10
        s_add_u32 s{sT0}, s{sT0}, s{sT1}
        s_add_u32 s{sT0}, s{sT0}, {KVP}
        """)
        for q in range(16):
            k.vm(f"buffer_load_dwordx4 {vr(KV+4*q,4)}, v1, {sr(WS,4)}, s{sT0} offen sc1", ("kv", q))
            if q < 15: k(f"s_add_u32 s{sT0}, s{sT0}, 4096")
    if OPT["kvp"] and not OPT["kvn"]:
        assert not rsq
        LS = k.label("kvs")
        k.wait(vm="fk")
        k("v_cmp_ne_u32 vcc, 1, v240"); k(f"s_cbranch_vccnz {LS}")
        kv_loads()
        k(f"{LS}:")
    k.wait(ds=["qs"])
    g.stats([(136 + mt, 138 + mt, 140 + mt) for mt in range(2)])
    for T in range(3):
        for mt in range(2):
            el = [(16 + 8*T + 4*mt + r, 136 + mt, 40 + 4*T + r, 138 + mt, 140 + mt) for r in range(4)]
            for _ in range(-(-len(kvq) // (6 - 2*T - mt))): kvq.pop(0)()
            g.affine(el, phi=True, keep=False, tmp=64)
            dst = 144 + 4*mt + 2*T if T < 2 else 152 + 2*mt
            for h in range(2):
                a = 16 + 8*T + 4*mt + 2*h
                k(f"v_cvt_pk_bf16_f32 v{dst+h}, v{a}, v{a+1}")
    for reg, bits in ((248, 0x3111), (249, 0xC222)):
        k(f"s_mov_b32 s{sT1}, {hex(bits)}"); k(f"v_bfe_i32 v{reg}, s{sT1}, v2, 1")
    k("v_bfe_i32 v250, 2, v3, 1"); k("v_bfe_i32 v251, 4, v3, 1")
    k(f"""
    v_lshlrev_b32 v134, 2, v2
    s_lshl_b32 s{sT1}, s{sWV}, 9
    s_add_u32 s{sT1}, s{sT1}, {KVX}
    v_lshl_add_u32 v132, v0, 3, s{sT1}
    v_lshlrev_b32 v133, 3, v0
    v_add_u32 v133, {KVX}, v133
    """)
    g.ts("Q.end")
    if OPT["kvp"]:
        LD = k.label("kvd")
        k("v_cmp_ne_u32 vcc, 1, v240"); k(f"s_cbranch_vccz {LD}")
        g.poll(134, f"s{sT3}", 136)
        kv_loads()
        k(f"{LD}:")
    else:
        g.poll(134, f"s{sT3}", 136)
    assert not rsq
    ready_check = lambda: (k.wait(vm="fw"), g.check(135, f"s{sA0}", 168, 4), g.check(1, f"s{sA1}", 172, 4) if OPT["rdy"] != 5 else None)
    if not OPT["rdy"]: ready_check()
    g.ts("FK.seen")
    if not OPT["kvp"]: kv_loads()
    def wo_loads22(lo, hi):
        if lo == 0:
            k(f"""
            s_lshl_b32 s{sA2}, s{sBC}, 1
            s_and_b32 s{sA0}, s{sWV}, 1
            s_add_u32 s{sA2}, s{sA2}, s{sA0}
            s_mul_i32 s{sA2}, s{sA2}, 36864
            s_add_u32 s{sA2}, s{sA2}, {WOT}
            """)
        for n in range(lo, 36 if hi == 18 else hi):
            k.vm(f"buffer_load_dwordx4 {ar(4*n,4)}, v1, {sr(WS,4)}, s{sA2} offen offset:{(n & 3)*1024} sc1", "wo")
            if n & 3 == 3: k(f"s_add_u32 s{sA2}, s{sA2}, 4096")
    def wo_loads(lo=0, hi=18):
        if OPT["b22"]: return wo_loads22(lo, hi)
        if lo == 0:
            k(f"""
            s_lshl_b32 s{sA2}, s{sBC}, 2
            s_add_u32 s{sA2}, s{sA2}, s{sWV}
            s_mul_i32 s{sA2}, s{sA2}, 18432
            s_add_u32 s{sA2}, s{sA2}, {WOT}
            """)
        for kk in range(lo, hi):
            k.vm(f"buffer_load_dwordx4 {ar(WOA+4*kk,4)}, v1, {sr(WS,4)}, s{sA2} offen offset:{(kk & 3)*1024} sc1", "wo")
            if kk & 3 == 3: k(f"s_add_u32 s{sA2}, s{sA2}, 4096")
    g.wo_loads = wo_loads
    if OPT["rdy"] in (1, 2): ready_loads()
    if OPT["rdy"] == 0: wo_loads()
    k(f"""
    s_lshl_b32 s{sT0}, s{sBR}, 6
    s_lshl_b32 s{sT1}, s{sWV}, 4
    s_add_u32 s{sT1}, s{sT1}, s{sT0}
    s_mul_i32 s{sT1}, s{sT1}, 1152
    s_lshl_b32 s{sT2}, s{sBC}, 7
    s_add_u32 s{sXB}, s{sT1}, s{sT2}
    s_add_u32 s{sXB+1}, s{sXB}, 9216
    s_lshr_b32 s{sT1}, s{sBC}, 1
    s_lshl_b32 s{sT1}, s{sT1}, 4
    s_add_u32 s{sT0}, s{sT0}, s{sT1}
    s_lshl_b32 s{sT1}, s{sWV}, 3
    s_add_u32 s{sT0}, s{sT0}, s{sT1}
    s_mul_i32 s{sT0}, s{sT0}, 1152
    s_add_u32 s{sXB+2}, s{sT0}, 1024
    s_cmp_lt_u32 s{sWV}, 2
    s_cselect_b32 s{sXB+2}, s{sXB+2}, 0x7f000000
    """)
    for q in range(1, 16):
        k.wait(vm=("kv", q)); d = KV + 4*(q & 1 if q > 1 else 0)
        if q == 1: continue
        for h in range(2): k(f"v_pk_add_f32 {vr(d+2*h,2)}, {vr(d+2*h,2)}, {vr(KV+4*q+2*h,2)}")
    for h in range(2): k(f"v_pk_add_f32 {vr(KV+2*h,2)}, {vr(KV+2*h,2)}, {vr(KV+4+2*h,2)}")
    k(f"v_cvt_pk_bf16_f32 v160, v{KV}, v{KV+1}"); k(f"v_cvt_pk_bf16_f32 v161, v{KV+2}, v{KV+3}")
    k.ds("ds_write_b64 v132, v[160:161]")
    if OPT["rdy"] == 1: ready_check(); wo_loads()
    k.wait(ds="all"); k("s_barrier")
    for T in range(4): k.ds(f"ds_read_b64 {vr(160+2*T,2)}, v133 offset:{512*T}", ("x", T))
    if OPT["rdy"] in (3, 5): ready_loads()
    for j in range(3):
        k(f"s_add_u32 m0, s{sDK}, {XRB + 1024*j}" if j < 2 else f"s_lshr_b32 s{sT0}, s{sDK}, 1")
        if j == 2: k(f"s_add_u32 m0, s{sT0}, {XRB + 8192}")
        k.vm(f"buffer_load_dwordx4 v12, {sr(XS,4)}, s{sXB+j} offen lds", "xr")
    k(f"""
    s_lshl_b32 s{sT0}, s{sR}, 1
    s_lshr_b32 s{sT1}, s{sWV}, 1
    s_add_u32 s{sT0}, s{sT0}, s{sT1}
    s_lshl_b32 s{sT4}, s{sT0}, 7
    s_mul_i32 s{sT0}, s{sT0}, 73728
    s_and_b32 s{sT1}, s{sWV}, 1
    s_lshl_b32 s{sT2}, s{sT1}, 11
    s_add_u32 s{sT0}, s{sT0}, s{sT2}
    s_add_u32 s{sT0}, s{sT0}, {OB}
    s_lshl_b32 s{sT1}, s{sT1}, 2
    s_add_u32 s{sT4}, s{sT4}, s{sT1}
    s_lshl_b32 s{sT1}, s{sP}, 3
    s_add_u32 s{sT4}, s{sT4}, s{sT1}
    s_add_u32 s{sT4}, s{sT4}, {FO}
    s_lshr_b32 s{sT1}, s{sP}, 3
    s_add_u32 s{sT1}, s{sT1}, 16
    s_lshl_b32 s{sT1}, s{sT1}, 12
    s_and_b32 s{sT2}, s{sP}, 6
    s_lshl_b32 s{sT2}, s{sT2}, 7
    s_add_u32 s{sT1}, s{sT1}, s{sT2}
    s_add_u32 s{sT1}, s{sT1}, s{sDL}
    s_add_u32 s{sT1}, s{sT1}, s{sT0}
    s_lshl_b32 s{sT2}, s{sP}, 12
    s_add_u32 s{sT0}, s{sT0}, s{sT2}
    v_lshlrev_b32 v134, 4, v2
    """)
    T0, T1, O1, O2 = 160, 162, 164, 166
    AF, A0L, A1L, AFL = 56, 60, 62, 64
    E = lambda q, mt: 16 + 12*mt + 4*q
    k.wait(ds=[("x", 1)])
    for mt in range(2):
        g.mfma(vr(E(0, mt), 4), vr(T0, 2), vr(144 + 4*mt, 2), k16=True)
        g.mfma(vr(E(1, mt), 4), vr(T1, 2), vr(146 + 4*mt, 2), k16=True)
    k.wait(ds=[("x", 3)])
    k(f"""
    v_mov_b32 v61, 0
    v_mov_b32 v62, 0
    v_and_b32 v{AF}, v{O1}, v248
    v_and_b32 v{AF+1}, v{O1+1}, v248
    v_and_b32 v{AF+2}, v{O1}, v249
    v_and_b32 v{AF+3}, v{O1+1}, v249
    v_and_b32 v{AFL}, v{O2}, v251
    v_and_b32 v{AFL+1}, v{O2+1}, v250
    v_and_b32 v{A0L}, v{O2}, v250
    v_and_b32 v{A1L+1}, v{O2+1}, v251
    """)
    for mt in range(2): g.mfma(vr(E(2, mt), 4), vr(AF, 4), vr(144 + 4*mt, 4))
    for mt in range(2): g.mfma(vr(E(2, mt), 4), vr(AFL, 2), vr(152 + 2*mt, 2), vr(E(2, mt), 4), k16=True)
    for mt in range(2):
        g.mfma(vr(E(0, mt), 4), vr(A0L, 2), vr(152 + 2*mt, 2), vr(E(0, mt), 4), k16=True)
        g.mfma(vr(E(1, mt), 4), vr(A1L, 2), vr(152 + 2*mt, 2), vr(E(1, mt), 4), k16=True)
    for mt in range(2):
        F = E(2, mt); c = 68 + 4*mt
        for q in range(2):
            k(f"v_add_f32 v{c+2*q}, s{sC3}, v{F+q}"); k(f"v_add_f32 v{c+2*q+1}, s{sC3}, v{F+q}")
    for mt in range(2):
        c = 68 + 4*mt
        for q in range(2): k(f"v_permlane16_swap_b32 v{c+2*q}, v{c+2*q+1}")
    for mt in range(2):
        c = 68 + 4*mt
        for q in range(2): k(f"v_rcp_f32 v{c+2*q}, v{c+2*q}")
    for mt in range(2):
        c = 68 + 4*mt; o = 80 + 8*mt
        for q in range(2):
            for r in range(4): k(f"v_mul_f32 v{E(q,mt)+r}, v{E(q,mt)+r}, v{c+2*q}")
            for h in range(2): k(f"v_cvt_pk_bf16_f32 v{o+2*q+h}, v{E(q,mt)+2*h}, v{E(q,mt)+2*h+1}")
        k.vm(f"buffer_store_dwordx4 {vr(o,4)}, v1, {sr(WS,4)}, s{sT0} offen offset:{1024*mt} sc1", "o")
    for mt in range(2):
        c = 68 + 4*mt; o = 84 + 8*mt; F = E(2, mt)
        for r in range(4): k(f"v_mul_f32 v{F+r}, v{F+r}, v{c+2*(r>>1)}")
        for h in range(2): k(f"v_cvt_pk_bf16_f32 v{o+h}, v{F+2*h}, v{F+2*h+1}")
    g.setexec(0xffff << 48)
    for mt in range(2):
        k.vm(f"buffer_store_dwordx2 {vr(84+8*mt,2)}, v134, {sr(WS,4)}, s{sT1} offen offset:{1024*mt} sc1", "o")
    g.setexec(-1)
    g.ts("O.st")
    if OPT["rdy"] == 2: ready_check(); wo_loads()
    if OPT["rdy"] in (3, 5): ready_check(); wo_loads(0, OPT["nwo"])

def sel(g, dst, se, h, tmp):
    k = g.k
    k(f"v_lshl_add_u32 v{tmp}, v2, 2, s{se}")
    k(f"v_lshlrev_b32 v{tmp+1}, 3, v3")
    k(f"v_sub_u32 v{tmp}, v{tmp}, v{tmp+1}")
    if h: k(f"v_subrev_u32 v{tmp}, 32, v{tmp}")
    k(f"v_and_b32 v{tmp+1}, 1, v{tmp}")
    k(f"v_lshlrev_b32 v{tmp+1}, 4, v{tmp+1}")
    k(f"v_mov_b32 v{tmp+2}, 0x3f80")
    k(f"v_lshlrev_b32 v{tmp+1}, v{tmp+1}, v{tmp+2}")
    k(f"v_lshrrev_b32 v{tmp}, 1, v{tmp}")
    for d in range(4):
        k(f"v_cmp_eq_u32 vcc, {d}, v{tmp}"); k(f"v_cndmask_b32 v{dst+d}, 0, v{tmp+1}, vcc")

def phase_b(g):
    k = g.k
    k(f"""
    s_and_b32 s{sT0}, s{sBC}, 1
    s_lshl_b32 s{sT0}, s{sT0}, 1
    s_add_u32 s{sT5}, s{sT0}, s{sWV}
    s_add_u32 s{sT3}, s{sT5}, 32
    s_mul_i32 s{sT3}, s{sT3}, 18432
    s_add_u32 s{sT3}, s{sT3}, {WOT}
    s_lshl_b32 s{sA1}, s{sJ}, 2
    s_add_u32 s{sA1}, s{sA1}, s{sWV}
    s_mul_i32 s{sA1}, s{sA1}, {324*1024}
    s_add_u32 s{sA1}, s{sA1}, {WT}
    """)
    B22 = OPT["b22"]
    if B22:
        k(f"""
        s_and_b32 s{sT0}, s{sWV}, 1
        s_lshl_b32 s{sT0}, s{sT0}, 1
        s_add_u32 s{sT1}, s{sT0}, 1
        s_cmp_lt_u32 s{sWV}, 2
        s_cselect_b64 s[{sMK}:{sMK+1}], -1, 0
        """)
    for h in range(2):
        sel(g, 40 + 4*h, sT0 if B22 else sWV, h, 100); sel(g, 48 + 4*h, sT5, h, 100)
        if B22: sel(g, 152 + 4*h, sT1, h, 100)
    k(f"""
    v_and_b32 v56, 31, v0
    v_lshlrev_b32 v56, 2, v56
    s_lshl_b32 s{sT0}, s{sBR}, 7
    s_add_u32 s{sT0}, s{sT0}, {FO}
    s_mul_i32 s{sT1}, s{sBR}, 73728
    s_add_u32 s{sT1}, s{sT1}, {OB}
    s_lshr_b32 s{sT2}, s{sBC}, 1
    s_lshl_b32 s{sT2}, s{sT2}, 10
    v_add_u32 v57, s{sT2}, v1
    v_add_u32 v58, 0x10000, v1
    v_add_u32 v59, 0x10000, v57
    v_and_b32 v100, 6, v0
    v_xor_b32 v100, v100, v3
    v_lshlrev_b32 v100, 4, v100
    v_and_b32 v101, 7, v0
    v_lshl_add_u32 v100, v101, 7, v100
    v_bfe_u32 v101, v0, 3, 1
    v_lshl_add_u32 v100, v101, 10, v100
    v_add_u32 v62, {XRB}, v100
    v_xor_b32 v63, 64, v62
    """)
    if B22:
        k(f"""
        s_lshr_b32 s{sT2}, s{sWV}, 1
        s_lshl_b32 s{sT2}, s{sT2}, 11
        v_add_u32 v150, s{sT2}, v1
        v_add_u32 v151, s{sT2}, v58
        s_lshl_b32 s{sT2}, s{sT2}, 1
        v_add_u32 v148, s{sT2}, v62
        v_add_u32 v149, s{sT2}, v63
        """)
    k.wait(vm="o"); g.flag(f"s{sT4}", 14, 6)
    g.ts("FO.set")
    if OPT["rdy"] in (3, 5) and OPT["nwo"] < 18: g.wo_loads(OPT["nwo"], 18)
    L = k.label("nx")
    k(f"s_cmp_ge_u32 s{sWV}, 2"); k(f"s_cbranch_scc1 {L}")
    for kk in range(18):
        k.vm(f"buffer_load_dwordx4 {ar(WOA+72+4*kk,4)}, v1, {sr(WS,4)}, s{sT3} offen offset:{(kk & 3)*1024} sc1", None, count=False)
        if kk & 3 == 3: k(f"s_add_u32 s{sT3}, s{sT3}, 4096")
    k(f"{L}:")
    g.poll1(56, f"s{sT0}", 60, wave=3)
    g.ts("FO.seen")
    for s in range(5):
        if s < 4:
            k(f"s_lshl_b32 s{sT2}, s{sWV}, 12"); k(f"s_add_u32 s{sT2}, s{sT2}, {s*16384}")
        else:
            k(f"s_lshl_b32 s{sT2}, s{sWV}, 11"); k(f"s_add_u32 s{sT2}, s{sT2}, 65536")
        k(f"s_mov_b32 m0, s{sT2}"); k(f"s_add_u32 s{sT2}, s{sT2}, s{sT1}")
        for q in range(4 if s < 4 else 2):
            k.vm(f"buffer_load_dwordx4 v1, {sr(WS,4)}, s{sT2} offen offset:{q*1024} sc1 lds", ("os", s))
    if OPT["rdy"] == 5:
        assert NP1 == 0
        k(f"""
        v_lshrrev_b32 v146, 2, v0
        v_and_b32 v147, 3, v0
        v_lshlrev_b32 v147, 3, v147
        v_lshl_add_u32 v146, v146, 7, v147
        s_and_b32 s{sA3}, s{sJ}, 1
        s_lshl_b32 s{sA3}, s{sA3}, 11
        s_lshr_b32 s{sT2}, s{sJ}, 1
        s_lshl_b32 s{sT2}, s{sT2}, 5
        s_add_u32 s{sA3}, s{sA3}, s{sT2}
        s_add_u32 s{sA3}, s{sA3}, {FO}
        """)
    for h in range(2):
        for mt in ((0, 1, 4) if B22 else range(5)):
            k.ds(f"ds_read_b128 {vr(104+8*mt+4*h,4)}, v{(148 if B22 and mt < 4 else 62)+h} offset:{2048*mt}", ("xr", h))
    later = []
    for t in (1, 2)[OPT["rsq"] if OPT["rsq"] >= 0 else 2:]: later += g.relay_store_ops(t, 168 + 16*(t - 1))
    later += [lambda seq=seq: ring_load(g, seq) for seq in range(NP1)]
    for h in range(2):
        k.wait(ds=[("xr", h)])
        for mt in range(5):
            sb = 48 if mt == 4 else 152 if B22 and mt >= 2 else 40
            xm = mt & 1 if B22 and mt < 4 else mt
            d = vr(16 + 4*mt, 4); g.mfma(d, vr(sb + 4*h, 4), vr(104 + 8*xm + 4*h, 4), d if h else None)
    PD = B22 if B22 else 1
    bufof = lambda kk: 64 + 12 * (kk % (PD + 1)) if B22 else 64 + 20 * (kk & 1)
    def reads(kk):
        buf = 64 + 20 * (kk & 1); out = []
        if B22:
            o = (kk & 15) * 4096; buf = bufof(kk)
            out.append(lambda: (k(f"s_mov_b64 exec, s[{sMK}:{sMK+1}]"),
                                k(f"ds_read_b128 {vr(buf+8,4)}, v{57 if kk < 16 else 59} offset:{o}"),
                                k("s_mov_b64 exec, -1")))
            for q in range(2):
                out.append(lambda q=q: k.ds(f"ds_read_b128 {vr(buf+4*q,4)}, v{150 + (kk >= 16)} offset:{o + q*1024}", ("ob", kk)))
            return out
        for q in range(5):
            a = (1, 57)[q == 4] if kk < 16 else (58, 59)[q == 4]
            off = (kk & 15) * 4096 + (q & 3) * 1024
            out.append(lambda q=q, a=a, off=off: k.ds(f"ds_read_b128 {vr(buf+4*q,4)}, v{a} offset:{off}", ("ob", kk)))
        return out
    k.wait(vm=("os", 0)); k("s_barrier")
    g.ts("O.first")
    for kk in range(PD):
        for f in reads(kk): f()
    for kk in range(18):
        buf = bufof(kk); fill = []
        if kk + PD < 18:
            if (kk + PD) % 4 == 0: fill.append(lambda s=(kk+PD)//4: (k.wait(vm=("os", s)), k("s_barrier")))
            fill += reads(kk + PD)
        if kk == 9 and OPT["rdy"] == 5:
            fill.append(lambda: k.vm(f"buffer_load_dwordx2 v[144:145], v146, {sr(WS,4)}, s{sA3} offen sc1", "fo2"))
        k.wait(ds=[("ob", kk)])
        for q in range(5):
            d = vr(16 + 4*q, 4)
            if B22 and q < 4: g.mfma(d, ar(72*(q >> 1) + 4*kk, 4), vr(buf + 4*(q & 1), 4), d)
            else: g.mfma(d, ar(WOA + (0 if q < 4 else 72) + 4*kk, 4), vr(buf + (8 if B22 else 4*q), 4), d)
            if fill: fill.pop(0)()
            if later: later.pop(0)()
        while fill: fill.pop(0)()
    while later: later.pop(0)()
    if OPT["rdy"] == 5: k.wait(vm="fo2"); g.check(146, f"s{sA3}", 144, 2)
    k(f"""
    s_mul_i32 s{sT0}, s{sBR}, 73728
    s_add_u32 s{sT0}, s{sT0}, {HB}
    s_and_b32 s{sT2}, s{sBC}, 1
    s_add_u32 s{sT2}, s{sT2}, 16
    s_lshl_b32 s{sT2}, s{sT2}, 2
    s_lshr_b32 s{sT3}, s{sBC}, 1
    s_add_u32 s{sT2}, s{sT2}, s{sT3}
    s_lshl_b32 s{sT2}, s{sT2}, 10
    s_lshl_b32 s{sT3}, s{sWV}, 9
    s_add_u32 s{sT2}, s{sT2}, s{sT3}
    s_add_u32 s{sT1}, s{sT2}, s{sT0}
    s_lshl_b32 s{sT2}, s{sBC}, 1
    {'s_and_b32' if B22 else 's_lshr_b32'} s{sT3}, s{sWV}, 1
    s_add_u32 s{sT2}, s{sT2}, s{sT3}
    s_lshl_b32 s{sT2}, s{sT2}, 12
    {'s_lshr_b32' if B22 else 's_and_b32'} s{sT3}, s{sWV}, 1
    s_lshl_b32 s{sT3}, s{sT3}, {11 if B22 else 9}
    s_add_u32 s{sT2}, s{sT2}, s{sT3}
    s_add_u32 s{sT0}, s{sT0}, s{sT2}
    v_lshrrev_b32 v56, 1, v3
    v_lshlrev_b32 v56, 8, v56
    v_lshl_add_u32 v56, v2, 4, v56
    v_and_b32 v57, 1, v3
    v_lshl_add_u32 v4, v57, 10, v56
    v_lshl_add_u32 v5, v57, 3, v56
    s_lshl_b32 s{sT4}, s{sBR}, 3
    s_add_u32 s{sT4}, s{sT4}, s{sBC}
    s_lshl_b32 s{sT4}, s{sT4}, 2
    s_add_u32 s{sT4}, s{sT4}, s{sWV}
    s_lshl_b32 s{sT4}, s{sT4}, 2
    s_add_u32 s{sT4}, s{sT4}, {FH}
    """)
    for pb in range(2):
        o = 40 + 4*pb
        for q in range(4):
            a = 16 + 8*pb + 2*q; k(f"v_cvt_pk_bf16_f32 v{o+q}, v{a}, v{a+1}")
        k(f"v_permlane16_swap_b32 v{o}, v{o+2}"); k(f"v_permlane16_swap_b32 v{o+1}, v{o+3}")
        k.vm(f"buffer_store_dwordx4 {vr(o,4)}, v4, {sr(WS,4)}, s{sT0} offen offset:{(512 if B22 else 2048)*pb} sc1", "h")
    k("v_cvt_pk_bf16_f32 v48, v32, v33"); k("v_cvt_pk_bf16_f32 v49, v34, v35")
    L = k.label("nx")
    k(f"s_cmp_ge_u32 s{sWV}, 2"); k(f"s_cbranch_scc1 {L}")
    k.vm(f"buffer_store_dwordx2 v[48:49], v5, {sr(WS,4)}, s{sT1} offen sc1", "h", count=False)
    k(f"{L}:")
    g.ts("H.st")
    for seq in range(NP1, NP1 + NP2A): ring_load(g, seq)
    k.wait(vm="h"); g.flag(f"s{sT4}", 14, 6)
    g.ts("FH.set")
    for seq in range(NP1 + NP2A, NP1 + NP2A + NP2B): ring_load(g, seq)

from gen3 import phase_f
```

```python
from kgen import *
from gen import *
import gen2

HP = 73728
ID = 208
vG1B, vG2A, vG2B, vHP, vHP8, vP0, vP1, vOWN, vRS = 210, 211, 212, 213, 214, 215, 216, 217, 218
SQA, SQB, vFE, vFL = 220, 224, 232, 233
ORDER = list(range(8)) + [16, 17] + list(range(8, 16))
NSEQ = 324

def b_reads(g, src, kp, buf):
    k = g.k
    a = ((1, vG1B), (vG2A, vG2B))[src][kp >= 16]
    return [lambda mt=mt: k.ds(f"ds_read_b128 {vr(buf+4*mt,4)}, v{a} offset:{(kp & 15)*4096 + mt*1024}", ("fb", src, kp, buf))
            for mt in range(4)]

class Stream:
    def __init__(self): self.seq = 0; self.step = 0; self.ptr = gen2.RING
    def target(self):
        n = self.seq + 1
        lag = OPT["lag"] * min(n, 216) // 216
        return min(NSEQ, n + gen2.RING - lag)

def gpass(g, st, src, nblk, acc, nxt, fill, hooks={}, paced={}, rate=2, name=None):
    k = g.k
    order = list(range(18)) if src == 0 else ORDER
    for pos, kp in enumerate(order):
        buf = 160 + 16 * (st.step & 1); nb = 160 + 16 * ((st.step + 1) & 1)
        pre = [hooks[pos]] if pos in hooks else []
        if pos + 1 < 18: pre += b_reads(g, src, order[pos + 1], nb)
        elif nxt is not None: pre += b_reads(g, nxt, 0, nb)
        pre += paced.get(pos, [])
        if name and OPT["fine"] and pos % OPT["fine"] == 0 and pos: g.ts(f"{name}.{pos}")
        k.wait(ds=[("fb", src, kp, buf)])
        for b in range(nblk):
            k.wait(vm=("w", st.seq))
            for mt in range(4):
                d = vr(acc + 16*b + 4*mt, 4)
                g.mfma(d, ar(4 * (st.seq % gen2.RING), 4), vr(buf + 4*mt, 4), d if pos else None)
                n = 0
                if pre: pre.pop(0)(); n += 1
                if mt == 3 and st.ptr < st.target(): gen2.ring_load(g, st.ptr); st.ptr += 1; n += 1
                while fill and n < (rate - 1 if mt == 3 else rate): fill.pop(0)(); n += 1
            st.seq += 1
        while pre: pre.pop(0)()
        st.step += 1

def relu_ops(g, acc, pis, blk8):
    k = g.k; ops = []; n = 0
    for q, pi in enumerate(pis):
        for mt in range(4):
            t = 192 + 4 * (n & 3); n += 1
            for d in range(4):
                a = acc + 16 * (2*q + (d >> 1)) + 4*mt + 2*(d & 1)
                ops.append(lambda t=t, d=d, a=a: k(f"v_cvt_pk_bf16_f32 v{t+d}, v{a}, v{a+1}"))
            for d in range(4): ops.append(lambda t=t, d=d: k(f"v_pk_max_i16 v{t+d}, v{t+d}, 0"))
            ops.append(lambda t=t, pi=pi, mt=mt: k.ds(f"ds_write_b128 v{vHP}, {vr(t,4)} offset:{pi*16384 + mt*1024}", "hp"))
    if blk8 is not None:
        for mt in range(4):
            t = 192 + 4 * (n & 3); n += 1
            for d in range(2):
                a = acc + 16*blk8 + 4*mt + 2*d
                ops.append(lambda t=t, d=d, a=a: k(f"v_cvt_pk_bf16_f32 v{t+d}, v{a}, v{a+1}"))
            for d in range(2): ops.append(lambda t=t, d=d: k(f"v_pk_max_i16 v{t+d}, v{t+d}, 0"))
            ops.append(lambda t=t, mt=mt: k.ds(f"ds_write_b64 v{vHP8}, {vr(t,2)} offset:{mt*1024}", "hp"))
    return ops

def blk_index(g, dst, rel):
    k = g.k
    if rel == 0: k(f"s_add_u32 s{dst}, s{sA2}, 8")
    else:
        k(f"s_add_u32 s{dst}, s{sJ}, {rel}"); k(f"s_and_b32 s{dst}, s{dst}, 7"); k(f"s_add_u32 s{dst}, s{dst}, s{sA2}")

def part_ops(g, acc, rels, tag):
    k = g.k; ops = []; n = 0
    for b, rel in enumerate(rels):
        ops.append(lambda rel=rel: (blk_index(g, sT0, rel), k(f"s_lshl_b32 s{sT0}, s{sT0}, 16"), k(f"s_add_u32 s{sT0}, s{sT0}, s{sA3}")))
        for pb in range(2):
            t = 192 + 4 * (n & 3); n += 1
            for q in range(4):
                a = acc + 16*b + 8*pb + 2*q
                ops.append(lambda t=t, q=q, a=a: k(f"v_cvt_pk_bf16_f32 v{t+q}, v{a}, v{a+1}"))
            for q in range(2): ops.append(lambda t=t, q=q: k(f"v_permlane16_swap_b32 v{t+q}, v{t+q+2}"))
            ops.append(lambda t=t, pb=pb: k.vm(f"buffer_store_dwordx4 {vr(t,4)}, v{vP0+pb}, {sr(WS,4)}, s{sT0} offen sc1", tag))
    return ops

def part_flags(g, rels, tag):
    k = g.k
    k.wait(vm=tag); k("s_mov_b64 exec, 1")
    for rel in rels:
        blk_index(g, sT1, rel); k(f"s_lshl_b32 s{sT1}, s{sT1}, 7"); k(f"s_add_u32 s{sT1}, s{sT1}, s{sT5}")
        k.vm(f"buffer_store_dword v14, v6, {sr(WS,4)}, s{sT1} offen sc1")
    k("s_mov_b64 exec, -1")

def h_pieces(g, sblk, dst, tag, count=True):
    k = g.k
    k(f"s_lshl_b32 s{sT0}, s{sblk}, 13"); k(f"s_add_u32 s{sT0}, s{sT0}, s{sT4}"); k(f"s_add_u32 s{sT1}, s{sT0}, 4096")
    for e in range(4):
        k.vm(f"buffer_load_dwordx2 {vr(dst+2*e,2)}, v5, {sr(WS,4)}, s{sT0 if e < 2 else sT1} offen offset:{(e & 1)*512} sc1", tag, count)

def part_base(g, sblk):
    k = g.k
    k(f"""
    s_add_u32 s{sT2}, s{sA2}, s{sblk}
    s_lshl_b32 s{sT2}, s{sT2}, 16
    s_lshl_b32 s{sT1}, s{sWV}, 11
    s_add_u32 s{sT2}, s{sT2}, s{sT1}
    s_add_u32 s{sT2}, s{sT2}, {PB}
    """)

def part_loads(g, qs, regs, tag, count=True):
    k = g.k
    for q, rg in zip(qs, regs):
        k(f"s_add_u32 s{sT0}, s{sJ}, {q}"); k(f"s_and_b32 s{sT0}, s{sT0}, 7"); k(f"s_lshl_b32 s{sT0}, s{sT0}, 13")
        k(f"s_add_u32 s{sT0}, s{sT0}, s{sT2}")
        for c in range(2):
            k.vm(f"buffer_load_dwordx4 {rg(4*c,4)}, v1, {sr(WS,4)}, s{sT0} offen offset:{1024*c} sc1", (tag, q, c), count)

def part_sum(g, acc, qs, regs, tag, first):
    k = g.k
    for n, (q, rg) in enumerate(zip(qs, regs)):
        for c in range(2):
            k.wait(vm=(tag, q, c))
            for h in range(2):
                d = vr(acc + 8*c + 4*h, 4); g.mfma(d, vr(ID, 2), rg(4*c + 2*h, 2), None if first and n == 0 else d, k16=True)

def out_store(g, tmp, sblk, r):
    k = g.k
    if r == 1: k(f"s_lshl_b32 s{sT0}, s{sblk}, 7")
    k.vm(f"buffer_store_dwordx4 {vr(tmp+2*(r-1),4)}, v7, {sr(OS,4)}, s{sT0} offen offset:{8*(r-1)}")

def finish(g, acc, res, tmp, sblk):
    k = g.k
    for c in range(2):
        for r in range(4): k(f"v_permlane16_swap_b32 v{acc+8*c+r}, v{acc+4+8*c+r}")
    for e in range(4):
        for r in range(4): k(f"v_fma_f32 v{acc+4*e+r}, v{acc+4*e+r}, v{vRS}, v{res+4*e+r}")
    for r in range(4):
        for c in range(2): k(f"v_cvt_pk_bf16_f32 v{tmp+2*r+c}, v{acc+8*c+r}, v{acc+4+8*c+r}")
        if r & 1 and sblk is not None: out_store(g, tmp, sblk, r)

def stat_ops(g):
    k = g.k; a = SQA
    txt = [f"v_and_b32 v{a+4}, 3, v0", f"v_lshrrev_b32 v{a+5}, 2, v2"]
    for r in range(1, 4):
        txt += [f"v_cmp_eq_u32 vcc, {r}, v{a+4}", f"v_cndmask_b32 v{a}, v{a}, v{a+r}, vcc"]
    txt += [f"v_cmp_eq_u32 vcc, v{a+5}, v3", f"v_cndmask_b32 v{a}, 0, v{a}, vcc",
            f"v_mov_b32 v{a+1}, v{a}", f"v_permlane16_swap_b32 v{a}, v{a+1}", f"v_add_f32 v{a}, v{a}, v{a+1}",
            f"v_mov_b32 v{a+1}, v{a}", f"v_permlane32_swap_b32 v{a}, v{a+1}", f"v_add_f32 v{a}, v{a}, v{a+1}",
            f"v_fma_f32 v{a}, v{a}, s{sC1}, v15", f"v_rsq_f32 v{vRS}, v{a}"]
    return [lambda t=t: k(t) for t in txt]

def claim_ops(g):
    k = g.k; ops = []
    for rel in range(8):
        for pb in range(2):
            def f(rel=rel, pb=pb):
                blk_index(g, sT2, rel); k(f"s_lshl_b32 s{sT2}, s{sT2}, 16"); k(f"s_add_u32 s{sT2}, s{sT2}, s{sA3}")
                k.vm(f"buffer_store_dwordx4 v[228:231], v{vP0+pb}, {sr(WS,4)}, s{sT2} offen sc1", "claim")
            ops.append(f)
    return ops

def phase_f(g):
    k = g.k
    k(f"""
    s_lshl_b32 s{sT0}, s{sRF}, 7
    s_add_u32 s{sT0}, s{sT0}, {FH}
    s_mul_i32 s{sT4}, s{sRF}, 73728
    s_lshl_b32 s{sT1}, s{sWV}, 10
    s_add_u32 s{sT4}, s{sT4}, s{sT1}
    s_add_u32 s{sT4}, s{sT4}, {HB}
    v_and_b32 v56, 31, v0
    v_lshlrev_b32 v56, 2, v56
    v_lshlrev_b32 v57, 2, v3
    v_sub_u32 v57, v2, v57
    v_and_b32 v58, 1, v57
    v_lshlrev_b32 v58, 4, v58
    v_mov_b32 v59, 0x3f80
    v_lshlrev_b32 v58, v58, v59
    v_lshrrev_b32 v57, 1, v57
    v_cmp_eq_u32 vcc, 0, v57
    v_cndmask_b32 v{ID}, 0, v58, vcc
    v_cmp_eq_u32 vcc, 1, v57
    v_cndmask_b32 v{ID+1}, 0, v58, vcc
    v_add_u32 v{vG1B}, 0x10000, v1
    v_add_u32 v{vG2A}, {HP}, v1
    v_add_u32 v{vG2B}, {HP + 65536}, v1
    s_lshl_b32 s{sT2}, s{sWV}, 12
    v_add_u32 v{vHP}, s{sT2}, v{vG2A}
    s_lshr_b32 s{sT2}, s{sWV}, 1
    s_lshl_b32 s{sT3}, s{sT2}, 12
    s_and_b32 s{sA3}, s{sWV}, 1
    s_lshl_b32 s{sT5}, s{sA3}, 3
    s_add_u32 s{sT3}, s{sT3}, s{sT5}
    v_add_u32 v{vHP8}, s{sT3}, v{vG2B}
    s_lshl_b32 s{sT2}, s{sT2}, 10
    s_lshl_b32 s{sA3}, s{sA3}, 8
    s_add_u32 s{sA3}, s{sA3}, s{sT2}
    s_lshl_b32 s{sT2}, s{sJ}, 13
    s_add_u32 s{sA3}, s{sA3}, s{sT2}
    s_add_u32 s{sA3}, s{sA3}, {PB}
    s_mul_i32 s{sA2}, s{sRF}, 9
    s_lshl_b32 s{sT5}, s{sJ}, 2
    s_add_u32 s{sT5}, s{sT5}, s{sWV}
    s_lshl_b32 s{sT5}, s{sT5}, 2
    s_add_u32 s{sT5}, s{sT5}, {FP}
    v_and_b32 v57, 1, v3
    v_lshrrev_b32 v58, 1, v3
    v_lshlrev_b32 v58, 9, v58
    v_lshl_add_u32 v58, v57, 11, v58
    v_lshl_add_u32 v{vP0}, v2, 4, v58
    v_add_u32 v{vP1}, 0x1000, v{vP0}
    v_add_u32 v8, s{sT1}, v1
    v_add_u32 v9, 0x10000, v8
    v_add_u32 v{vOWN}, {AUX}, v8
    s_lshl_b32 s{sT2}, s{sRF}, 6
    s_lshl_b32 s{sT3}, s{sWV}, 4
    s_add_u32 s{sT2}, s{sT2}, s{sT3}
    v_add_u32 v7, s{sT2}, v2
    s_movk_i32 s{sT2}, 1152
    v_mul_u32_u24 v7, s{sT2}, v7
    v_lshl_add_u32 v7, v3, 5, v7
    """)
    for r in range(4): k(f"v_mov_b32 v{92+r}, {hex(ONE2)}")
    g.poll1(56, f"s{sT0}", 60)
    g.ts("FH.seen")
    k(f"s_mov_b32 s{sT0}, s{sT4}")
    ND = OPT["nd"]; NU = 18 - ND
    HR = lambda kk: 16 + 4*kk if kk < NU else 96 + 4*(kk - NU)
    MN = 152 if ND else 88
    TR = lambda kk: (96 + 8*(kk % 3)) if not ND else (56 + 8*(kk % 3)) if kk < NU else 136 + 8*(kk & 1)
    OR = lambda kk: (192 if ND else 128) + 4*(kk & 3)
    for kk in range(18):
        k.vm(f"buffer_load_dwordx4 {vr(HR(kk),4)}, v1, {sr(WS,4)}, s{sT0} offen sc1", ("h", kk))
        if kk < 17: k(f"s_add_u32 s{sT0}, s{sT0}, 4096")
    rest = list(range(gen2.NP1 + gen2.NP2A + gen2.NP2B, gen2.RING - OPT["rl"]))
    while len(rest) > OPT["rc"]: gen2.ring_load(g, rest.pop(0))
    for kk in range(18):
        k.wait(vm=("h", kk)); g.mfma(vr(MN, 4), "v[92:95]", vr(HR(kk), 4), vr(MN, 4) if kk else None)
    g.ts("H.in")
    for r in range(4): k(f"v_mul_f32 v{MN+r}, s{sC0}, v{MN+r}")
    def cen(kk, h):
        g.mfma(vr(TR(kk) + 4*h, 4), vr(ID, 2), vr(HR(kk) + 2*h, 2), vr(MN, 4), k16=True)
    def cvt(kk):
        t = TR(kk); o = OR(kk)
        for d in range(4): k(f"v_cvt_pk_bf16_f32 v{o+d}, v{t+2*d}, v{t+2*d+1}")
        k.ds(f"ds_write_b128 v{8 if kk < 16 else 9}, {vr(o,4)} offset:{(kk & 15)*4096}", "cw")
    def gram(kk):
        o = vr(OR(kk), 4); g.mfma(vr(SQA, 4), o, o, vr(SQA, 4) if kk else None)
    for kk in range(NU):
        for h in range(2): cen(kk, h)
        for _ in range(-(-len(rest) // (NU - kk))): gen2.ring_load(g, rest.pop(0))
        if kk >= 2: gram(kk - 2)
        if kk >= 1: cvt(kk - 1)
    cvt(NU - 1); gram(NU - 2); gram(NU - 1)
    k.wait(ds="all"); k("s_barrier")
    g.ts("F.start")
    st = Stream(); st.ptr -= OPT["rl"]
    for f in b_reads(g, 0, 0, 160): f()
    bar = lambda: (k.wait(ds=["hp"]), k("s_barrier"))
    def late_load():
        k(f"s_lshl_b32 s{sT0}, s{sJ}, 9"); k(f"s_add_u32 s{sT0}, s{sT0}, {FH}"); k("v_lshlrev_b32 v98, 3, v0")
        k.vm(f"buffer_load_dwordx2 v[96:97], v98, {sr(WS,4)}, s{sT0} offen sc1", "late")
    def late_check():
        k.wait(vm="late"); g.check(98, f"s{sT0}", 96, 2)
    sops = stat_ops(g); cl = claim_ops(g) if OPT["claim"] else []
    pa = {4: sops[:9], 5: sops[9:]}; pb_ = {}; hk = {}
    if ND:
        assert ND <= 10 and OPT["rdy"] == 5
        DP = OPT["dp"]; steps = list(range(NU, 18)); pos = 0; pa = {}
        while steps:
            now, steps = steps[:DP], steps[DP:]
            nop = lambda: None
            ops = [lambda kk=kk, h=h: cen(kk, h) for kk in now for h in range(2)] + [nop]
            ops += [lambda kk=kk: cvt(kk) for kk in now] + [nop] + [lambda kk=kk: gram(kk) for kk in now]
            pa[pos] = ops; pos += 1
        assert pos <= NU - 1
        pa[pos] = sops[:9]; pa[pos + 1] = sops[9:]
        hk[NU - 1] = lambda: (k.wait(ds=["cw"]), k("s_barrier"))
    def w_touch(h):
        n0 = OPT["wpf"]; per = (NSEQ - n0) * 8 // 16
        k(f"s_lshr_b32 s{sT2}, s{sI}, 1"); k(f"s_mul_i32 s{sT2}, s{sT2}, {per*128}")
        k(f"s_add_u32 s{sT2}, s{sT2}, {n0*1024 + h*8192}"); k(f"s_add_u32 s{sT2}, s{sT2}, s{sA1}")
        k("v_lshlrev_b32 v228, 7, v0")
        m = min(per - 64*h, 64)
        if m < 64: g.setexec((1 << m) - 1)
        k.vm(f"buffer_load_dword v{229+h}, v228, {sr(WS,4)}, s{sT2} offen sc1", "wt")
        if m < 64: g.setexec(-1)
    if OPT["wpf"]:
        for h in range(((NSEQ - OPT["wpf"]) * 8 // 16 + 63) // 64): pa[10 + h] = [lambda h=h: w_touch(h)]
    for n, f in enumerate(cl):
        pos = OPT["c0"] + n * OPT["claim"]
        (pa if pos < 18 else pb_).setdefault(pos % 18, []).append(f); assert pos < 36
    gpass(g, st, 0, 5, 16, 0, [], {2: late_load, 9: late_check} if OPT['rsq'] >= 0 and OPT['rdy'] != 5 else hk, pa)
    g.ts("G1a")
    fill = relu_ops(g, 16, (0, 1), 4)
    gpass(g, st, 0, 4, 96, 1, fill, {17: bar}, pb_); assert not fill
    g.ts("G1b")
    fill = relu_ops(g, 96, (2, 3), None)
    def chk9():
        assert not fill
        bar()
    gpass(g, st, 1, 3, 16, 1, fill, {9: chk9})
    g.ts("P1")
    def flag_addr():
        k(f"""
        v_and_b32 v{vFL}, 31, v0
        v_lshrrev_b32 v48, 2, v{vFL}
        v_add_u32 v49, 4, v{vFL}
        v_and_b32 v49, 31, v49
        v_cmp_eq_u32 vcc, s{sJ}, v48
        v_cndmask_b32 v{vFL}, v{vFL}, v49, vcc
        v_lshlrev_b32 v{vFL}, 2, v{vFL}
        s_add_u32 s{sT0}, s{sJ}, 7
        v_bfe_u32 v48, v0, 2, 1
        v_sub_u32 v48, s{sT0}, v48
        v_and_b32 v48, 7, v48
        v_and_b32 v49, 3, v0
        v_lshl_add_u32 v48, v48, 2, v49
        s_lshl_b32 s{sT0}, s{sJ}, 5
        v_add_u32 v48, s{sT0}, v48
        v_add_u32 v49, 256, v0
        v_cmp_gt_u32 vcc, 32, v0
        v_cndmask_b32 v{vFE}, v48, v49, vcc
        v_lshlrev_b32 v{vFE}, 2, v{vFE}
        s_lshl_b32 s{sXB}, s{sA2}, 7
        s_add_u32 s{sXB}, s{sXB}, {FP}
        s_lshl_b32 s{sXB+1}, s{sJ}, 7
        s_add_u32 s{sXB+1}, s{sXB+1}, s{sXB}
        s_movk_i32 s{sXB+2}, 8
        """)
    fill = part_ops(g, 16, (0, 1, 2), "p1")
    gpass(g, st, 1, 3, 96, 1, fill, {12: flag_addr}, name="p2"); assert not fill
    g.ts("P2")
    fill = part_ops(g, 96, (3, 4, 5), "p2")
    gpass(g, st, 1, 2, 16, 1, fill, {OPT["f1"]: lambda: part_flags(g, (0, 1, 2), "p1"),
                                     14: lambda: h_pieces(g, sJ, 144, "hp")}, name="p3"); assert not fill
    g.ts("P3")
    V = lambda b: (lambda o, n: vr(b + o, n))
    A = lambda b: (lambda o, n: ar(b + o, n))
    R8 = [A(4 * (264 % gen2.RING) + 8*n) for n in range(8)]
    def owner(body):
        L = k.label("n8")
        k(f"s_lshl_b32 s{sT0}, s{sWV}, 1"); k(f"s_cmp_lg_u32 s{sT0}, s{sJ}"); k(f"s_cbranch_scc1 {L}")
        body(); k(f"{L}:")
    fill = part_ops(g, 16, (6, 7), "p3")
    def early_load():
        assert not fill
        k.vm(f"buffer_load_dword v60, v{vFE}, {sr(WS,4)}, s{sXB} offen sc1", "fe")
    def publish():
        part_flags(g, (3, 4, 5, 6, 7), "p3")
        g.ts("P4f")
        k.wait(vm="fe"); g.check(vFE, f"s{sXB}", 60, 1)
        part_base(g, sJ); part_loads(g, (7, 6), (V(48), V(56)), "pl")
        owner(lambda: (h_pieces(g, sXB + 2, 152, "h8", False), part_base(g, sXB + 2), part_loads(g, range(8), R8, "p8", False)))
    gpass(g, st, 1, 1, 96, None, fill, {OPT["f3"] - 1: early_load, OPT["f3"]: publish}, rate=OPT["r4"], name="p4")
    g.ts("P4")
    for mt in range(4): k.ds(f"ds_write_b128 v{vOWN}, {vr(96+4*mt,4)} offset:{mt*4096}")
    for e in range(4): g.mfma(vr(32 + 4*e, 4), vr(ID, 2), vr(144 + 2*e, 2), k16=True)
    k(f"s_mul_i32 s{sT0}, s{sWV}, 3072"); k(f"v_add_u32 v{vOWN}, s{sT0}, v{vOWN}")
    k.wait(ds="all"); k("s_barrier")
    for e in range(4): k.ds(f"ds_read_b128 {vr(160+4*e,4)}, v{vOWN} offset:{e*1024}", "own")
    part_sum(g, 16, (7, 6), (V(48), V(56)), "pl", True)
    k.wait(ds=["own"])
    for n in range(16): k(f"v_fma_f32 v{32+n}, v{160+n}, v{vRS}, v{32+n}")
    def block8():
        sv = list(k.vq)
        k.wait(vm="all")
        for e in range(4): g.mfma(vr(176 + 4*e, 4), vr(ID, 2), vr(152 + 2*e, 2), k16=True)
        part_sum(g, 112, range(8), R8, "p8", True)
        finish(g, 112, 176, 128, None)
        k.vq = sv
    owner(block8)
    part_base(g, sJ)
    g.ts("T.poll")
    g.poll(vFL, f"s{sXB+1}", 60)
    g.ts("T.seen")
    RL = [V(64 + 8*n) for n in range(5)]
    part_loads(g, (5, 4, 3, 2, 1), RL, "pl")
    part_sum(g, 16, (5, 4, 3, 2, 1), RL, "pl", False)
    finish(g, 16, 32, 140, sJ)
    owner(lambda: [out_store(g, 128, sXB + 2, r) for r in (1, 3)])
```

```python
from kgen import *
import gen as _g
from gen import *

NP1, NP2A, NP2B = OPT['np1'], OPT['np2'], OPT['np3']
RING = OPT['ring']
XRB = 81920
WOA = 96

def ring_load(g, seq):
    k = g.k
    if seq % 4 == 0:
        k(f"s_add_u32 s{sA0}, s{sA1}, {seq*1024}")
    k.vm(f"buffer_load_dwordx4 {ar(4*(seq % RING),4)}, v1, {sr(WS,4)}, s{sA0} offen offset:{(seq % 4)*1024} sc1", ("w", seq))

def p_touch(g):
    k = g.k
    k("v_lshlrev_b32 v158, 7, v0")
    for h in range(2):
        k(f"""
        s_lshl_b32 s{sT0}, s{sWV}, 1
        s_add_u32 s{sT0}, s{sT0}, s{sJ}
        s_add_u32 s{sT0}, s{sT0}, {h}
        s_and_b32 s{sT0}, s{sT0}, 7
        s_cmp_eq_u32 s{sT0}, s{sJ}
        s_cselect_b32 s{sT0}, 8, s{sT0}
        s_mul_i32 s{sT1}, s{sRF}, 9
        s_add_u32 s{sT0}, s{sT0}, s{sT1}
        s_lshl_b32 s{sT0}, s{sT0}, 3
        s_add_u32 s{sT0}, s{sT0}, s{sJ}
        s_lshl_b32 s{sT0}, s{sT0}, 13
        s_add_u32 s{sT0}, s{sT0}, {PB}
        """)
        k.vm(f"buffer_load_dword v{156+h}, v158, {sr(WS,4)}, s{sT0} offen sc1", "pt")

def hop1(g):
    k = g.k
    QA = [9, 10, 11]
    for f in g.tr_reads(0, QA, 64): f()
    k(f"""
    s_lshr_b32 s{sT0}, s{sI}, 3
    s_lshl_b32 s{sBR}, s{sX}, 2
    s_add_u32 s{sBR}, s{sBR}, s{sT0}
    s_and_b32 s{sBC}, s{sI}, 7
    v_mov_b32 v6, 0
    """)
    if OPT["fmap"] == 2:
        k(f"""
        s_and_b32 s{sJ}, s{sX}, 1
        s_lshl_b32 s{sJ}, s{sJ}, 2
        s_and_b32 s{sT0}, s{sI}, 3
        s_add_u32 s{sJ}, s{sJ}, s{sT0}
        s_lshr_b32 s{sRF}, s{sX}, 1
        s_lshl_b32 s{sRF}, s{sRF}, 3
        s_lshr_b32 s{sT0}, s{sI}, 2
        s_add_u32 s{sRF}, s{sRF}, s{sT0}
        """)
    elif OPT["fmap"] == 3:
        k(f"s_mov_b32 s{sJ}, s{sBC}"); k(f"s_mov_b32 s{sRF}, s{sBR}")
    elif OPT["fmap"]:
        k(f"""
        s_and_b32 s{sJ}, s{sX}, 6
        s_and_b32 s{sT0}, s{sI}, 1
        s_add_u32 s{sJ}, s{sJ}, s{sT0}
        s_and_b32 s{sRF}, s{sX}, 1
        s_lshl_b32 s{sRF}, s{sRF}, 4
        s_lshr_b32 s{sT0}, s{sI}, 1
        s_add_u32 s{sRF}, s{sRF}, s{sT0}
        """)
    else:
        k(f"s_mov_b32 s{sJ}, s{sX}"); k(f"s_mov_b32 s{sRF}, s{sI}")
    k(f"""
    s_lshl_b32 s{sT3}, s{sP}, 8
    s_lshl_b32 s{sT0}, s{sWV}, 6
    s_add_u32 s{sT3}, s{sT3}, s{sT0}
    s_lshl_b32 s{sT0}, s{sR}, 2
    s_add_u32 s{sT4}, s{sT3}, s{sT0}
    """)
    rsq = []
    for t in ((0,) if OPT["rdy"] == 5 else ()) + (1, 2)[:max(OPT["rsq"], 0)]: rsq += g.relay_store_ops(t, 176 + 8*0)
    def ready_loads():
        k(f"""
        v_lshlrev_b32 v135, 10, v3
        v_lshl_add_u32 v135, v2, 4, v135
        s_movk_i32 s{sA0}, {FK + 768}
        s_lshr_b32 s{sA1}, s{sJ}, 1
        s_lshl_b32 s{sA1}, s{sA1}, 10
        """)
        if OPT["wm"]:
            k("v_subrev_u32 v168, 256, v135"); k("v_cmp_gt_u32 vcc, 2, v3"); k("v_cndmask_b32 v135, v135, v168, vcc")
            k(f"v_add_u32 v135, {FK + 768}, v135"); k(f"s_mov_b32 s{sA0}, 0")
        k.vm(f"buffer_load_dwordx4 v[168:171], v135, {sr(WS,4)}, s{sA0} offen sc1", "fw")
        if OPT["rdy"] != 5: k.vm(f"buffer_load_dwordx4 v[172:175], v1, {sr(WS,4)}, s{sA1} offen sc1", "fw")
    def kv_one(q):
        if q == 0:
            k(f"""
            s_lshl_b32 s{sT2}, s{sP}, 16
            s_lshl_b32 s{sT1}, s{sWV}, 10
            s_add_u32 s{sT2}, s{sT2}, s{sT1}
            s_add_u32 s{sT2}, s{sT2}, {KVP}
            """)
        k.vm(f"buffer_load_dwordx4 {vr(176+4*q,4)}, v1, {sr(WS,4)}, s{sT2} offen sc1", ("kv", q))
        if q < 15: k(f"s_add_u32 s{sT2}, s{sT2}, 4096")
    kvq = [lambda q=q: kv_one(q) for q in range(16)] if OPT["kvn"] else []
    g.ts("Q.start")
    for kk in range(18):
        buf = 64 + 12 * (kk & 1); fill = []
        if kk + 1 < 18:
            if (kk + 1) % 8 == 0: fill.append(lambda: g.bump(QA))
            fill += g.tr_reads(kk + 1, QA, 64 + 12 * ((kk + 1) & 1))
        else:
            for mt in range(2):
                fill.append(lambda mt=mt: k.ds(f"ds_read_b32 v{136+mt}, v133 offset:{128*mt}", "qs"))
                fill.append(lambda mt=mt: k.ds(f"ds_read_b32 v{138+mt}, v133 offset:{128*mt+64}", "qs"))
        if kk == 3:
            fill.append(lambda: (k.wait(vm="kvp"), g.check(6, "0", 14, 1, srd=DS), k("v_mov_b32 v14, 1"), g.flag(f"s{sT4}", 14, 6)))
        if 4 <= kk < 14:
            for _ in range(OPT["rq"]):
                if rsq: fill.append(rsq.pop(0))
        if kk == 12 and not OPT["rdy"]: fill.append(ready_loads)
        if OPT["kvn"] and kk >= OPT["kvp"] + OPT["kvd"]:
            if kk == OPT["kvp"] + OPT["kvd"]: fill.insert(0, lambda: k.wait(vm="fk"))
            for n in range(OPT["kvn"]):
                if kvq: fill.insert(min(len(fill), 1 + 2*n), kvq.pop(0))
        if OPT["we"] and kk == OPT["kvp"]: fill.append(ready_loads)
        if OPT["kvp"] and kk == OPT["kvp"]:
            fill.append(lambda: (k("v_lshlrev_b32 v134, 2, v2"),
                                 k.vm(f"buffer_load_dword v240, v134, {sr(WS,4)}, s{sT3} offen sc1", "fk")))
        if kk == 5 and OPT["ptouch"]: fill.append(lambda: p_touch(g))
        if OPT["fine"] and kk in (3, 4, 9, 12): g.ts(f"q.{kk}")
        k.wait(ds=[("b", kk)])
        ms = []
        for T in range(3):
            for mt in range(2):
                d = vr(16 + 8*T + 4*mt, 4)
                ms.append((d, vr(buf + 4*T, 4), ar((kk*2+mt)*4, 4), d if kk else None))
            d = vr(40 + 4*T, 4); ms.append((d, vr(buf + 4*T, 4), "v[124:127]", d if kk else None))
        for m in ms:
            g.mfma(*m)
            if fill: fill.pop(0)()
        while fill: fill.pop(0)()
    KV = 176 if OPT["kvp"] else 64
    def kv_loads():
        k(f"""
        s_lshl_b32 s{sT0}, s{sP}, 16
        s_lshl_b32 s{sT1}, s{sWV}, 10
        s_add_u32 s{sT0}, s{sT0}, s{sT1}
        s_add_u32 s{sT0}, s{sT0}, {KVP}
        """)
        for q in range(16):
            k.vm(f"buffer_load_dwordx4 {vr(KV+4*q,4)}, v1, {sr(WS,4)}, s{sT0} offen sc1", ("kv", q))
            if q < 15: k(f"s_add_u32 s{sT0}, s{sT0}, 4096")
    if OPT["kvp"] and not OPT["kvn"]:
        assert not rsq
        LS = k.label("kvs")
        k.wait(vm="fk")
        k("v_cmp_ne_u32 vcc, 1, v240"); k(f"s_cbranch_vccnz {LS}")
        kv_loads()
        k(f"{LS}:")
    k.wait(ds=["qs"])
    g.stats([(136 + mt, 138 + mt, 140 + mt) for mt in range(2)])
    for T in range(3):
        for mt in range(2):
            el = [(16 + 8*T + 4*mt + r, 136 + mt, 40 + 4*T + r, 138 + mt, 140 + mt) for r in range(4)]
            for _ in range(-(-len(kvq) // (6 - 2*T - mt))): kvq.pop(0)()
            g.affine(el, phi=True, keep=False, tmp=64)
            dst = 144 + 4*mt + 2*T if T < 2 else 152 + 2*mt
            for h in range(2):
                a = 16 + 8*T + 4*mt + 2*h
                k(f"v_cvt_pk_bf16_f32 v{dst+h}, v{a}, v{a+1}")
    for reg, bits in ((248, 0x3111), (249, 0xC222)):
        k(f"s_mov_b32 s{sT1}, {hex(bits)}"); k(f"v_bfe_i32 v{reg}, s{sT1}, v2, 1")
    k("v_bfe_i32 v250, 2, v3, 1"); k("v_bfe_i32 v251, 4, v3, 1")
    k(f"""
    v_lshlrev_b32 v134, 2, v2
    s_lshl_b32 s{sT1}, s{sWV}, 9
    s_add_u32 s{sT1}, s{sT1}, {KVX}
    v_lshl_add_u32 v132, v0, 3, s{sT1}
    v_lshlrev_b32 v133, 3, v0
    v_add_u32 v133, {KVX}, v133
    """)
    g.ts("Q.end")
    if OPT["kvp"]:
        LD = k.label("kvd")
        k("v_cmp_ne_u32 vcc, 1, v240"); k(f"s_cbranch_vccz {LD}")
        g.poll(134, f"s{sT3}", 136)
        kv_loads()
        k(f"{LD}:")
    else:
        g.poll(134, f"s{sT3}", 136)
    assert not rsq
    ready_check = lambda: (k.wait(vm="fw"), g.check(135, f"s{sA0}", 168, 4), g.check(1, f"s{sA1}", 172, 4) if OPT["rdy"] != 5 else None)
    if not OPT["rdy"]: ready_check()
    g.ts("FK.seen")
    if not OPT["kvp"]: kv_loads()
    def wo_loads22(lo, hi):
        if lo == 0:
            k(f"""
            s_lshl_b32 s{sA2}, s{sBC}, 1
            s_and_b32 s{sA0}, s{sWV}, 1
            s_add_u32 s{sA2}, s{sA2}, s{sA0}
            s_mul_i32 s{sA2}, s{sA2}, 36864
            s_add_u32 s{sA2}, s{sA2}, {WOT}
            """)
        for n in range(lo, 36 if hi == 18 else hi):
            k.vm(f"buffer_load_dwordx4 {ar(4*n,4)}, v1, {sr(WS,4)}, s{sA2} offen offset:{(n & 3)*1024} sc1", "wo")
            if n & 3 == 3: k(f"s_add_u32 s{sA2}, s{sA2}, 4096")
    def wo_loads(lo=0, hi=18):
        if OPT["b22"]: return wo_loads22(lo, hi)
        if lo == 0:
            k(f"""
            s_lshl_b32 s{sA2}, s{sBC}, 2
            s_add_u32 s{sA2}, s{sA2}, s{sWV}
            s_mul_i32 s{sA2}, s{sA2}, 18432
            s_add_u32 s{sA2}, s{sA2}, {WOT}
            """)
        for kk in range(lo, hi):
            k.vm(f"buffer_load_dwordx4 {ar(WOA+4*kk,4)}, v1, {sr(WS,4)}, s{sA2} offen offset:{(kk & 3)*1024} sc1", "wo")
            if kk & 3 == 3: k(f"s_add_u32 s{sA2}, s{sA2}, 4096")
    g.wo_loads = wo_loads
    WE = OPT["we"]
    if WE:
        assert OPT["rdy"] == 5 and OPT["kvn"] and OPT["b22"] and WE % 4 == 0 and 18 not in (WE + OPT["nwo"], WE // 4 * 3)
        ready_check()
    early = lambda n: wo_loads(n * WE // 4, (n + 1) * WE // 4) if WE else None
    if OPT["rdy"] in (1, 2): ready_loads()
    if OPT["rdy"] == 0: wo_loads()
    k(f"""
    s_lshl_b32 s{sT0}, s{sBR}, 6
    s_lshl_b32 s{sT1}, s{sWV}, 4
    s_add_u32 s{sT1}, s{sT1}, s{sT0}
    s_mul_i32 s{sT1}, s{sT1}, 1152
    s_lshl_b32 s{sT2}, s{sBC}, 7
    s_add_u32 s{sXB}, s{sT1}, s{sT2}
    s_add_u32 s{sXB+1}, s{sXB}, 9216
    s_lshr_b32 s{sT1}, s{sBC}, 1
    s_lshl_b32 s{sT1}, s{sT1}, 4
    s_add_u32 s{sT0}, s{sT0}, s{sT1}
    s_lshl_b32 s{sT1}, s{sWV}, 3
    s_add_u32 s{sT0}, s{sT0}, s{sT1}
    s_mul_i32 s{sT0}, s{sT0}, 1152
    s_add_u32 s{sXB+2}, s{sT0}, 1024
    s_cmp_lt_u32 s{sWV}, 2
    s_cselect_b32 s{sXB+2}, s{sXB+2}, 0x7f000000
    """)
    for q in range(1, 16):
        k.wait(vm=("kv", q)); d = KV + 4*(q & 1 if q > 1 else 0)
        if q == 1: continue
        for h in range(2): k(f"v_pk_add_f32 {vr(d+2*h,2)}, {vr(d+2*h,2)}, {vr(KV+4*q+2*h,2)}")
    for h in range(2): k(f"v_pk_add_f32 {vr(KV+2*h,2)}, {vr(KV+2*h,2)}, {vr(KV+4+2*h,2)}")
    k(f"v_cvt_pk_bf16_f32 v160, v{KV}, v{KV+1}"); k(f"v_cvt_pk_bf16_f32 v161, v{KV+2}, v{KV+3}")
    k.ds("ds_write_b64 v132, v[160:161]")
    if OPT["rdy"] == 1: ready_check(); wo_loads()
    early(0)
    k.wait(ds="all"); k("s_barrier")
    for T in range(4): k.ds(f"ds_read_b64 {vr(160+2*T,2)}, v133 offset:{512*T}", ("x", T))
    if OPT["rdy"] in (3, 5) and not WE: ready_loads()
    for j in range(3):
        k(f"s_add_u32 m0, s{sDK}, {XRB + 1024*j}" if j < 2 else f"s_lshr_b32 s{sT0}, s{sDK}, 1")
        if j == 2: k(f"s_add_u32 m0, s{sT0}, {XRB + 8192}")
        k.vm(f"buffer_load_dwordx4 v12, {sr(XS,4)}, s{sXB+j} offen lds", "xr")
    k(f"""
    s_lshl_b32 s{sT0}, s{sR}, 1
    s_lshr_b32 s{sT1}, s{sWV}, 1
    s_add_u32 s{sT0}, s{sT0}, s{sT1}
    s_lshl_b32 s{sT4}, s{sT0}, 7
    s_mul_i32 s{sT0}, s{sT0}, 73728
    s_and_b32 s{sT1}, s{sWV}, 1
    s_lshl_b32 s{sT2}, s{sT1}, 11
    s_add_u32 s{sT0}, s{sT0}, s{sT2}
    s_add_u32 s{sT0}, s{sT0}, {OB}
    s_lshl_b32 s{sT1}, s{sT1}, 2
    s_add_u32 s{sT4}, s{sT4}, s{sT1}
    s_lshl_b32 s{sT1}, s{sP}, 3
    s_add_u32 s{sT4}, s{sT4}, s{sT1}
    s_add_u32 s{sT4}, s{sT4}, {FO}
    s_lshr_b32 s{sT1}, s{sP}, 3
    s_add_u32 s{sT1}, s{sT1}, 16
    s_lshl_b32 s{sT1}, s{sT1}, 12
    s_and_b32 s{sT2}, s{sP}, 6
    s_lshl_b32 s{sT2}, s{sT2}, 7
    s_add_u32 s{sT1}, s{sT1}, s{sT2}
    s_add_u32 s{sT1}, s{sT1}, s{sDL}
    s_add_u32 s{sT1}, s{sT1}, s{sT0}
    s_lshl_b32 s{sT2}, s{sP}, 12
    s_add_u32 s{sT0}, s{sT0}, s{sT2}
    v_lshlrev_b32 v134, 4, v2
    """)
    early(1)
    T0, T1, O1, O2 = 160, 162, 164, 166
    AF, A0L, A1L, AFL = 56, 60, 62, 64
    E = lambda q, mt: 16 + 12*mt + 4*q
    k.wait(ds=[("x", 1)])
    for mt in range(2):
        g.mfma(vr(E(0, mt), 4), vr(T0, 2), vr(144 + 4*mt, 2), k16=True)
        g.mfma(vr(E(1, mt), 4), vr(T1, 2), vr(146 + 4*mt, 2), k16=True)
    k.wait(ds=[("x", 3)])
    k(f"""
    v_mov_b32 v61, 0
    v_mov_b32 v62, 0
    v_and_b32 v{AF}, v{O1}, v248
    v_and_b32 v{AF+1}, v{O1+1}, v248
    v_and_b32 v{AF+2}, v{O1}, v249
    v_and_b32 v{AF+3}, v{O1+1}, v249
    v_and_b32 v{AFL}, v{O2}, v251
    v_and_b32 v{AFL+1}, v{O2+1}, v250
    v_and_b32 v{A0L}, v{O2}, v250
    v_and_b32 v{A1L+1}, v{O2+1}, v251
    """)
    for mt in range(2): g.mfma(vr(E(2, mt), 4), vr(AF, 4), vr(144 + 4*mt, 4))
    early(2)
    for mt in range(2): g.mfma(vr(E(2, mt), 4), vr(AFL, 2), vr(152 + 2*mt, 2), vr(E(2, mt), 4), k16=True)
    for mt in range(2):
        g.mfma(vr(E(0, mt), 4), vr(A0L, 2), vr(152 + 2*mt, 2), vr(E(0, mt), 4), k16=True)
        g.mfma(vr(E(1, mt), 4), vr(A1L, 2), vr(152 + 2*mt, 2), vr(E(1, mt), 4), k16=True)
    early(3)
    for mt in range(2):
        F = E(2, mt); c = 68 + 4*mt
        for q in range(2):
            k(f"v_add_f32 v{c+2*q}, s{sC3}, v{F+q}"); k(f"v_add_f32 v{c+2*q+1}, s{sC3}, v{F+q}")
    for mt in range(2):
        c = 68 + 4*mt
        for q in range(2): k(f"v_permlane16_swap_b32 v{c+2*q}, v{c+2*q+1}")
    for mt in range(2):
        c = 68 + 4*mt
        for q in range(2): k(f"v_rcp_f32 v{c+2*q}, v{c+2*q}")
    for mt in range(2):
        c = 68 + 4*mt; o = 80 + 8*mt
        for q in range(2):
            for r in range(4): k(f"v_mul_f32 v{E(q,mt)+r}, v{E(q,mt)+r}, v{c+2*q}")
            for h in range(2): k(f"v_cvt_pk_bf16_f32 v{o+2*q+h}, v{E(q,mt)+2*h}, v{E(q,mt)+2*h+1}")
        k.vm(f"buffer_store_dwordx4 {vr(o,4)}, v1, {sr(WS,4)}, s{sT0} offen offset:{1024*mt} sc1", "o")
    for mt in range(2):
        c = 68 + 4*mt; o = 84 + 8*mt; F = E(2, mt)
        for r in range(4): k(f"v_mul_f32 v{F+r}, v{F+r}, v{c+2*(r>>1)}")
        for h in range(2): k(f"v_cvt_pk_bf16_f32 v{o+h}, v{F+2*h}, v{F+2*h+1}")
    g.setexec(0xffff << 48)
    for mt in range(2):
        k.vm(f"buffer_store_dwordx2 {vr(84+8*mt,2)}, v134, {sr(WS,4)}, s{sT1} offen offset:{1024*mt} sc1", "o")
    g.setexec(-1)
    g.ts("O.st")
    if OPT["rdy"] == 2: ready_check(); wo_loads()
    if WE: wo_loads(WE, WE + OPT["nwo"])
    elif OPT["rdy"] in (3, 5): ready_check(); wo_loads(0, OPT["nwo"])

def sel(g, dst, se, h, tmp):
    k = g.k
    k(f"v_lshl_add_u32 v{tmp}, v2, 2, s{se}")
    k(f"v_lshlrev_b32 v{tmp+1}, 3, v3")
    k(f"v_sub_u32 v{tmp}, v{tmp}, v{tmp+1}")
    if h: k(f"v_subrev_u32 v{tmp}, 32, v{tmp}")
    k(f"v_and_b32 v{tmp+1}, 1, v{tmp}")
    k(f"v_lshlrev_b32 v{tmp+1}, 4, v{tmp+1}")
    k(f"v_mov_b32 v{tmp+2}, 0x3f80")
    k(f"v_lshlrev_b32 v{tmp+1}, v{tmp+1}, v{tmp+2}")
    k(f"v_lshrrev_b32 v{tmp}, 1, v{tmp}")
    for d in range(4):
        k(f"v_cmp_eq_u32 vcc, {d}, v{tmp}"); k(f"v_cndmask_b32 v{dst+d}, 0, v{tmp+1}, vcc")

def phase_b(g):
    k = g.k
    k(f"""
    s_and_b32 s{sT0}, s{sBC}, 1
    s_lshl_b32 s{sT0}, s{sT0}, 1
    s_add_u32 s{sT5}, s{sT0}, s{sWV}
    s_add_u32 s{sT3}, s{sT5}, 32
    s_mul_i32 s{sT3}, s{sT3}, 18432
    s_add_u32 s{sT3}, s{sT3}, {WOT}
    s_lshl_b32 s{sA1}, s{sJ}, 2
    s_add_u32 s{sA1}, s{sA1}, s{sWV}
    s_mul_i32 s{sA1}, s{sA1}, {324*1024}
    s_add_u32 s{sA1}, s{sA1}, {WT}
    """)
    B22 = OPT["b22"]
    if B22:
        k(f"""
        s_and_b32 s{sT0}, s{sWV}, 1
        s_lshl_b32 s{sT0}, s{sT0}, 1
        s_add_u32 s{sT1}, s{sT0}, 1
        s_cmp_lt_u32 s{sWV}, 2
        s_cselect_b64 s[{sMK}:{sMK+1}], -1, 0
        """)
    for h in range(2):
        sel(g, 40 + 4*h, sT0 if B22 else sWV, h, 100); sel(g, 48 + 4*h, sT5, h, 100)
        if B22: sel(g, 152 + 4*h, sT1, h, 100)
    k(f"""
    v_and_b32 v56, 31, v0
    v_lshlrev_b32 v56, 2, v56
    s_lshl_b32 s{sT0}, s{sBR}, 7
    s_add_u32 s{sT0}, s{sT0}, {FO}
    s_mul_i32 s{sT1}, s{sBR}, 73728
    s_add_u32 s{sT1}, s{sT1}, {OB}
    s_lshr_b32 s{sT2}, s{sBC}, 1
    s_lshl_b32 s{sT2}, s{sT2}, 10
    v_add_u32 v57, s{sT2}, v1
    v_add_u32 v58, 0x10000, v1
    v_add_u32 v59, 0x10000, v57
    v_and_b32 v100, 6, v0
    v_xor_b32 v100, v100, v3
    v_lshlrev_b32 v100, 4, v100
    v_and_b32 v101, 7, v0
    v_lshl_add_u32 v100, v101, 7, v100
    v_bfe_u32 v101, v0, 3, 1
    v_lshl_add_u32 v100, v101, 10, v100
    v_add_u32 v62, {XRB}, v100
    v_xor_b32 v63, 64, v62
    """)
    if B22:
        k(f"""
        s_lshr_b32 s{sT2}, s{sWV}, 1
        s_lshl_b32 s{sT2}, s{sT2}, 11
        v_add_u32 v150, s{sT2}, v1
        v_add_u32 v151, s{sT2}, v58
        s_lshl_b32 s{sT2}, s{sT2}, 1
        v_add_u32 v148, s{sT2}, v62
        v_add_u32 v149, s{sT2}, v63
        """)
    k.wait(vm="o"); g.flag(f"s{sT4}", 14, 6)
    g.ts("FO.set")
    if OPT["rdy"] in (3, 5) and OPT["nwo"] < 18: g.wo_loads(OPT["we"] + OPT["nwo"], 18)
    L = k.label("nx")
    k(f"s_cmp_ge_u32 s{sWV}, 2"); k(f"s_cbranch_scc1 {L}")
    for kk in range(18):
        k.vm(f"buffer_load_dwordx4 {ar(WOA+72+4*kk,4)}, v1, {sr(WS,4)}, s{sT3} offen offset:{(kk & 3)*1024} sc1", None, count=False)
        if kk & 3 == 3: k(f"s_add_u32 s{sT3}, s{sT3}, 4096")
    k(f"{L}:")
    g.poll1(56, f"s{sT0}", 60, wave=3)
    g.ts("FO.seen")
    for s in range(5):
        if s < 4:
            k(f"s_lshl_b32 s{sT2}, s{sWV}, 12"); k(f"s_add_u32 s{sT2}, s{sT2}, {s*16384}")
        else:
            k(f"s_lshl_b32 s{sT2}, s{sWV}, 11"); k(f"s_add_u32 s{sT2}, s{sT2}, 65536")
        k(f"s_mov_b32 m0, s{sT2}"); k(f"s_add_u32 s{sT2}, s{sT2}, s{sT1}")
        for q in range(4 if s < 4 else 2):
            k.vm(f"buffer_load_dwordx4 v1, {sr(WS,4)}, s{sT2} offen offset:{q*1024} sc1 lds", ("os", s))
    if OPT["rdy"] == 5:
        assert NP1 == 0
        k(f"""
        v_lshrrev_b32 v146, 2, v0
        v_and_b32 v147, 3, v0
        v_lshlrev_b32 v147, 3, v147
        v_lshl_add_u32 v146, v146, 7, v147
        s_and_b32 s{sA3}, s{sJ}, 1
        s_lshl_b32 s{sA3}, s{sA3}, 11
        s_lshr_b32 s{sT2}, s{sJ}, 1
        s_lshl_b32 s{sT2}, s{sT2}, 5
        s_add_u32 s{sA3}, s{sA3}, s{sT2}
        s_add_u32 s{sA3}, s{sA3}, {FO}
        """)
    for h in range(2):
        for mt in ((0, 1, 4) if B22 else range(5)):
            k.ds(f"ds_read_b128 {vr(104+8*mt+4*h,4)}, v{(148 if B22 and mt < 4 else 62)+h} offset:{2048*mt}", ("xr", h))
    later = []
    for t in (1, 2)[OPT["rsq"] if OPT["rsq"] >= 0 else 2:]: later += g.relay_store_ops(t, 168 + 16*(t - 1))
    later += [lambda seq=seq: ring_load(g, seq) for seq in range(NP1)]
    for h in range(2):
        k.wait(ds=[("xr", h)])
        for mt in range(5):
            sb = 48 if mt == 4 else 152 if B22 and mt >= 2 else 40
            xm = mt & 1 if B22 and mt < 4 else mt
            d = vr(16 + 4*mt, 4); g.mfma(d, vr(sb + 4*h, 4), vr(104 + 8*xm + 4*h, 4), d if h else None)
    PD = B22 if B22 else 1
    bufof = lambda kk: 64 + 12 * (kk % (PD + 1)) if B22 else 64 + 20 * (kk & 1)
    def reads(kk):
        buf = 64 + 20 * (kk & 1); out = []
        if B22:
            o = (kk & 15) * 4096; buf = bufof(kk)
            out.append(lambda: (k(f"s_mov_b64 exec, s[{sMK}:{sMK+1}]"),
                                k(f"ds_read_b128 {vr(buf+8,4)}, v{57 if kk < 16 else 59} offset:{o}"),
                                k("s_mov_b64 exec, -1")))
            for q in range(2):
                out.append(lambda q=q: k.ds(f"ds_read_b128 {vr(buf+4*q,4)}, v{150 + (kk >= 16)} offset:{o + q*1024}", ("ob", kk)))
            return out
        for q in range(5):
            a = (1, 57)[q == 4] if kk < 16 else (58, 59)[q == 4]
            off = (kk & 15) * 4096 + (q & 3) * 1024
            out.append(lambda q=q, a=a, off=off: k.ds(f"ds_read_b128 {vr(buf+4*q,4)}, v{a} offset:{off}", ("ob", kk)))
        return out
    k.wait(vm=("os", 0)); k("s_barrier")
    g.ts("O.first")
    for kk in range(PD):
        for f in reads(kk): f()
    for kk in range(18):
        buf = bufof(kk); fill = []
        if kk + PD < 18:
            if (kk + PD) % 4 == 0: fill.append(lambda s=(kk+PD)//4: (k.wait(vm=("os", s)), k("s_barrier")))
            fill += reads(kk + PD)
        if kk == 9 and OPT["rdy"] == 5:
            fill.append(lambda: k.vm(f"buffer_load_dwordx2 v[144:145], v146, {sr(WS,4)}, s{sA3} offen sc1", "fo2"))
        k.wait(ds=[("ob", kk)])
        for q in range(5):
            d = vr(16 + 4*q, 4)
            if B22 and q < 4: g.mfma(d, ar(72*(q >> 1) + 4*kk, 4), vr(buf + 4*(q & 1), 4), d)
            else: g.mfma(d, ar(WOA + (0 if q < 4 else 72) + 4*kk, 4), vr(buf + (8 if B22 else 4*q), 4), d)
            if fill: fill.pop(0)()
            if later: later.pop(0)()
        while fill: fill.pop(0)()
    while later: later.pop(0)()
    if OPT["rdy"] == 5: k.wait(vm="fo2"); g.check(146, f"s{sA3}", 144, 2)
    k(f"""
    s_mul_i32 s{sT0}, s{sBR}, 73728
    s_add_u32 s{sT0}, s{sT0}, {HB}
    s_and_b32 s{sT2}, s{sBC}, 1
    s_add_u32 s{sT2}, s{sT2}, 16
    s_lshl_b32 s{sT2}, s{sT2}, 2
    s_lshr_b32 s{sT3}, s{sBC}, 1
    s_add_u32 s{sT2}, s{sT2}, s{sT3}
    s_lshl_b32 s{sT2}, s{sT2}, 10
    s_lshl_b32 s{sT3}, s{sWV}, 9
    s_add_u32 s{sT2}, s{sT2}, s{sT3}
    s_add_u32 s{sT1}, s{sT2}, s{sT0}
    s_lshl_b32 s{sT2}, s{sBC}, 1
    {'s_and_b32' if B22 else 's_lshr_b32'} s{sT3}, s{sWV}, 1
    s_add_u32 s{sT2}, s{sT2}, s{sT3}
    s_lshl_b32 s{sT2}, s{sT2}, 12
    {'s_lshr_b32' if B22 else 's_and_b32'} s{sT3}, s{sWV}, 1
    s_lshl_b32 s{sT3}, s{sT3}, {11 if B22 else 9}
    s_add_u32 s{sT2}, s{sT2}, s{sT3}
    s_add_u32 s{sT0}, s{sT0}, s{sT2}
    v_lshrrev_b32 v56, 1, v3
    v_lshlrev_b32 v56, 8, v56
    v_lshl_add_u32 v56, v2, 4, v56
    v_and_b32 v57, 1, v3
    v_lshl_add_u32 v4, v57, 10, v56
    v_lshl_add_u32 v5, v57, 3, v56
    s_lshl_b32 s{sT4}, s{sBR}, 3
    s_add_u32 s{sT4}, s{sT4}, s{sBC}
    s_lshl_b32 s{sT4}, s{sT4}, 2
    s_add_u32 s{sT4}, s{sT4}, s{sWV}
    s_lshl_b32 s{sT4}, s{sT4}, 2
    s_add_u32 s{sT4}, s{sT4}, {FH}
    """)
    for pb in range(2):
        o = 40 + 4*pb
        for q in range(4):
            a = 16 + 8*pb + 2*q; k(f"v_cvt_pk_bf16_f32 v{o+q}, v{a}, v{a+1}")
        k(f"v_permlane16_swap_b32 v{o}, v{o+2}"); k(f"v_permlane16_swap_b32 v{o+1}, v{o+3}")
        k.vm(f"buffer_store_dwordx4 {vr(o,4)}, v4, {sr(WS,4)}, s{sT0} offen offset:{(512 if B22 else 2048)*pb} sc1", "h")
    k("v_cvt_pk_bf16_f32 v48, v32, v33"); k("v_cvt_pk_bf16_f32 v49, v34, v35")
    L = k.label("nx")
    k(f"s_cmp_ge_u32 s{sWV}, 2"); k(f"s_cbranch_scc1 {L}")
    k.vm(f"buffer_store_dwordx2 v[48:49], v5, {sr(WS,4)}, s{sT1} offen sc1", "h", count=False)
    k(f"{L}:")
    g.ts("H.st")
    for seq in range(NP1, NP1 + NP2A): ring_load(g, seq)
    k.wait(vm="h"); g.flag(f"s{sT4}", 14, 6)
    g.ts("FH.set")
    for seq in range(NP1 + NP2A, NP1 + NP2A + NP2B): ring_load(g, seq)

from gen3 import phase_f
```

```python
from kgen import *
from gen import *
import gen2

HP = 73728
ID = 208
vG1B, vG2A, vG2B, vHP, vHP8, vP0, vP1, vOWN, vRS = 210, 211, 212, 213, 214, 215, 216, 217, 218
SQA, SQB, vFE, vFL = 220, 224, 232, 233
ORDER = list(range(8)) + [16, 17] + list(range(8, 16))
NSEQ = 324

def b_reads(g, src, kp, buf):
    k = g.k
    a = ((1, vG1B), (vG2A, vG2B))[src][kp >= 16]
    return [lambda mt=mt: k.ds(f"ds_read_b128 {vr(buf+4*mt,4)}, v{a} offset:{(kp & 15)*4096 + mt*1024}", ("fb", src, kp, buf))
            for mt in range(4)]

class Stream:
    def __init__(self): self.seq = 0; self.step = 0; self.ptr = gen2.RING
    def target(self):
        n = self.seq + 1
        lag = OPT["lag"] * min(n, 216) // 216
        return min(NSEQ, n + gen2.RING - lag)

def gpass(g, st, src, nblk, acc, nxt, fill, hooks={}, paced={}, rate=2, name=None):
    k = g.k
    order = list(range(18)) if src == 0 else ORDER
    for pos, kp in enumerate(order):
        buf = 160 + 16 * (st.step & 1); nb = 160 + 16 * ((st.step + 1) & 1)
        pre = [hooks[pos]] if pos in hooks else []
        if pos + 1 < 18: pre += b_reads(g, src, order[pos + 1], nb)
        elif nxt is not None: pre += b_reads(g, nxt, 0, nb)
        pre += paced.get(pos, [])
        if name and OPT["fine"] and pos % OPT["fine"] == 0 and pos: g.ts(f"{name}.{pos}")
        k.wait(ds=[("fb", src, kp, buf)])
        for b in range(nblk):
            k.wait(vm=("w", st.seq))
            for mt in range(4):
                d = vr(acc + 16*b + 4*mt, 4)
                g.mfma(d, ar(4 * (st.seq % gen2.RING), 4), vr(buf + 4*mt, 4), d if pos else None)
                n = 0
                if pre: pre.pop(0)(); n += 1
                if mt == 3 and st.ptr < st.target(): gen2.ring_load(g, st.ptr); st.ptr += 1; n += 1
                while fill and n < (rate - 1 if mt == 3 else rate): fill.pop(0)(); n += 1
            st.seq += 1
        while pre: pre.pop(0)()
        st.step += 1

def relu_ops(g, acc, pis, blk8):
    k = g.k; ops = []; n = 0
    for q, pi in enumerate(pis):
        for mt in range(4):
            t = 192 + 4 * (n & 3); n += 1
            for d in range(4):
                a = acc + 16 * (2*q + (d >> 1)) + 4*mt + 2*(d & 1)
                ops.append(lambda t=t, d=d, a=a: k(f"v_cvt_pk_bf16_f32 v{t+d}, v{a}, v{a+1}"))
            for d in range(4): ops.append(lambda t=t, d=d: k(f"v_pk_max_i16 v{t+d}, v{t+d}, 0"))
            ops.append(lambda t=t, pi=pi, mt=mt: k.ds(f"ds_write_b128 v{vHP}, {vr(t,4)} offset:{pi*16384 + mt*1024}", "hp"))
    if blk8 is not None:
        for mt in range(4):
            t = 192 + 4 * (n & 3); n += 1
            for d in range(2):
                a = acc + 16*blk8 + 4*mt + 2*d
                ops.append(lambda t=t, d=d, a=a: k(f"v_cvt_pk_bf16_f32 v{t+d}, v{a}, v{a+1}"))
            for d in range(2): ops.append(lambda t=t, d=d: k(f"v_pk_max_i16 v{t+d}, v{t+d}, 0"))
            ops.append(lambda t=t, mt=mt: k.ds(f"ds_write_b64 v{vHP8}, {vr(t,2)} offset:{mt*1024}", "hp"))
    return ops

def blk_index(g, dst, rel):
    k = g.k
    if rel == 0: k(f"s_add_u32 s{dst}, s{sA2}, 8")
    else:
        k(f"s_add_u32 s{dst}, s{sJ}, {rel}"); k(f"s_and_b32 s{dst}, s{dst}, 7"); k(f"s_add_u32 s{dst}, s{dst}, s{sA2}")

def part_ops(g, acc, rels, tag):
    k = g.k; ops = []; n = 0
    for b, rel in enumerate(rels):
        ops.append(lambda rel=rel: (blk_index(g, sT0, rel), k(f"s_lshl_b32 s{sT0}, s{sT0}, 16"), k(f"s_add_u32 s{sT0}, s{sT0}, s{sA3}")))
        for pb in range(2):
            t = 192 + 4 * (n & 3); n += 1
            for q in range(4):
                a = acc + 16*b + 8*pb + 2*q
                ops.append(lambda t=t, q=q, a=a: k(f"v_cvt_pk_bf16_f32 v{t+q}, v{a}, v{a+1}"))
            for q in range(2): ops.append(lambda t=t, q=q: k(f"v_permlane16_swap_b32 v{t+q}, v{t+q+2}"))
            ops.append(lambda t=t, pb=pb: k.vm(f"buffer_store_dwordx4 {vr(t,4)}, v{vP0+pb}, {sr(WS,4)}, s{sT0} offen sc1", tag))
    return ops

def part_flags(g, rels, tag):
    k = g.k
    k.wait(vm=tag); k("s_mov_b64 exec, 1")
    for rel in rels:
        blk_index(g, sT1, rel); k(f"s_lshl_b32 s{sT1}, s{sT1}, 7"); k(f"s_add_u32 s{sT1}, s{sT1}, s{sT5}")
        k.vm(f"buffer_store_dword v14, v6, {sr(WS,4)}, s{sT1} offen sc1")
    k("s_mov_b64 exec, -1")

def h_pieces(g, sblk, dst, tag, count=True):
    k = g.k
    k(f"s_lshl_b32 s{sT0}, s{sblk}, 13"); k(f"s_add_u32 s{sT0}, s{sT0}, s{sT4}"); k(f"s_add_u32 s{sT1}, s{sT0}, 4096")
    for e in range(4):
        k.vm(f"buffer_load_dwordx2 {vr(dst+2*e,2)}, v5, {sr(WS,4)}, s{sT0 if e < 2 else sT1} offen offset:{(e & 1)*512} sc1", tag, count)

def part_base(g, sblk):
    k = g.k
    k(f"""
    s_add_u32 s{sT2}, s{sA2}, s{sblk}
    s_lshl_b32 s{sT2}, s{sT2}, 16
    s_lshl_b32 s{sT1}, s{sWV}, 11
    s_add_u32 s{sT2}, s{sT2}, s{sT1}
    s_add_u32 s{sT2}, s{sT2}, {PB}
    """)

def part_loads(g, qs, regs, tag, count=True):
    k = g.k
    for q, rg in zip(qs, regs):
        k(f"s_add_u32 s{sT0}, s{sJ}, {q}"); k(f"s_and_b32 s{sT0}, s{sT0}, 7"); k(f"s_lshl_b32 s{sT0}, s{sT0}, 13")
        k(f"s_add_u32 s{sT0}, s{sT0}, s{sT2}")
        for c in range(2):
            k.vm(f"buffer_load_dwordx4 {rg(4*c,4)}, v1, {sr(WS,4)}, s{sT0} offen offset:{1024*c} sc1", (tag, q, c), count)

def part_sum(g, acc, qs, regs, tag, first):
    k = g.k
    for n, (q, rg) in enumerate(zip(qs, regs)):
        for c in range(2):
            k.wait(vm=(tag, q, c))
            for h in range(2):
                d = vr(acc + 8*c + 4*h, 4); g.mfma(d, vr(ID, 2), rg(4*c + 2*h, 2), None if first and n == 0 else d, k16=True)

def out_store(g, tmp, sblk, r):
    k = g.k
    if r == 1: k(f"s_lshl_b32 s{sT0}, s{sblk}, 7")
    k.vm(f"buffer_store_dwordx4 {vr(tmp+2*(r-1),4)}, v7, {sr(OS,4)}, s{sT0} offen offset:{8*(r-1)}")

def finish(g, acc, res, tmp, sblk):
    k = g.k
    for c in range(2):
        for r in range(4): k(f"v_permlane16_swap_b32 v{acc+8*c+r}, v{acc+4+8*c+r}")
    for e in range(4):
        for r in range(4): k(f"v_fma_f32 v{acc+4*e+r}, v{acc+4*e+r}, v{vRS}, v{res+4*e+r}")
    for r in range(4):
        for c in range(2): k(f"v_cvt_pk_bf16_f32 v{tmp+2*r+c}, v{acc+8*c+r}, v{acc+4+8*c+r}")
        if r & 1 and sblk is not None: out_store(g, tmp, sblk, r)

def stat_ops(g):
    k = g.k; a = SQA
    txt = [f"v_and_b32 v{a+4}, 3, v0", f"v_lshrrev_b32 v{a+5}, 2, v2"]
    for r in range(1, 4):
        txt += [f"v_cmp_eq_u32 vcc, {r}, v{a+4}", f"v_cndmask_b32 v{a}, v{a}, v{a+r}, vcc"]
    txt += [f"v_cmp_eq_u32 vcc, v{a+5}, v3", f"v_cndmask_b32 v{a}, 0, v{a}, vcc",
            f"v_mov_b32 v{a+1}, v{a}", f"v_permlane16_swap_b32 v{a}, v{a+1}", f"v_add_f32 v{a}, v{a}, v{a+1}",
            f"v_mov_b32 v{a+1}, v{a}", f"v_permlane32_swap_b32 v{a}, v{a+1}", f"v_add_f32 v{a}, v{a}, v{a+1}",
            f"v_fma_f32 v{a}, v{a}, s{sC1}, v15", f"v_rsq_f32 v{vRS}, v{a}"]
    return [lambda t=t: k(t) for t in txt]

def claim_ops(g):
    k = g.k; ops = []
    for rel in range(8):
        for pb in range(2):
            def f(rel=rel, pb=pb):
                blk_index(g, sT2, rel); k(f"s_lshl_b32 s{sT2}, s{sT2}, 16"); k(f"s_add_u32 s{sT2}, s{sT2}, s{sA3}")
                k.vm(f"buffer_store_dwordx4 v[228:231], v{vP0+pb}, {sr(WS,4)}, s{sT2} offen sc1", "claim")
            ops.append(f)
    return ops

def phase_f(g):
    k = g.k
    k(f"""
    s_lshl_b32 s{sT0}, s{sRF}, 7
    s_add_u32 s{sT0}, s{sT0}, {FH}
    s_mul_i32 s{sT4}, s{sRF}, 73728
    s_lshl_b32 s{sT1}, s{sWV}, 10
    s_add_u32 s{sT4}, s{sT4}, s{sT1}
    s_add_u32 s{sT4}, s{sT4}, {HB}
    v_and_b32 v56, 31, v0
    v_lshlrev_b32 v56, 2, v56
    v_lshlrev_b32 v57, 2, v3
    v_sub_u32 v57, v2, v57
    v_and_b32 v58, 1, v57
    v_lshlrev_b32 v58, 4, v58
    v_mov_b32 v59, 0x3f80
    v_lshlrev_b32 v58, v58, v59
    v_lshrrev_b32 v57, 1, v57
    v_cmp_eq_u32 vcc, 0, v57
    v_cndmask_b32 v{ID}, 0, v58, vcc
    v_cmp_eq_u32 vcc, 1, v57
    v_cndmask_b32 v{ID+1}, 0, v58, vcc
    v_add_u32 v{vG1B}, 0x10000, v1
    v_add_u32 v{vG2A}, {HP}, v1
    v_add_u32 v{vG2B}, {HP + 65536}, v1
    s_lshl_b32 s{sT2}, s{sWV}, 12
    v_add_u32 v{vHP}, s{sT2}, v{vG2A}
    s_lshr_b32 s{sT2}, s{sWV}, 1
    s_lshl_b32 s{sT3}, s{sT2}, 12
    s_and_b32 s{sA3}, s{sWV}, 1
    s_lshl_b32 s{sT5}, s{sA3}, 3
    s_add_u32 s{sT3}, s{sT3}, s{sT5}
    v_add_u32 v{vHP8}, s{sT3}, v{vG2B}
    s_lshl_b32 s{sT2}, s{sT2}, 10
    s_lshl_b32 s{sA3}, s{sA3}, 8
    s_add_u32 s{sA3}, s{sA3}, s{sT2}
    s_lshl_b32 s{sT2}, s{sJ}, 13
    s_add_u32 s{sA3}, s{sA3}, s{sT2}
    s_add_u32 s{sA3}, s{sA3}, {PB}
    s_mul_i32 s{sA2}, s{sRF}, 9
    s_lshl_b32 s{sT5}, s{sJ}, 2
    s_add_u32 s{sT5}, s{sT5}, s{sWV}
    s_lshl_b32 s{sT5}, s{sT5}, 2
    s_add_u32 s{sT5}, s{sT5}, {FP}
    v_and_b32 v57, 1, v3
    v_lshrrev_b32 v58, 1, v3
    v_lshlrev_b32 v58, 9, v58
    v_lshl_add_u32 v58, v57, 11, v58
    v_lshl_add_u32 v{vP0}, v2, 4, v58
    v_add_u32 v{vP1}, 0x1000, v{vP0}
    v_add_u32 v8, s{sT1}, v1
    v_add_u32 v9, 0x10000, v8
    v_add_u32 v{vOWN}, {AUX}, v8
    s_lshl_b32 s{sT2}, s{sRF}, 6
    s_lshl_b32 s{sT3}, s{sWV}, 4
    s_add_u32 s{sT2}, s{sT2}, s{sT3}
    v_add_u32 v7, s{sT2}, v2
    s_movk_i32 s{sT2}, 1152
    v_mul_u32_u24 v7, s{sT2}, v7
    v_lshl_add_u32 v7, v3, 5, v7
    """)
    for r in range(4): k(f"v_mov_b32 v{92+r}, {hex(ONE2)}")
    g.poll1(56, f"s{sT0}", 60)
    g.ts("FH.seen")
    k(f"s_mov_b32 s{sT0}, s{sT4}")
    ND = OPT["nd"]; NU = 18 - ND
    HR = lambda kk: 16 + 4*kk if kk < NU else 96 + 4*(kk - NU)
    MN = 152 if ND else 88
    TR = lambda kk: (96 + 8*(kk % 3)) if not ND else (56 + 8*(kk % 3)) if kk < NU else 136 + 8*(kk & 1)
    OR = lambda kk: (192 if ND else 128) + 4*(kk & 3)
    for kk in range(18):
        k.vm(f"buffer_load_dwordx4 {vr(HR(kk),4)}, v1, {sr(WS,4)}, s{sT0} offen sc1", ("h", kk))
        if kk < 17: k(f"s_add_u32 s{sT0}, s{sT0}, 4096")
    rest = list(range(gen2.NP1 + gen2.NP2A + gen2.NP2B, gen2.RING - OPT["rl"]))
    while len(rest) > OPT["rc"]: gen2.ring_load(g, rest.pop(0))
    for kk in range(18):
        k.wait(vm=("h", kk)); g.mfma(vr(MN, 4), "v[92:95]", vr(HR(kk), 4), vr(MN, 4) if kk else None)
    g.ts("H.in")
    for r in range(4): k(f"v_mul_f32 v{MN+r}, s{sC0}, v{MN+r}")
    def cen(kk, h):
        g.mfma(vr(TR(kk) + 4*h, 4), vr(ID, 2), vr(HR(kk) + 2*h, 2), vr(MN, 4), k16=True)
    def cvt(kk):
        t = TR(kk); o = OR(kk)
        for d in range(4): k(f"v_cvt_pk_bf16_f32 v{o+d}, v{t+2*d}, v{t+2*d+1}")
        k.ds(f"ds_write_b128 v{8 if kk < 16 else 9}, {vr(o,4)} offset:{(kk & 15)*4096}", "cw")
    def gram(kk):
        o = vr(OR(kk), 4); g.mfma(vr(SQA, 4), o, o, vr(SQA, 4) if kk else None)
    for kk in range(NU):
        for h in range(2): cen(kk, h)
        for _ in range(-(-len(rest) // (NU - kk))): gen2.ring_load(g, rest.pop(0))
        if kk >= 2: gram(kk - 2)
        if kk >= 1: cvt(kk - 1)
    cvt(NU - 1); gram(NU - 2); gram(NU - 1)
    k.wait(ds="all"); k("s_barrier")
    g.ts("F.start")
    st = Stream(); st.ptr -= OPT["rl"]
    for f in b_reads(g, 0, 0, 160): f()
    bar = lambda: (k.wait(ds=["hp"]), k("s_barrier"))
    def late_load():
        k(f"s_lshl_b32 s{sT0}, s{sJ}, 9"); k(f"s_add_u32 s{sT0}, s{sT0}, {FH}"); k("v_lshlrev_b32 v98, 3, v0")
        k.vm(f"buffer_load_dwordx2 v[96:97], v98, {sr(WS,4)}, s{sT0} offen sc1", "late")
    def late_check():
        k.wait(vm="late"); g.check(98, f"s{sT0}", 96, 2)
    sops = stat_ops(g); cl = claim_ops(g) if OPT["claim"] else []
    pa = {4: sops[:9], 5: sops[9:]}; pb_ = {}; hk = {}
    if ND:
        assert ND <= 10 and OPT["rdy"] == 5
        DP = OPT["dp"]; steps = list(range(NU, 18)); pos = 0; pa = {}
        while steps:
            now, steps = steps[:DP], steps[DP:]
            nop = lambda: None
            ops = [lambda kk=kk, h=h: cen(kk, h) for kk in now for h in range(2)] + [nop]
            ops += [lambda kk=kk: cvt(kk) for kk in now] + [nop] + [lambda kk=kk: gram(kk) for kk in now]
            pa[pos] = ops; pos += 1
        assert pos <= NU - 1
        pa[pos] = sops[:9]; pa[pos + 1] = sops[9:]
        hk[NU - 1] = lambda: (k.wait(ds=["cw"]), k("s_barrier"))
    def w_touch(h):
        n0 = OPT["wpf"]; per = (NSEQ - n0) * 8 // 16
        k(f"s_lshr_b32 s{sT2}, s{sI}, 1"); k(f"s_mul_i32 s{sT2}, s{sT2}, {per*128}")
        k(f"s_add_u32 s{sT2}, s{sT2}, {n0*1024 + h*8192}"); k(f"s_add_u32 s{sT2}, s{sT2}, s{sA1}")
        k("v_lshlrev_b32 v228, 7, v0")
        m = min(per - 64*h, 64)
        if m < 64: g.setexec((1 << m) - 1)
        k.vm(f"buffer_load_dword v{229+h}, v228, {sr(WS,4)}, s{sT2} offen sc1", "wt")
        if m < 64: g.setexec(-1)
    if OPT["wpf"]:
        for h in range(((NSEQ - OPT["wpf"]) * 8 // 16 + 63) // 64): pa[10 + h] = [lambda h=h: w_touch(h)]
    for n, f in enumerate(cl):
        pos = OPT["c0"] + n * OPT["claim"]
        (pa if pos < 18 else pb_).setdefault(pos % 18, []).append(f); assert pos < 36
    gpass(g, st, 0, 5, 16, 0, [], {2: late_load, 9: late_check} if OPT['rsq'] >= 0 and OPT['rdy'] != 5 else hk, pa)
    g.ts("G1a")
    fill = relu_ops(g, 16, (0, 1), 4)
    gpass(g, st, 0, 4, 96, 1, fill, {17: bar}, pb_); assert not fill
    g.ts("G1b")
    fill = relu_ops(g, 96, (2, 3), None)
    def chk9():
        assert not fill
        bar()
    gpass(g, st, 1, 3, 16, 1, fill, {9: chk9})
    g.ts("P1")
    def flag_addr():
        k(f"""
        v_and_b32 v{vFL}, 31, v0
        v_lshrrev_b32 v48, 2, v{vFL}
        v_add_u32 v49, 4, v{vFL}
        v_and_b32 v49, 31, v49
        v_cmp_eq_u32 vcc, s{sJ}, v48
        v_cndmask_b32 v{vFL}, v{vFL}, v49, vcc
        v_lshlrev_b32 v{vFL}, 2, v{vFL}
        s_add_u32 s{sT0}, s{sJ}, 7
        v_bfe_u32 v48, v0, 2, 1
        v_sub_u32 v48, s{sT0}, v48
        v_and_b32 v48, 7, v48
        v_and_b32 v49, 3, v0
        v_lshl_add_u32 v48, v48, 2, v49
        s_lshl_b32 s{sT0}, s{sJ}, 5
        v_add_u32 v48, s{sT0}, v48
        v_add_u32 v49, 256, v0
        v_cmp_gt_u32 vcc, 32, v0
        v_cndmask_b32 v{vFE}, v48, v49, vcc
        v_lshlrev_b32 v{vFE}, 2, v{vFE}
        s_lshl_b32 s{sXB}, s{sA2}, 7
        s_add_u32 s{sXB}, s{sXB}, {FP}
        s_lshl_b32 s{sXB+1}, s{sJ}, 7
        s_add_u32 s{sXB+1}, s{sXB+1}, s{sXB}
        s_movk_i32 s{sXB+2}, 8
        """)
    fill = part_ops(g, 16, (0, 1, 2), "p1")
    gpass(g, st, 1, 3, 96, 1, fill, {12: flag_addr}, name="p2"); assert not fill
    g.ts("P2")
    fill = part_ops(g, 96, (3, 4, 5), "p2")
    gpass(g, st, 1, 2, 16, 1, fill, {OPT["f1"]: lambda: part_flags(g, (0, 1, 2), "p1"),
                                     14: lambda: h_pieces(g, sJ, 144, "hp")}, name="p3"); assert not fill
    g.ts("P3")
    V = lambda b: (lambda o, n: vr(b + o, n))
    A = lambda b: (lambda o, n: ar(b + o, n))
    R8 = [A(4 * (264 % gen2.RING) + 8*n) for n in range(8)]
    def owner(body):
        L = k.label("n8")
        k(f"s_lshl_b32 s{sT0}, s{sWV}, 1"); k(f"s_cmp_lg_u32 s{sT0}, s{sJ}"); k(f"s_cbranch_scc1 {L}")
        body(); k(f"{L}:")
    fill = part_ops(g, 16, (6, 7), "p3")
    def early_load():
        assert not fill
        k.vm(f"buffer_load_dword v60, v{vFE}, {sr(WS,4)}, s{sXB} offen sc1", "fe")
    def publish():
        part_flags(g, (3, 4, 5, 6, 7), "p3")
        g.ts("P4f")
        k.wait(vm="fe"); g.check(vFE, f"s{sXB}", 60, 1)
        part_base(g, sJ); part_loads(g, (7, 6), (V(48), V(56)), "pl")
        owner(lambda: (h_pieces(g, sXB + 2, 152, "h8", False), part_base(g, sXB + 2), part_loads(g, range(8), R8, "p8", False)))
    TE = OPT["te"]
    RL = [V(64 + 8*n) for n in range(4)] + [V(192 if TE else 96)]
    tail_flags = lambda tag="ft", count=True: k.vm(f"buffer_load_dword v200, v{vFL}, {sr(WS,4)}, s{sXB+1} offen sc1", tag, count)
    hk4 = {OPT["f3"] - 1: early_load, OPT["f3"]: publish}
    if TE >= 2: hk4[OPT["tp"]] = tail_flags
    gpass(g, st, 1, 1, 96, None, fill, hk4, rate=OPT["r4"], name="p4")
    g.ts("P4")
    if TE == 1: tail_flags()
    for mt in range(4): k.ds(f"ds_write_b128 v{vOWN}, {vr(96+4*mt,4)} offset:{mt*4096}")
    if TE >= 2:
        LA, LB = k.label("tna"), k.label("tnb")
        k.wait(vm="ft")
        k("v_cmp_ne_u32 vcc, 1, v200"); k("s_cmp_eq_u64 vcc, 0"); k(f"s_cselect_b32 s{sMK}, 1, 0")
        k(f"s_cbranch_scc0 {LA}")
        part_base(g, sJ); part_loads(g, (5, 4, 3, 2, 1), RL, "pl")
        k(f"s_branch {LB}")
        k(f"{LA}:")
        tail_flags(None, False)
        k(f"{LB}:")
    for e in range(4): g.mfma(vr(32 + 4*e, 4), vr(ID, 2), vr(144 + 2*e, 2), k16=True)
    k(f"s_mul_i32 s{sT0}, s{sWV}, 3072"); k(f"v_add_u32 v{vOWN}, s{sT0}, v{vOWN}")
    k.wait(ds="all"); k("s_barrier")
    for e in range(4): k.ds(f"ds_read_b128 {vr(160+4*e,4)}, v{vOWN} offset:{e*1024}", "own")
    part_sum(g, 16, (7, 6), (V(48), V(56)), "pl", True)
    k.wait(ds=["own"])
    for n in range(16): k(f"v_fma_f32 v{32+n}, v{160+n}, v{vRS}, v{32+n}")
    def block8():
        sv = list(k.vq)
        k.wait(vm="all")
        for e in range(4): g.mfma(vr(176 + 4*e, 4), vr(ID, 2), vr(152 + 2*e, 2), k16=True)
        part_sum(g, 112, range(8), R8, "p8", True)
        finish(g, 112, 176, 128, None)
        k.vq = sv
    owner(block8)
    part_base(g, sJ)
    g.ts("T.poll")
    if TE >= 2:
        LC = k.label("tnc")
        k(f"s_cmp_eq_u32 s{sMK}, 1"); k(f"s_cbranch_scc1 {LC}")
        k.wait(vm="all"); g.check(vFL, f"s{sXB+1}", 200, 1)
        part_loads(g, (5, 4, 3, 2, 1), RL, "pl")
        k(f"{LC}:")
        g.ts("T.seen")
    else:
        if TE: k.wait(vm="ft"); g.check(vFL, f"s{sXB+1}", 200, 1)
        else: g.poll(vFL, f"s{sXB+1}", 60)
        g.ts("T.seen")
        part_loads(g, (5, 4, 3, 2, 1), RL, "pl")
    part_sum(g, 16, (5, 4, 3, 2, 1), RL, "pl", False)
    finish(g, 16, 32, 140, sJ)
    owner(lambda: [out_store(g, 128, sXB + 2, r) for r in (1, 3)])
```

```python
from kgen import *
from gen import *
import gen2

HP = 73728
ID = 208
vG1B, vG2A, vG2B, vHP, vHP8, vP0, vP1, vOWN, vRS = 210, 211, 212, 213, 214, 215, 216, 217, 218
SQA, SQB, vFE, vFL = 220, 224, 232, 233
ORDER = list(range(8)) + [16, 17] + list(range(8, 16))
NSEQ = 324

def b_reads(g, src, kp, buf):
    k = g.k
    a = ((1, vG1B), (vG2A, vG2B))[src][kp >= 16]
    return [lambda mt=mt: k.ds(f"ds_read_b128 {vr(buf+4*mt,4)}, v{a} offset:{(kp & 15)*4096 + mt*1024}", ("fb", src, kp, buf))
            for mt in range(4)]

class Stream:
    def __init__(self): self.seq = 0; self.step = 0; self.ptr = gen2.RING
    def target(self):
        n = self.seq + 1
        lag = OPT["lag"] * min(n, 216) // 216
        return min(NSEQ, n + gen2.RING - lag)

def gpass(g, st, src, nblk, acc, nxt, fill, hooks={}, paced={}, rate=2, name=None):
    k = g.k
    order = list(range(18)) if src == 0 else ORDER
    for pos, kp in enumerate(order):
        buf = 160 + 16 * (st.step & 1); nb = 160 + 16 * ((st.step + 1) & 1)
        pre = [hooks[pos]] if pos in hooks else []
        if pos + 1 < 18: pre += b_reads(g, src, order[pos + 1], nb)
        elif nxt is not None: pre += b_reads(g, nxt, 0, nb)
        pre += paced.get(pos, [])
        if name and OPT["fine"] and pos % OPT["fine"] == 0 and pos: g.ts(f"{name}.{pos}")
        k.wait(ds=[("fb", src, kp, buf)])
        for b in range(nblk):
            k.wait(vm=("w", st.seq))
            for mt in range(4):
                d = vr(acc + 16*b + 4*mt, 4)
                g.mfma(d, ar(4 * (st.seq % gen2.RING), 4), vr(buf + 4*mt, 4), d if pos else None)
                n = 0
                if pre: pre.pop(0)(); n += 1
                if mt == 3 and st.ptr < st.target(): gen2.ring_load(g, st.ptr); st.ptr += 1; n += 1
                while fill and n < (rate - 1 if mt == 3 else rate): fill.pop(0)(); n += 1
            st.seq += 1
        while pre: pre.pop(0)()
        st.step += 1

def relu_ops(g, acc, pis, blk8):
    k = g.k; ops = []; n = 0
    for q, pi in enumerate(pis):
        for mt in range(4):
            t = 192 + 4 * (n & 3); n += 1
            for d in range(4):
                a = acc + 16 * (2*q + (d >> 1)) + 4*mt + 2*(d & 1)
                ops.append(lambda t=t, d=d, a=a: k(f"v_cvt_pk_bf16_f32 v{t+d}, v{a}, v{a+1}"))
            for d in range(4): ops.append(lambda t=t, d=d: k(f"v_pk_max_i16 v{t+d}, v{t+d}, 0"))
            ops.append(lambda t=t, pi=pi, mt=mt: k.ds(f"ds_write_b128 v{vHP}, {vr(t,4)} offset:{pi*16384 + mt*1024}", "hp"))
    if blk8 is not None:
        for mt in range(4):
            t = 192 + 4 * (n & 3); n += 1
            for d in range(2):
                a = acc + 16*blk8 + 4*mt + 2*d
                ops.append(lambda t=t, d=d, a=a: k(f"v_cvt_pk_bf16_f32 v{t+d}, v{a}, v{a+1}"))
            for d in range(2): ops.append(lambda t=t, d=d: k(f"v_pk_max_i16 v{t+d}, v{t+d}, 0"))
            ops.append(lambda t=t, mt=mt: k.ds(f"ds_write_b64 v{vHP8}, {vr(t,2)} offset:{mt*1024}", "hp"))
    return ops

def blk_index(g, dst, rel):
    k = g.k
    if rel == 0: k(f"s_add_u32 s{dst}, s{sA2}, 8")
    else:
        k(f"s_add_u32 s{dst}, s{sJ}, {rel}"); k(f"s_and_b32 s{dst}, s{dst}, 7"); k(f"s_add_u32 s{dst}, s{dst}, s{sA2}")

def part_ops(g, acc, rels, tag):
    k = g.k; ops = []; n = 0
    for b, rel in enumerate(rels):
        ops.append(lambda rel=rel: (blk_index(g, sT0, rel), k(f"s_lshl_b32 s{sT0}, s{sT0}, 16"), k(f"s_add_u32 s{sT0}, s{sT0}, s{sA3}")))
        for pb in range(2):
            t = 192 + 4 * (n & 3); n += 1
            for q in range(4):
                a = acc + 16*b + 8*pb + 2*q
                ops.append(lambda t=t, q=q, a=a: k(f"v_cvt_pk_bf16_f32 v{t+q}, v{a}, v{a+1}"))
            for q in range(2): ops.append(lambda t=t, q=q: k(f"v_permlane16_swap_b32 v{t+q}, v{t+q+2}"))
            ops.append(lambda t=t, pb=pb: k.vm(f"buffer_store_dwordx4 {vr(t,4)}, v{vP0+pb}, {sr(WS,4)}, s{sT0} offen sc1", tag))
    return ops

def part_flags(g, rels, tag):
    k = g.k
    k.wait(vm=tag); k("s_mov_b64 exec, 1")
    for rel in rels:
        blk_index(g, sT1, rel); k(f"s_lshl_b32 s{sT1}, s{sT1}, 7"); k(f"s_add_u32 s{sT1}, s{sT1}, s{sT5}")
        k.vm(f"buffer_store_dword v14, v6, {sr(WS,4)}, s{sT1} offen sc1")
    k("s_mov_b64 exec, -1")

def h_pieces(g, sblk, dst, tag, count=True):
    k = g.k
    k(f"s_lshl_b32 s{sT0}, s{sblk}, 13"); k(f"s_add_u32 s{sT0}, s{sT0}, s{sT4}"); k(f"s_add_u32 s{sT1}, s{sT0}, 4096")
    for e in range(4):
        k.vm(f"buffer_load_dwordx2 {vr(dst+2*e,2)}, v5, {sr(WS,4)}, s{sT0 if e < 2 else sT1} offen offset:{(e & 1)*512} sc1", tag, count)

def part_base(g, sblk):
    k = g.k
    k(f"""
    s_add_u32 s{sT2}, s{sA2}, s{sblk}
    s_lshl_b32 s{sT2}, s{sT2}, 16
    s_lshl_b32 s{sT1}, s{sWV}, 11
    s_add_u32 s{sT2}, s{sT2}, s{sT1}
    s_add_u32 s{sT2}, s{sT2}, {PB}
    """)

def part_loads(g, qs, regs, tag, count=True):
    k = g.k
    for q, rg in zip(qs, regs):
        k(f"s_add_u32 s{sT0}, s{sJ}, {q}"); k(f"s_and_b32 s{sT0}, s{sT0}, 7"); k(f"s_lshl_b32 s{sT0}, s{sT0}, 13")
        k(f"s_add_u32 s{sT0}, s{sT0}, s{sT2}")
        for c in range(2):
            k.vm(f"buffer_load_dwordx4 {rg(4*c,4)}, v1, {sr(WS,4)}, s{sT0} offen offset:{1024*c} sc1", (tag, q, c), count)

def part_sum(g, acc, qs, regs, tag, first):
    k = g.k
    for n, (q, rg) in enumerate(zip(qs, regs)):
        for c in range(2):
            k.wait(vm=(tag, q, c))
            for h in range(2):
                d = vr(acc + 8*c + 4*h, 4); g.mfma(d, vr(ID, 2), rg(4*c + 2*h, 2), None if first and n == 0 else d, k16=True)

def out_store(g, tmp, sblk, r):
    k = g.k
    if r == 1: k(f"s_lshl_b32 s{sT0}, s{sblk}, 7")
    k.vm(f"buffer_store_dwordx4 {vr(tmp+2*(r-1),4)}, v7, {sr(OS,4)}, s{sT0} offen offset:{8*(r-1)}")

def finish(g, acc, res, tmp, sblk):
    k = g.k
    for c in range(2):
        for r in range(4): k(f"v_permlane16_swap_b32 v{acc+8*c+r}, v{acc+4+8*c+r}")
    for e in range(4):
        for r in range(4): k(f"v_fma_f32 v{acc+4*e+r}, v{acc+4*e+r}, v{vRS}, v{res+4*e+r}")
    for r in range(4):
        for c in range(2): k(f"v_cvt_pk_bf16_f32 v{tmp+2*r+c}, v{acc+8*c+r}, v{acc+4+8*c+r}")
        if r & 1 and sblk is not None: out_store(g, tmp, sblk, r)

def stat_ops(g):
    k = g.k; a = SQA
    txt = [f"v_and_b32 v{a+4}, 3, v0", f"v_lshrrev_b32 v{a+5}, 2, v2"]
    for r in range(1, 4):
        txt += [f"v_cmp_eq_u32 vcc, {r}, v{a+4}", f"v_cndmask_b32 v{a}, v{a}, v{a+r}, vcc"]
    txt += [f"v_cmp_eq_u32 vcc, v{a+5}, v3", f"v_cndmask_b32 v{a}, 0, v{a}, vcc",
            f"v_mov_b32 v{a+1}, v{a}", f"v_permlane16_swap_b32 v{a}, v{a+1}", f"v_add_f32 v{a}, v{a}, v{a+1}",
            f"v_mov_b32 v{a+1}, v{a}", f"v_permlane32_swap_b32 v{a}, v{a+1}", f"v_add_f32 v{a}, v{a}, v{a+1}",
            f"v_fma_f32 v{a}, v{a}, s{sC1}, v15", f"v_rsq_f32 v{vRS}, v{a}"]
    return [lambda t=t: k(t) for t in txt]

def claim_ops(g):
    k = g.k; ops = []
    for rel in range(8):
        for pb in range(2):
            def f(rel=rel, pb=pb):
                blk_index(g, sT2, rel); k(f"s_lshl_b32 s{sT2}, s{sT2}, 16"); k(f"s_add_u32 s{sT2}, s{sT2}, s{sA3}")
                k.vm(f"buffer_store_dwordx4 v[228:231], v{vP0+pb}, {sr(WS,4)}, s{sT2} offen sc1", "claim")
            ops.append(f)
    return ops

def phase_f(g):
    k = g.k
    k(f"""
    s_lshl_b32 s{sT0}, s{sRF}, 7
    s_add_u32 s{sT0}, s{sT0}, {FH}
    s_mul_i32 s{sT4}, s{sRF}, 73728
    s_lshl_b32 s{sT1}, s{sWV}, 10
    s_add_u32 s{sT4}, s{sT4}, s{sT1}
    s_add_u32 s{sT4}, s{sT4}, {HB}
    v_and_b32 v56, 31, v0
    v_lshlrev_b32 v56, 2, v56
    v_lshlrev_b32 v57, 2, v3
    v_sub_u32 v57, v2, v57
    v_and_b32 v58, 1, v57
    v_lshlrev_b32 v58, 4, v58
    v_mov_b32 v59, 0x3f80
    v_lshlrev_b32 v58, v58, v59
    v_lshrrev_b32 v57, 1, v57
    v_cmp_eq_u32 vcc, 0, v57
    v_cndmask_b32 v{ID}, 0, v58, vcc
    v_cmp_eq_u32 vcc, 1, v57
    v_cndmask_b32 v{ID+1}, 0, v58, vcc
    v_add_u32 v{vG1B}, 0x10000, v1
    v_add_u32 v{vG2A}, {HP}, v1
    v_add_u32 v{vG2B}, {HP + 65536}, v1
    s_lshl_b32 s{sT2}, s{sWV}, 12
    v_add_u32 v{vHP}, s{sT2}, v{vG2A}
    s_lshr_b32 s{sT2}, s{sWV}, 1
    s_lshl_b32 s{sT3}, s{sT2}, 12
    s_and_b32 s{sA3}, s{sWV}, 1
    s_lshl_b32 s{sT5}, s{sA3}, 3
    s_add_u32 s{sT3}, s{sT3}, s{sT5}
    v_add_u32 v{vHP8}, s{sT3}, v{vG2B}
    s_lshl_b32 s{sT2}, s{sT2}, 10
    s_lshl_b32 s{sA3}, s{sA3}, 8
    s_add_u32 s{sA3}, s{sA3}, s{sT2}
    s_lshl_b32 s{sT2}, s{sJ}, 13
    s_add_u32 s{sA3}, s{sA3}, s{sT2}
    s_add_u32 s{sA3}, s{sA3}, {PB}
    s_mul_i32 s{sA2}, s{sRF}, 9
    s_lshl_b32 s{sT5}, s{sJ}, 2
    s_add_u32 s{sT5}, s{sT5}, s{sWV}
    s_lshl_b32 s{sT5}, s{sT5}, 2
    s_add_u32 s{sT5}, s{sT5}, {FP}
    v_and_b32 v57, 1, v3
    v_lshrrev_b32 v58, 1, v3
    v_lshlrev_b32 v58, 9, v58
    v_lshl_add_u32 v58, v57, 11, v58
    v_lshl_add_u32 v{vP0}, v2, 4, v58
    v_add_u32 v{vP1}, 0x1000, v{vP0}
    v_add_u32 v8, s{sT1}, v1
    v_add_u32 v9, 0x10000, v8
    v_add_u32 v{vOWN}, {AUX}, v8
    s_lshl_b32 s{sT2}, s{sRF}, 6
    s_lshl_b32 s{sT3}, s{sWV}, 4
    s_add_u32 s{sT2}, s{sT2}, s{sT3}
    v_add_u32 v7, s{sT2}, v2
    s_movk_i32 s{sT2}, 1152
    v_mul_u32_u24 v7, s{sT2}, v7
    v_lshl_add_u32 v7, v3, 5, v7
    """)
    for r in range(4): k(f"v_mov_b32 v{92+r}, {hex(ONE2)}")
    g.poll1(56, f"s{sT0}", 60)
    g.ts("FH.seen")
    k(f"s_mov_b32 s{sT0}, s{sT4}")
    ND = OPT["nd"]; NU = 18 - ND
    HR = lambda kk: 16 + 4*kk if kk < NU else 96 + 4*(kk - NU)
    MN = 152 if ND else 88
    TR = lambda kk: (96 + 8*(kk % 3)) if not ND else (56 + 8*(kk % 3)) if kk < NU else 136 + 8*(kk & 1)
    OR = lambda kk: (192 if ND else 128) + 4*(kk & 3)
    for kk in range(18):
        k.vm(f"buffer_load_dwordx4 {vr(HR(kk),4)}, v1, {sr(WS,4)}, s{sT0} offen sc1", ("h", kk))
        if kk < 17: k(f"s_add_u32 s{sT0}, s{sT0}, 4096")
    rest = list(range(gen2.NP1 + gen2.NP2A + gen2.NP2B, gen2.RING - OPT["rl"]))
    while len(rest) > OPT["rc"]: gen2.ring_load(g, rest.pop(0))
    for kk in range(18):
        k.wait(vm=("h", kk)); g.mfma(vr(MN, 4), "v[92:95]", vr(HR(kk), 4), vr(MN, 4) if kk else None)
    g.ts("H.in")
    for r in range(4): k(f"v_mul_f32 v{MN+r}, s{sC0}, v{MN+r}")
    def cen(kk, h):
        g.mfma(vr(TR(kk) + 4*h, 4), vr(ID, 2), vr(HR(kk) + 2*h, 2), vr(MN, 4), k16=True)
    def cvt(kk):
        t = TR(kk); o = OR(kk)
        for d in range(4): k(f"v_cvt_pk_bf16_f32 v{o+d}, v{t+2*d}, v{t+2*d+1}")
        k.ds(f"ds_write_b128 v{8 if kk < 16 else 9}, {vr(o,4)} offset:{(kk & 15)*4096}", "cw")
    def gram(kk):
        o = vr(OR(kk), 4); g.mfma(vr(SQA, 4), o, o, vr(SQA, 4) if kk else None)
    for kk in range(NU):
        for h in range(2): cen(kk, h)
        for _ in range(-(-len(rest) // (NU - kk))): gen2.ring_load(g, rest.pop(0))
        if kk >= 2: gram(kk - 2)
        if kk >= 1: cvt(kk - 1)
    cvt(NU - 1); gram(NU - 2); gram(NU - 1)
    k.wait(ds="all"); k("s_barrier")
    g.ts("F.start")
    st = Stream(); st.ptr -= OPT["rl"]
    for f in b_reads(g, 0, 0, 160): f()
    bar = lambda: (k.wait(ds=["hp"]), k("s_barrier"))
    def late_load():
        k(f"s_lshl_b32 s{sT0}, s{sJ}, 9"); k(f"s_add_u32 s{sT0}, s{sT0}, {FH}"); k("v_lshlrev_b32 v98, 3, v0")
        k.vm(f"buffer_load_dwordx2 v[96:97], v98, {sr(WS,4)}, s{sT0} offen sc1", "late")
    def late_check():
        k.wait(vm="late"); g.check(98, f"s{sT0}", 96, 2)
    sops = stat_ops(g); cl = claim_ops(g) if OPT["claim"] else []
    pa = {4: sops[:9], 5: sops[9:]}; pb_ = {}; hk = {}
    if ND:
        assert ND <= 10 and OPT["rdy"] == 5
        DP = OPT["dp"]; steps = list(range(NU, 18)); pos = 0; pa = {}
        while steps:
            now, steps = steps[:DP], steps[DP:]
            nop = lambda: None
            ops = [lambda kk=kk, h=h: cen(kk, h) for kk in now for h in range(2)] + [nop]
            ops += [lambda kk=kk: cvt(kk) for kk in now] + [nop] + [lambda kk=kk: gram(kk) for kk in now]
            pa[pos] = ops; pos += 1
        assert pos <= NU - 1
        pa[pos] = sops[:9]; pa[pos + 1] = sops[9:]
        hk[NU - 1] = lambda: (k.wait(ds=["cw"]), k("s_barrier"))
    def w_touch(h):
        n0 = OPT["wpf"]; per = (NSEQ - n0) * 8 // 16
        k(f"s_lshr_b32 s{sT2}, s{sI}, 1"); k(f"s_mul_i32 s{sT2}, s{sT2}, {per*128}")
        k(f"s_add_u32 s{sT2}, s{sT2}, {n0*1024 + h*8192}"); k(f"s_add_u32 s{sT2}, s{sT2}, s{sA1}")
        k("v_lshlrev_b32 v228, 7, v0")
        m = min(per - 64*h, 64)
        if m < 64: g.setexec((1 << m) - 1)
        k.vm(f"buffer_load_dword v{229+h}, v228, {sr(WS,4)}, s{sT2} offen sc1", "wt")
        if m < 64: g.setexec(-1)
    if OPT["wpf"]:
        for h in range(((NSEQ - OPT["wpf"]) * 8 // 16 + 63) // 64): pa[10 + h] = [lambda h=h: w_touch(h)]
    for n, f in enumerate(cl):
        pos = OPT["c0"] + n * OPT["claim"]
        (pa if pos < 18 else pb_).setdefault(pos % 18, []).append(f); assert pos < 36
    gpass(g, st, 0, 5, 16, 0, [], {2: late_load, 9: late_check} if OPT['rsq'] >= 0 and OPT['rdy'] != 5 else hk, pa)
    g.ts("G1a")
    fill = relu_ops(g, 16, (0, 1), 4)
    gpass(g, st, 0, 4, 96, 1, fill, {17: bar}, pb_); assert not fill
    g.ts("G1b")
    fill = relu_ops(g, 96, (2, 3), None)
    def chk9():
        assert not fill
        bar()
    gpass(g, st, 1, 3, 16, 1, fill, {9: chk9})
    g.ts("P1")
    def flag_addr():
        k(f"""
        v_and_b32 v{vFL}, 31, v0
        v_lshrrev_b32 v48, 2, v{vFL}
        v_add_u32 v49, 4, v{vFL}
        v_and_b32 v49, 31, v49
        v_cmp_eq_u32 vcc, s{sJ}, v48
        v_cndmask_b32 v{vFL}, v{vFL}, v49, vcc
        v_lshlrev_b32 v{vFL}, 2, v{vFL}
        s_add_u32 s{sT0}, s{sJ}, 7
        v_bfe_u32 v48, v0, 2, 1
        v_sub_u32 v48, s{sT0}, v48
        v_and_b32 v48, 7, v48
        v_and_b32 v49, 3, v0
        v_lshl_add_u32 v48, v48, 2, v49
        s_lshl_b32 s{sT0}, s{sJ}, 5
        v_add_u32 v48, s{sT0}, v48
        v_add_u32 v49, 256, v0
        v_cmp_gt_u32 vcc, 32, v0
        v_cndmask_b32 v{vFE}, v48, v49, vcc
        v_lshlrev_b32 v{vFE}, 2, v{vFE}
        s_lshl_b32 s{sXB}, s{sA2}, 7
        s_add_u32 s{sXB}, s{sXB}, {FP}
        s_lshl_b32 s{sXB+1}, s{sJ}, 7
        s_add_u32 s{sXB+1}, s{sXB+1}, s{sXB}
        s_movk_i32 s{sXB+2}, 8
        """)
    fill = part_ops(g, 16, (0, 1, 2), "p1")
    gpass(g, st, 1, 3, 96, 1, fill, {12: flag_addr}, name="p2"); assert not fill
    g.ts("P2")
    fill = part_ops(g, 96, (3, 4, 5), "p2")
    gpass(g, st, 1, 2, 16, 1, fill, {OPT["f1"]: lambda: part_flags(g, (0, 1, 2), "p1"),
                                     14: lambda: h_pieces(g, sJ, 144, "hp")}, name="p3"); assert not fill
    g.ts("P3")
    V = lambda b: (lambda o, n: vr(b + o, n))
    A = lambda b: (lambda o, n: ar(b + o, n))
    R8 = [A(4 * (264 % gen2.RING) + 8*n) for n in range(8)]
    def owner(body):
        L = k.label("n8")
        k(f"s_lshl_b32 s{sT0}, s{sWV}, 1"); k(f"s_cmp_lg_u32 s{sT0}, s{sJ}"); k(f"s_cbranch_scc1 {L}")
        body(); k(f"{L}:")
    fill = part_ops(g, 16, (6, 7), "p3")
    def early_load():
        assert not fill
        k.vm(f"buffer_load_dword v60, v{vFE}, {sr(WS,4)}, s{sXB} offen sc1", "fe")
    def publish():
        part_flags(g, (3, 4, 5, 6, 7), "p3")
        g.ts("P4f")
        k.wait(vm="fe"); g.check(vFE, f"s{sXB}", 60, 1)
        part_base(g, sJ); part_loads(g, (7, 6), (V(48), V(56)), "pl")
        owner(lambda: (h_pieces(g, sXB + 2, 152, "h8", False), part_base(g, sXB + 2), part_loads(g, range(8), R8, "p8", False)))
    TE = OPT["te"]
    RL = [V(64 + 8*n) for n in range(4)] + [V(192 if TE else 96)]
    tail_flags = lambda tag="ft", count=True: k.vm(f"buffer_load_dword v200, v{vFL}, {sr(WS,4)}, s{sXB+1} offen sc1", tag, count)
    hk4 = {OPT["f3"] - 1: early_load, OPT["f3"]: publish}
    if TE >= 2: hk4[OPT["tp"]] = tail_flags
    gpass(g, st, 1, 1, 96, None, fill, hk4, rate=OPT["r4"], name="p4")
    g.ts("P4")
    if TE == 1: tail_flags()
    for mt in range(4): k.ds(f"ds_write_b128 v{vOWN}, {vr(96+4*mt,4)} offset:{mt*4096}")
    if TE >= 2:
        LA, LB = k.label("tna"), k.label("tnb")
        k.wait(vm="ft")
        k("v_cmp_ne_u32 vcc, 1, v200"); k("s_cmp_eq_u64 vcc, 0"); k(f"s_cselect_b32 s{sMK}, 1, 0")
        k(f"s_cbranch_scc0 {LA}")
        part_base(g, sJ); part_loads(g, (5, 4, 3, 2, 1), RL, "pl")
        k(f"s_branch {LB}")
        k(f"{LA}:")
        tail_flags(None, False)
        k(f"{LB}:")
    for e in range(4): g.mfma(vr(32 + 4*e, 4), vr(ID, 2), vr(144 + 2*e, 2), k16=True)
    k(f"s_mul_i32 s{sT0}, s{sWV}, 3072"); k(f"v_add_u32 v{vOWN}, s{sT0}, v{vOWN}")
    k.wait(ds="all"); k("s_barrier")
    for e in range(4): k.ds(f"ds_read_b128 {vr(160+4*e,4)}, v{vOWN} offset:{e*1024}", "own")
    part_sum(g, 16, (7, 6), (V(48), V(56)), "pl", True)
    k.wait(ds=["own"])
    for n in range(16): k(f"v_fma_f32 v{32+n}, v{160+n}, v{vRS}, v{32+n}")
    def block8():
        sv = list(k.vq)
        if OPT["tq"] == 2: k("s_waitcnt vmcnt(10)")
        else: k.wait(vm="all")
        for e in range(4): g.mfma(vr(176 + 4*e, 4), vr(ID, 2), vr(152 + 2*e, 2), k16=True)
        part_sum(g, 112, range(8), R8, "p8", True)
        finish(g, 112, 176, 128, None)
        k.vq = sv
    if OPT["tq"] != 2: owner(block8)
    part_base(g, sJ)
    g.ts("T.poll")
    if TE >= 2:
        LC = k.label("tnc")
        k(f"s_cmp_eq_u32 s{sMK}, 1"); k(f"s_cbranch_scc1 {LC}")
        k.wait(vm="all"); g.check(vFL, f"s{sXB+1}", 200, 1)
        part_loads(g, (5, 4, 3, 2, 1), RL, "pl")
        k(f"{LC}:")
        g.ts("T.seen")
    else:
        if TE: k.wait(vm="ft"); g.check(vFL, f"s{sXB+1}", 200, 1)
        elif OPT["tq"]:
            k(f"s_lshr_b32 s{sT3}, s{sJ}, 1"); k(f"s_add_u32 s{sT3}, s{sT3}, 1"); k(f"s_and_b32 s{sT3}, s{sT3}, 3")
            g.poll1(vFL, f"s{sXB+1}", 60, wave=f"s{sT3}")
        else: g.poll(vFL, f"s{sXB+1}", 60)
        g.ts("T.seen")
        part_loads(g, (5, 4, 3, 2, 1), RL, "pl")
        if OPT["tq"] == 2:
            assert not TE
            owner(block8)
    part_sum(g, 16, (5, 4, 3, 2, 1), RL, "pl", False)
    finish(g, 16, 32, 140, sJ)
    owner(lambda: [out_store(g, 128, sXB + 2, r) for r in (1, 3)])
```

```python
from kgen import *
from gen import *
import gen2

HP = 73728
ID = 208
vG1B, vG2A, vG2B, vHP, vHP8, vP0, vP1, vOWN, vRS = 210, 211, 212, 213, 214, 215, 216, 217, 218
SQA, SQB, vFE, vFL = 220, 224, 232, 233
ORDER = list(range(8)) + [16, 17] + list(range(8, 16))
NSEQ = 324

def b_reads(g, src, kp, buf):
    k = g.k
    a = ((1, vG1B), (vG2A, vG2B))[src][kp >= 16]
    return [lambda mt=mt: k.ds(f"ds_read_b128 {vr(buf+4*mt,4)}, v{a} offset:{(kp & 15)*4096 + mt*1024}", ("fb", src, kp, buf))
            for mt in range(4)]

class Stream:
    def __init__(self): self.seq = 0; self.step = 0; self.ptr = gen2.RING
    def target(self):
        n = self.seq + 1
        lag = OPT["lag"] * min(n, 216) // 216
        return min(NSEQ, n + gen2.RING - lag)

def gpass(g, st, src, nblk, acc, nxt, fill, hooks={}, paced={}, rate=2, name=None):
    k = g.k
    order = list(range(18)) if src == 0 else ORDER
    for pos, kp in enumerate(order):
        buf = 160 + 16 * (st.step & 1); nb = 160 + 16 * ((st.step + 1) & 1)
        pre = [hooks[pos]] if pos in hooks else []
        if pos + 1 < 18: pre += b_reads(g, src, order[pos + 1], nb)
        elif nxt is not None: pre += b_reads(g, nxt, 0, nb)
        pre += paced.get(pos, [])
        if name and OPT["fine"] and pos % OPT["fine"] == 0 and pos: g.ts(f"{name}.{pos}")
        k.wait(ds=[("fb", src, kp, buf)])
        for b in range(nblk):
            k.wait(vm=("w", st.seq))
            for mt in range(4):
                d = vr(acc + 16*b + 4*mt, 4)
                g.mfma(d, ar(4 * (st.seq % gen2.RING), 4), vr(buf + 4*mt, 4), d if pos else None)
                n = 0
                if pre: pre.pop(0)(); n += 1
                if mt == 3 and st.ptr < st.target(): gen2.ring_load(g, st.ptr); st.ptr += 1; n += 1
                while fill and n < (rate - 1 if mt == 3 else rate): fill.pop(0)(); n += 1
            st.seq += 1
        while pre: pre.pop(0)()
        st.step += 1

def relu_ops(g, acc, pis, blk8):
    k = g.k; ops = []; n = 0
    for q, pi in enumerate(pis):
        for mt in range(4):
            t = 192 + 4 * (n & 3); n += 1
            for d in range(4):
                a = acc + 16 * (2*q + (d >> 1)) + 4*mt + 2*(d & 1)
                ops.append(lambda t=t, d=d, a=a: k(f"v_cvt_pk_bf16_f32 v{t+d}, v{a}, v{a+1}"))
            for d in range(4): ops.append(lambda t=t, d=d: k(f"v_pk_max_i16 v{t+d}, v{t+d}, 0"))
            ops.append(lambda t=t, pi=pi, mt=mt: k.ds(f"ds_write_b128 v{vHP}, {vr(t,4)} offset:{pi*16384 + mt*1024}", "hp"))
    if blk8 is not None:
        for mt in range(4):
            t = 192 + 4 * (n & 3); n += 1
            for d in range(2):
                a = acc + 16*blk8 + 4*mt + 2*d
                ops.append(lambda t=t, d=d, a=a: k(f"v_cvt_pk_bf16_f32 v{t+d}, v{a}, v{a+1}"))
            for d in range(2): ops.append(lambda t=t, d=d: k(f"v_pk_max_i16 v{t+d}, v{t+d}, 0"))
            ops.append(lambda t=t, mt=mt: k.ds(f"ds_write_b64 v{vHP8}, {vr(t,2)} offset:{mt*1024}", "hp"))
    return ops

def blk_index(g, dst, rel):
    k = g.k
    if rel == 0: k(f"s_add_u32 s{dst}, s{sA2}, 8")
    else:
        k(f"s_add_u32 s{dst}, s{sJ}, {rel}"); k(f"s_and_b32 s{dst}, s{dst}, 7"); k(f"s_add_u32 s{dst}, s{dst}, s{sA2}")

def part_ops(g, acc, rels, tag):
    k = g.k; ops = []; n = 0
    for b, rel in enumerate(rels):
        ops.append(lambda rel=rel: (blk_index(g, sT0, rel), k(f"s_lshl_b32 s{sT0}, s{sT0}, 16"), k(f"s_add_u32 s{sT0}, s{sT0}, s{sA3}")))
        for pb in range(2):
            t = 192 + 4 * (n & 3); n += 1
            for q in range(4):
                a = acc + 16*b + 8*pb + 2*q
                ops.append(lambda t=t, q=q, a=a: k(f"v_cvt_pk_bf16_f32 v{t+q}, v{a}, v{a+1}"))
            for q in range(2): ops.append(lambda t=t, q=q: k(f"v_permlane16_swap_b32 v{t+q}, v{t+q+2}"))
            ops.append(lambda t=t, pb=pb: k.vm(f"buffer_store_dwordx4 {vr(t,4)}, v{vP0+pb}, {sr(WS,4)}, s{sT0} offen sc1", tag))
    return ops

def part_flags(g, rels, tag):
    k = g.k
    k.wait(vm=tag); k("s_mov_b64 exec, 1")
    for rel in rels:
        blk_index(g, sT1, rel); k(f"s_lshl_b32 s{sT1}, s{sT1}, 7"); k(f"s_add_u32 s{sT1}, s{sT1}, s{sT5}")
        k.vm(f"buffer_store_dword v14, v6, {sr(WS,4)}, s{sT1} offen sc1")
    k("s_mov_b64 exec, -1")

def h_pieces(g, sblk, dst, tag, count=True):
    k = g.k
    k(f"s_lshl_b32 s{sT0}, s{sblk}, 13"); k(f"s_add_u32 s{sT0}, s{sT0}, s{sT4}"); k(f"s_add_u32 s{sT1}, s{sT0}, 4096")
    for e in range(4):
        k.vm(f"buffer_load_dwordx2 {vr(dst+2*e,2)}, v5, {sr(WS,4)}, s{sT0 if e < 2 else sT1} offen offset:{(e & 1)*512} sc1", tag, count)

def part_base(g, sblk):
    k = g.k
    k(f"""
    s_add_u32 s{sT2}, s{sA2}, s{sblk}
    s_lshl_b32 s{sT2}, s{sT2}, 16
    s_lshl_b32 s{sT1}, s{sWV}, 11
    s_add_u32 s{sT2}, s{sT2}, s{sT1}
    s_add_u32 s{sT2}, s{sT2}, {PB}
    """)

def part_loads(g, qs, regs, tag, count=True):
    k = g.k
    for q, rg in zip(qs, regs):
        k(f"s_add_u32 s{sT0}, s{sJ}, {q}"); k(f"s_and_b32 s{sT0}, s{sT0}, 7"); k(f"s_lshl_b32 s{sT0}, s{sT0}, 13")
        k(f"s_add_u32 s{sT0}, s{sT0}, s{sT2}")
        for c in range(2):
            k.vm(f"buffer_load_dwordx4 {rg(4*c,4)}, v1, {sr(WS,4)}, s{sT0} offen offset:{1024*c} sc1", (tag, q, c), count)

def part_sum(g, acc, qs, regs, tag, first):
    k = g.k
    for n, (q, rg) in enumerate(zip(qs, regs)):
        for c in range(2):
            k.wait(vm=(tag, q, c))
            for h in range(2):
                d = vr(acc + 8*c + 4*h, 4); g.mfma(d, vr(ID, 2), rg(4*c + 2*h, 2), None if first and n == 0 else d, k16=True)

def out_store(g, tmp, sblk, r):
    k = g.k
    if r == 1: k(f"s_lshl_b32 s{sT0}, s{sblk}, 7")
    k.vm(f"buffer_store_dwordx4 {vr(tmp+2*(r-1),4)}, v7, {sr(OS,4)}, s{sT0} offen offset:{8*(r-1)}")

def finish(g, acc, res, tmp, sblk):
    k = g.k
    for c in range(2):
        for r in range(4): k(f"v_permlane16_swap_b32 v{acc+8*c+r}, v{acc+4+8*c+r}")
    for e in range(4):
        for r in range(4): k(f"v_fma_f32 v{acc+4*e+r}, v{acc+4*e+r}, v{vRS}, v{res+4*e+r}")
    for r in range(4):
        for c in range(2): k(f"v_cvt_pk_bf16_f32 v{tmp+2*r+c}, v{acc+8*c+r}, v{acc+4+8*c+r}")
        if r & 1 and sblk is not None: out_store(g, tmp, sblk, r)

def stat_ops(g):
    k = g.k; a = SQA
    txt = [f"v_and_b32 v{a+4}, 3, v0", f"v_lshrrev_b32 v{a+5}, 2, v2"]
    for r in range(1, 4):
        txt += [f"v_cmp_eq_u32 vcc, {r}, v{a+4}", f"v_cndmask_b32 v{a}, v{a}, v{a+r}, vcc"]
    txt += [f"v_cmp_eq_u32 vcc, v{a+5}, v3", f"v_cndmask_b32 v{a}, 0, v{a}, vcc",
            f"v_mov_b32 v{a+1}, v{a}", f"v_permlane16_swap_b32 v{a}, v{a+1}", f"v_add_f32 v{a}, v{a}, v{a+1}",
            f"v_mov_b32 v{a+1}, v{a}", f"v_permlane32_swap_b32 v{a}, v{a+1}", f"v_add_f32 v{a}, v{a}, v{a+1}",
            f"v_fma_f32 v{a}, v{a}, s{sC1}, v15", f"v_rsq_f32 v{vRS}, v{a}"]
    return [lambda t=t: k(t) for t in txt]

def claim_ops(g):
    k = g.k; ops = []
    for rel in range(8):
        for pb in range(2):
            def f(rel=rel, pb=pb):
                blk_index(g, sT2, rel); k(f"s_lshl_b32 s{sT2}, s{sT2}, 16"); k(f"s_add_u32 s{sT2}, s{sT2}, s{sA3}")
                k.vm(f"buffer_store_dwordx4 v[228:231], v{vP0+pb}, {sr(WS,4)}, s{sT2} offen sc1", "claim")
            ops.append(f)
    return ops

def phase_f(g):
    k = g.k
    k(f"""
    s_lshl_b32 s{sT0}, s{sRF}, 7
    s_add_u32 s{sT0}, s{sT0}, {FH}
    s_mul_i32 s{sT4}, s{sRF}, 73728
    s_lshl_b32 s{sT1}, s{sWV}, 10
    s_add_u32 s{sT4}, s{sT4}, s{sT1}
    s_add_u32 s{sT4}, s{sT4}, {HB}
    v_and_b32 v56, 31, v0
    v_lshlrev_b32 v56, 2, v56
    v_lshlrev_b32 v57, 2, v3
    v_sub_u32 v57, v2, v57
    v_and_b32 v58, 1, v57
    v_lshlrev_b32 v58, 4, v58
    v_mov_b32 v59, 0x3f80
    v_lshlrev_b32 v58, v58, v59
    v_lshrrev_b32 v57, 1, v57
    v_cmp_eq_u32 vcc, 0, v57
    v_cndmask_b32 v{ID}, 0, v58, vcc
    v_cmp_eq_u32 vcc, 1, v57
    v_cndmask_b32 v{ID+1}, 0, v58, vcc
    v_add_u32 v{vG1B}, 0x10000, v1
    v_add_u32 v{vG2A}, {HP}, v1
    v_add_u32 v{vG2B}, {HP + 65536}, v1
    s_lshl_b32 s{sT2}, s{sWV}, 12
    v_add_u32 v{vHP}, s{sT2}, v{vG2A}
    s_lshr_b32 s{sT2}, s{sWV}, 1
    s_lshl_b32 s{sT3}, s{sT2}, 12
    s_and_b32 s{sA3}, s{sWV}, 1
    s_lshl_b32 s{sT5}, s{sA3}, 3
    s_add_u32 s{sT3}, s{sT3}, s{sT5}
    v_add_u32 v{vHP8}, s{sT3}, v{vG2B}
    s_lshl_b32 s{sT2}, s{sT2}, 10
    s_lshl_b32 s{sA3}, s{sA3}, 8
    s_add_u32 s{sA3}, s{sA3}, s{sT2}
    s_lshl_b32 s{sT2}, s{sJ}, 13
    s_add_u32 s{sA3}, s{sA3}, s{sT2}
    s_add_u32 s{sA3}, s{sA3}, {PB}
    s_mul_i32 s{sA2}, s{sRF}, 9
    s_lshl_b32 s{sT5}, s{sJ}, 2
    s_add_u32 s{sT5}, s{sT5}, s{sWV}
    s_lshl_b32 s{sT5}, s{sT5}, 2
    s_add_u32 s{sT5}, s{sT5}, {FP}
    v_and_b32 v57, 1, v3
    v_lshrrev_b32 v58, 1, v3
    v_lshlrev_b32 v58, 9, v58
    v_lshl_add_u32 v58, v57, 11, v58
    v_lshl_add_u32 v{vP0}, v2, 4, v58
    v_add_u32 v{vP1}, 0x1000, v{vP0}
    v_add_u32 v8, s{sT1}, v1
    v_add_u32 v9, 0x10000, v8
    v_add_u32 v{vOWN}, {AUX}, v8
    s_lshl_b32 s{sT2}, s{sRF}, 6
    s_lshl_b32 s{sT3}, s{sWV}, 4
    s_add_u32 s{sT2}, s{sT2}, s{sT3}
    v_add_u32 v7, s{sT2}, v2
    s_movk_i32 s{sT2}, 1152
    v_mul_u32_u24 v7, s{sT2}, v7
    v_lshl_add_u32 v7, v3, 5, v7
    """)
    for r in range(4): k(f"v_mov_b32 v{92+r}, {hex(ONE2)}")
    g.poll1(56, f"s{sT0}", 60)
    g.ts("FH.seen")
    k(f"s_mov_b32 s{sT0}, s{sT4}")
    ND = OPT["nd"]; NU = 18 - ND
    HR = lambda kk: 16 + 4*kk if kk < NU else 96 + 4*(kk - NU)
    MN = 152 if ND else 88
    TR = lambda kk: (96 + 8*(kk % 3)) if not ND else (56 + 8*(kk % 3)) if kk < NU else 136 + 8*(kk & 1)
    OR = lambda kk: (192 if ND else 128) + 4*(kk & 3)
    for kk in range(18):
        k.vm(f"buffer_load_dwordx4 {vr(HR(kk),4)}, v1, {sr(WS,4)}, s{sT0} offen sc1", ("h", kk))
        if kk < 17: k(f"s_add_u32 s{sT0}, s{sT0}, 4096")
    rest = list(range(gen2.NP1 + gen2.NP2A + gen2.NP2B, gen2.RING - OPT["rl"]))
    while len(rest) > OPT["rc"]: gen2.ring_load(g, rest.pop(0))
    for kk in range(18):
        k.wait(vm=("h", kk)); g.mfma(vr(MN, 4), "v[92:95]", vr(HR(kk), 4), vr(MN, 4) if kk else None)
    g.ts("H.in")
    for r in range(4): k(f"v_mul_f32 v{MN+r}, s{sC0}, v{MN+r}")
    def cen(kk, h):
        g.mfma(vr(TR(kk) + 4*h, 4), vr(ID, 2), vr(HR(kk) + 2*h, 2), vr(MN, 4), k16=True)
    def cvt(kk):
        t = TR(kk); o = OR(kk)
        for d in range(4): k(f"v_cvt_pk_bf16_f32 v{o+d}, v{t+2*d}, v{t+2*d+1}")
        k.ds(f"ds_write_b128 v{8 if kk < 16 else 9}, {vr(o,4)} offset:{(kk & 15)*4096}", "cw")
    def gram(kk):
        o = vr(OR(kk), 4); g.mfma(vr(SQA, 4), o, o, vr(SQA, 4) if kk else None)
    for kk in range(NU):
        for h in range(2): cen(kk, h)
        for _ in range(-(-len(rest) // (NU - kk))): gen2.ring_load(g, rest.pop(0))
        if kk >= 2: gram(kk - 2)
        if kk >= 1: cvt(kk - 1)
    cvt(NU - 1); gram(NU - 2); gram(NU - 1)
    k.wait(ds="all"); k("s_barrier")
    g.ts("F.start")
    st = Stream(); st.ptr -= OPT["rl"]
    for f in b_reads(g, 0, 0, 160): f()
    bar = lambda: (k.wait(ds=["hp"]), k("s_barrier"))
    def late_load():
        k(f"s_lshl_b32 s{sT0}, s{sJ}, 9"); k(f"s_add_u32 s{sT0}, s{sT0}, {FH}"); k("v_lshlrev_b32 v98, 3, v0")
        k.vm(f"buffer_load_dwordx2 v[96:97], v98, {sr(WS,4)}, s{sT0} offen sc1", "late")
    def late_check():
        k.wait(vm="late"); g.check(98, f"s{sT0}", 96, 2)
    sops = stat_ops(g); cl = claim_ops(g) if OPT["claim"] else []
    pa = {4: sops[:9], 5: sops[9:]}; pb_ = {}; hk = {}
    if ND:
        assert ND <= 10 and OPT["rdy"] == 5
        DP = OPT["dp"]; steps = list(range(NU, 18)); pos = 0; pa = {}
        while steps:
            now, steps = steps[:DP], steps[DP:]
            nop = lambda: None
            ops = [lambda kk=kk, h=h: cen(kk, h) for kk in now for h in range(2)] + [nop]
            ops += [lambda kk=kk: cvt(kk) for kk in now] + [nop] + [lambda kk=kk: gram(kk) for kk in now]
            pa[pos] = ops; pos += 1
        assert pos <= NU - 1
        pa[pos] = sops[:9]; pa[pos + 1] = sops[9:]
        hk[NU - 1] = lambda: (k.wait(ds=["cw"]), k("s_barrier"))
    def w_touch(h):
        n0 = OPT["wpf"]; per = (NSEQ - n0) * 8 // 16
        k(f"s_lshr_b32 s{sT2}, s{sI}, 1"); k(f"s_mul_i32 s{sT2}, s{sT2}, {per*128}")
        k(f"s_add_u32 s{sT2}, s{sT2}, {n0*1024 + h*8192}"); k(f"s_add_u32 s{sT2}, s{sT2}, s{sA1}")
        k("v_lshlrev_b32 v228, 7, v0")
        m = min(per - 64*h, 64)
        if m < 64: g.setexec((1 << m) - 1)
        k.vm(f"buffer_load_dword v{229+h}, v228, {sr(WS,4)}, s{sT2} offen sc1", "wt")
        if m < 64: g.setexec(-1)
    if OPT["wpf"]:
        for h in range(((NSEQ - OPT["wpf"]) * 8 // 16 + 63) // 64): pa[10 + h] = [lambda h=h: w_touch(h)]
    for n, f in enumerate(cl):
        pos = OPT["c0"] + n * OPT["claim"]
        (pa if pos < 18 else pb_).setdefault(pos % 18, []).append(f); assert pos < 36
    gpass(g, st, 0, 5, 16, 0, [], {2: late_load, 9: late_check} if OPT['rsq'] >= 0 and OPT['rdy'] != 5 else hk, pa)
    g.ts("G1a")
    fill = relu_ops(g, 16, (0, 1), 4)
    gpass(g, st, 0, 4, 96, 1, fill, {17: bar}, pb_); assert not fill
    g.ts("G1b")
    fill = relu_ops(g, 96, (2, 3), None)
    def chk9():
        assert not fill
        bar()
    gpass(g, st, 1, 3, 16, 1, fill, {9: chk9})
    g.ts("P1")
    def flag_addr():
        k(f"""
        v_and_b32 v{vFL}, 31, v0
        v_lshrrev_b32 v48, 2, v{vFL}
        v_add_u32 v49, 4, v{vFL}
        v_and_b32 v49, 31, v49
        v_cmp_eq_u32 vcc, s{sJ}, v48
        v_cndmask_b32 v{vFL}, v{vFL}, v49, vcc
        v_lshlrev_b32 v{vFL}, 2, v{vFL}
        s_add_u32 s{sT0}, s{sJ}, 7
        v_bfe_u32 v48, v0, 2, 1
        v_sub_u32 v48, s{sT0}, v48
        v_and_b32 v48, 7, v48
        v_and_b32 v49, 3, v0
        v_lshl_add_u32 v48, v48, 2, v49
        s_lshl_b32 s{sT0}, s{sJ}, 5
        v_add_u32 v48, s{sT0}, v48
        v_add_u32 v49, 256, v0
        v_cmp_gt_u32 vcc, 32, v0
        v_cndmask_b32 v{vFE}, v48, v49, vcc
        v_lshlrev_b32 v{vFE}, 2, v{vFE}
        s_lshl_b32 s{sXB}, s{sA2}, 7
        s_add_u32 s{sXB}, s{sXB}, {FP}
        s_lshl_b32 s{sXB+1}, s{sJ}, 7
        s_add_u32 s{sXB+1}, s{sXB+1}, s{sXB}
        s_movk_i32 s{sXB+2}, 8
        """)
    fill = part_ops(g, 16, (0, 1, 2), "p1")
    gpass(g, st, 1, 3, 96, 1, fill, {12: flag_addr}, name="p2"); assert not fill
    g.ts("P2")
    fill = part_ops(g, 96, (3, 4, 5), "p2")
    gpass(g, st, 1, 2, 16, 1, fill, {OPT["f1"]: lambda: part_flags(g, (0, 1, 2), "p1"),
                                     14: lambda: h_pieces(g, sJ, 144, "hp")}, name="p3"); assert not fill
    g.ts("P3")
    V = lambda b: (lambda o, n: vr(b + o, n))
    A = lambda b: (lambda o, n: ar(b + o, n))
    R8 = [A(4 * (264 % gen2.RING) + 8*n) for n in range(8)]
    def owner(body):
        L = k.label("n8")
        k(f"s_lshl_b32 s{sT0}, s{sWV}, 1"); k(f"s_cmp_lg_u32 s{sT0}, s{sJ}"); k(f"s_cbranch_scc1 {L}")
        body(); k(f"{L}:")
    fill = part_ops(g, 16, (6, 7), "p3")
    def early_load():
        assert not fill
        k.vm(f"buffer_load_dword v60, v{vFE}, {sr(WS,4)}, s{sXB} offen sc1", "fe")
    own_loads = lambda: owner(lambda: (h_pieces(g, sXB + 2, 152, "h8", False), part_base(g, sXB + 2),
                                       part_loads(g, range(8), R8, "p8", False)))
    def publish():
        part_flags(g, (3, 4, 5, 6, 7), "p3")
        g.ts("P4f")
        k.wait(vm="fe"); g.check(vFE, f"s{sXB}", 60, 1)
        part_base(g, sJ); part_loads(g, (7, 6), (V(48), V(56)), "pl")
        if OPT["tq"] != 3: own_loads()
    TE = OPT["te"]
    RL = [V(64 + 8*n) for n in range(4)] + [V(192 if TE else 96)]
    tail_flags = lambda tag="ft", count=True: k.vm(f"buffer_load_dword v200, v{vFL}, {sr(WS,4)}, s{sXB+1} offen sc1", tag, count)
    hk4 = {OPT["f3"] - 1: early_load, OPT["f3"]: publish}
    if TE >= 2: hk4[OPT["tp"]] = tail_flags
    gpass(g, st, 1, 1, 96, None, fill, hk4, rate=OPT["r4"], name="p4")
    g.ts("P4")
    if TE == 1: tail_flags()
    for mt in range(4): k.ds(f"ds_write_b128 v{vOWN}, {vr(96+4*mt,4)} offset:{mt*4096}")
    if TE >= 2:
        LA, LB = k.label("tna"), k.label("tnb")
        k.wait(vm="ft")
        k("v_cmp_ne_u32 vcc, 1, v200"); k("s_cmp_eq_u64 vcc, 0"); k(f"s_cselect_b32 s{sMK}, 1, 0")
        k(f"s_cbranch_scc0 {LA}")
        part_base(g, sJ); part_loads(g, (5, 4, 3, 2, 1), RL, "pl")
        k(f"s_branch {LB}")
        k(f"{LA}:")
        tail_flags(None, False)
        k(f"{LB}:")
    for e in range(4): g.mfma(vr(32 + 4*e, 4), vr(ID, 2), vr(144 + 2*e, 2), k16=True)
    k(f"s_mul_i32 s{sT0}, s{sWV}, 3072"); k(f"v_add_u32 v{vOWN}, s{sT0}, v{vOWN}")
    k.wait(ds="all"); k("s_barrier")
    for e in range(4): k.ds(f"ds_read_b128 {vr(160+4*e,4)}, v{vOWN} offset:{e*1024}", "own")
    part_sum(g, 16, (7, 6), (V(48), V(56)), "pl", True)
    k.wait(ds=["own"])
    for n in range(16): k(f"v_fma_f32 v{32+n}, v{160+n}, v{vRS}, v{32+n}")
    def block8():
        sv = list(k.vq)
        if OPT["tq"] >= 2: k("s_waitcnt vmcnt(10)")
        else: k.wait(vm="all")
        for e in range(4): g.mfma(vr(176 + 4*e, 4), vr(ID, 2), vr(152 + 2*e, 2), k16=True)
        part_sum(g, 112, range(8), R8, "p8", True)
        finish(g, 112, 176, 128, None)
        k.vq = sv
    if OPT["tq"] < 2: owner(block8)
    if OPT["tq"] == 3: own_loads()
    part_base(g, sJ)
    g.ts("T.poll")
    if TE >= 2:
        LC = k.label("tnc")
        k(f"s_cmp_eq_u32 s{sMK}, 1"); k(f"s_cbranch_scc1 {LC}")
        k.wait(vm="all"); g.check(vFL, f"s{sXB+1}", 200, 1)
        part_loads(g, (5, 4, 3, 2, 1), RL, "pl")
        k(f"{LC}:")
        g.ts("T.seen")
    else:
        if TE: k.wait(vm="ft"); g.check(vFL, f"s{sXB+1}", 200, 1)
        elif OPT["tq"]:
            k(f"s_lshr_b32 s{sT3}, s{sJ}, 1"); k(f"s_add_u32 s{sT3}, s{sT3}, 1"); k(f"s_and_b32 s{sT3}, s{sT3}, 3")
            g.poll1(vFL, f"s{sXB+1}", 60, wave=f"s{sT3}")
        else: g.poll(vFL, f"s{sXB+1}", 60)
        g.ts("T.seen")
        part_loads(g, (5, 4, 3, 2, 1), RL, "pl")
        if OPT["tq"] >= 2:
            assert not TE
            owner(block8)
    part_sum(g, 16, (5, 4, 3, 2, 1), RL, "pl", False)
    finish(g, 16, 32, 140, sJ)
    owner(lambda: [out_store(g, 128, sXB + 2, r) for r in (1, 3)])
```
